```python
import torch

def _softmax(x, axis=-1):
    return torch.softmax(x, dim=axis)
def _gelu(x):
    return torch.nn.functional.gelu(x, approximate="tanh")
def _silu(x):
    return torch.nn.functional.silu(x)
def _sigmoid(x):
    return torch.sigmoid(x)
def _layernorm(x, axis=-1, eps=1e-5):
    m = x.mean(dim=axis, keepdim=True)
    v = x.var(dim=axis, keepdim=True, unbiased=False)
    return (x - m) / torch.sqrt(v + eps)
def _scatter_add(tgt, idx, src, axis=0):
    return tgt.clone().index_add_(axis, idx, src)
def _segment_sum(src, seg, n):
    out = torch.zeros((n,) + src.shape[1:], dtype=src.dtype)
    return out.index_add_(0, seg, src)
def _pad(x, pw):
    flat = tuple(v for pair in reversed(pw) for v in pair)
    return torch.nn.functional.pad(x, flat)

kernel_name = 'parallel_sum__linear_attn_block__dense_activation_relu__prompt'

def setup_inputs():

    _w = (lambda a: (lambda t: t.to(torch.bfloat16) if t.is_floating_point() else t)(torch.as_tensor(a)))
    def _A_setup():
        B, S, D = 1, 2048, 512
        return {
            "x": _w((lambda *s: torch.randn(*s, dtype=torch.bfloat16) * 0.05)(B, S, D)),
            "wqkv": _w((lambda *s: torch.randn(*s, dtype=torch.bfloat16) * 0.2)(D, 3 * D)),
            "wo": _w((lambda *s: torch.randn(*s, dtype=torch.bfloat16) * 0.2)(D, D)),
        }
    _A_in = _A_setup()

    def _B_setup():
        B, S, D, Dff = 1, 2048, 512, 1376
        return {
            "x": _w((lambda *s: torch.randn(*s, dtype=torch.bfloat16) * 0.05)(B, S, D)),
            "w1": _w((lambda *s: torch.randn(*s, dtype=torch.bfloat16) * 0.05)(D, Dff)),
            "w2": _w((lambda *s: torch.randn(*s, dtype=torch.bfloat16) * 0.05)(Dff, D)),
        }
    _B_in = _B_setup()

    return {
        "A_x": _A_in["x"],
        "A_wqkv": _A_in["wqkv"],
        "A_wo": _A_in["wo"],
        "B_x": _B_in["x"],
        "B_w1": _B_in["w1"],
        "B_w2": _B_in["w2"],
    }

def reference(A_x, A_wqkv, A_wo, B_x, B_w1, B_w2):
    def _A_ref(x, wqkv, wo):
        B, S, D = x.shape
        H = 32; Dh = D // H
        qkv = (lambda x, *d: x.permute(*d))((x @ wqkv).reshape(B, S, 3, H, Dh), 2, 0, 3, 1, 4)
        q, k, v = qkv[0], qkv[1], qkv[2]
        phi = lambda t: torch.where(t > 0, t + 1, torch.exp(t)) + 1e-6
        pq, pk = phi(q), phi(k)
        kv = torch.einsum("bhsd,bhse->bhde", pk, v)
        z = torch.einsum("bhsd->bhd", pk)
        num = torch.einsum("bhqd,bhde->bhqe", pq, kv)
        den = torch.einsum("bhqd,bhd->bhq", pq, z)[..., None] + 1e-6
        o = num / den
        return (lambda x, *d: x.permute(*d))(o, 0, 2, 1, 3).reshape(B, S, D) @ wo

    def _B_ref(x, w1, w2):
        h = torch.einsum("bsd,df->bsf", x, w1)
        zero = torch.zeros_like(h)
        h = torch.maximum(h, zero)
        return torch.einsum("bsf,fd->bsd", h, w2)

    x = A_x
    xn = _layernorm(x, axis=-1)
    return x + _A_ref(xn, A_wqkv, A_wo) + _B_ref(xn, B_w1, B_w2)
```

```python
import re

REG_RE = re.compile(r"^(-|abs\()?([vas])(?:(\d+)|\[(\d+):(\d+)\])\)?$")

def regs_of(op):
    op = op.strip()
    if op in ("vcc",): return [("s", 106), ("s", 107)]
    if op == "vcc_lo": return [("s", 106)]
    if op == "exec": return [("s", 126), ("s", 127)]
    if op == "m0": return [("s", 124)]
    m = REG_RE.match(op)
    if not m: return []
    k = m.group(2)
    if m.group(3) is not None: return [(k, int(m.group(3)))]
    return [(k, i) for i in range(int(m.group(4)), int(m.group(5)) + 1)]

TRANS = ("v_exp_f32", "v_log_f32", "v_rcp_f32", "v_rsq_f32", "v_sqrt_f32", "v_sin_f32", "v_cos_f32")

class Ins:
    __slots__ = ("text", "op", "kind", "wr", "rd", "passes", "srcc", "ab", "states", "wide_data", "lds_dma", "mask_rd")
    def __init__(self, text):
        self.text = text
        t = text.split(";")[0].strip()
        parts = t.split(None, 1)
        self.op = op = parts[0]
        rest = parts[1] if len(parts) > 1 else ""
        ops = [o.strip() for o in re.split(r",(?![^\[]*\])", rest)] if rest else []
        mods = []
        if ops:
            lp = ops[-1].split()
            ops[-1] = lp[0]; mods = lp[1:]
        self.wr = []; self.rd = []; self.passes = 0; self.srcc = []; self.ab = []
        self.states = 1; self.wide_data = []; self.lds_dma = False; self.mask_rd = []
        R = regs_of
        if op == "s_nop":
            self.kind = "nop"; self.states = int(ops[0], 0) + 1
        elif op.startswith("v_mfma"):
            self.kind = "mfma"
            self.passes = 8 if "32x32x16" in op else 4 if "16x16x32" in op else 2 if "4x4x4" in op else None
            assert self.passes, op
            self.wr = R(ops[0]); self.ab = R(ops[1]) + R(ops[2]); self.srcc = R(ops[3]); self.rd = self.ab + self.srcc
        elif op.startswith("v_"):
            self.kind = "valu"
            base = op.replace("_e32", "").replace("_e64", "")
            if base in TRANS: self.kind = "trans"
            if base.startswith("v_cmp"):
                self.wr = R(ops[0]); self.rd = sum((R(o) for o in ops[1:]), [])
            elif base.startswith("v_permlane") and "swap" in base:
                self.kind = "permlane"; self.wr = R(ops[0]) + R(ops[1]); self.rd = list(self.wr)
            elif base in ("v_readfirstlane_b32", "v_readlane_b32"):
                self.kind = "readlane"; self.wr = R(ops[0]); self.rd = sum((R(o) for o in ops[1:]), [])
            elif base in ("v_fmac_f32", "v_dot2c_f32_bf16"):
                self.wr = R(ops[0]); self.rd = sum((R(o) for o in ops), [])
            elif base in ("v_add_co_u32", "v_addc_co_u32", "v_sub_co_u32"):
                self.wr = R(ops[0]) + R(ops[1]); self.rd = sum((R(o) for o in ops[2:]), [])
            else:
                self.wr = R(ops[0]); self.rd = sum((R(o) for o in ops[1:]), [])
            if "dpp" in op or any(m.startswith("row_") or m.startswith("quad_perm") for m in mods): self.kind = "dpp"
        elif op.startswith("ds_"):
            self.kind = "ds"
            if op.startswith("ds_read") or op.startswith("ds_bpermute") or op.startswith("ds_swizzle"):
                self.wr = R(ops[0]); self.rd = sum((R(o) for o in ops[1:]), [])
            else:
                self.rd = sum((R(o) for o in ops), [])
        elif op.startswith("buffer_") or op.startswith("global_"):
            self.kind = "vmem"
            if "lds" in mods or "load_lds" in op:
                self.lds_dma = True; self.rd = sum((R(o) for o in ops), []) + [("s", 124)]
            elif "load" in op:
                self.wr = R(ops[0]); self.rd = sum((R(o) for o in ops[1:]), [])
            elif "atomic" in op and "sc0" in mods:
                self.wr = R(ops[0]); self.rd = sum((R(o) for o in ops), [])
            else:
                self.rd = sum((R(o) for o in ops), [])
                if "store" in op and ("x4" in op or "x3" in op):
                    self.wide_data = R(ops[0]) if op.startswith("buffer_") else R(ops[1])
        elif op.startswith("s_"):
            self.kind = "salu"
            if op.startswith("s_cmp") or op.startswith("s_cbranch") or op in ("s_branch", "s_waitcnt", "s_barrier", "s_endpgm", "s_sleep", "s_setprio"):
                self.rd = sum((R(o) for o in ops), [])
            else:
                self.wr = R(ops[0]) if ops else []; self.rd = sum((R(o) for o in ops[1:]), [])
                if "saveexec" in op: self.wr = self.wr + [("s", 126), ("s", 127)]
        else:
            self.kind = "other"; self.states = 0

VALU_KINDS = ("valu", "trans", "permlane", "readlane", "dpp")
D2USE = {2: 5, 4: 8, 8: 12}
D2C_OVL = {2: 4, 4: 6, 8: 10}
C_WAR = {2: 1, 4: 3, 8: 7}

def need_states(p, c):
    n = 0
    pw = set(p.wr); cr = set(c.rd); cw = set(c.wr)
    if p.kind in VALU_KINDS:
        vw = {r for r in pw if r[0] in "va"}; sw = {r for r in pw if r[0] == "s"}
        if c.kind == "mfma" and vw & cr: n = max(n, 2)
        if c.kind == "readlane" and vw & cr: n = max(n, 1)
        if c.kind in ("permlane", "dpp") and vw & cr: n = max(n, 2)
        if p.kind == "trans" and c.kind in VALU_KINDS and c.kind != "trans" and vw & cr: n = max(n, 1)
        if p.kind == "trans" and c.kind in ("ds", "vmem", "trans") and vw & cr: n = max(n, 1)
        if sw & cr:
            if c.kind in VALU_KINDS: n = max(n, 4 if c.kind == "readlane" else 2)
            if c.kind == "vmem": n = max(n, 5)
            if c.kind == "salu": n = max(n, 2)
    if p.kind == "mfma":
        if c.kind == "mfma":
            if pw & set(c.ab): n = max(n, D2USE[p.passes])
            if pw & set(c.srcc):
                if c.srcc == p.wr and c.passes == p.passes: n = max(n, 2 if p.passes == 2 else 0)
                else: n = max(n, D2C_OVL[p.passes])
            elif pw & cw: n = max(n, D2USE[p.passes])
        elif c.kind in VALU_KINDS or c.kind in ("ds", "vmem"):
            if pw & (cr | cw): n = max(n, D2USE[p.passes])
            if c.kind in VALU_KINDS and set(p.srcc) & cw: n = max(n, C_WAR[p.passes])
    if p.kind == "salu" and ("s", 124) in pw and c.lds_dma: n = max(n, 1)
    if p.kind == "vmem" and p.wide_data and set(p.wide_data) & cw:
        n = max(n, 2 if c.kind in VALU_KINDS or c.kind == "mfma" else 1)
    if p.kind == "ds" and not p.wr and len(p.rd) > 3 and set(p.rd) & cw and c.kind in VALU_KINDS:
        n = max(n, 2)
    return n

class Gen:
    def __init__(self):
        self.out = []
        self.hist = []
        self.pos = 0
        self.vm = []
        self.lg = []
        self.nops = 0
    def raw(self, s):
        self.out.append(s)
    def label(self, name):
        self.out.append(name + ":")
    def e(self, text):
        for t in text.split("\n"):
            t = t.strip()
            if not t: continue
            if t.endswith(":") or t.startswith(".") or t.startswith(";"):
                self.out.append(t); continue
            ins = Ins(t)
            need = 0
            for (p, ppos) in self.hist:
                d = self.pos - ppos
                ns = need_states(p, ins)
                if ns > d: need = max(need, ns - d)
            while need > 0:
                k = min(need, 16)
                self.out.append("    s_nop %d" % (k - 1)); self.pos += k; need -= k; self.nops += k
            self.out.append("    " + t)
            self.pos += ins.states
            self.hist.append((ins, self.pos))
            self.hist = [(p, pp) for (p, pp) in self.hist if self.pos - pp < 24]
    def vmem(self, text, tag=None, counted=True):
        self.e(text)
        if counted: self.vm.append(tag)
    def ds(self, text, tag=None):
        self.e(text); self.lg.append(tag)
    def _need(self, q, tags):
        idx = -1
        for i, t in enumerate(q):
            if t in tags: idx = i
        return idx
    def wait(self, vm=(), lg=(), vm_all=False, lg_all=False):
        parts = []
        if isinstance(vm, (str, tuple)) and not isinstance(vm, list): vm = [vm] if vm else []
        if isinstance(lg, (str, tuple)) and not isinstance(lg, list): lg = [lg] if lg else []
        iv = len(self.vm) - 1 if vm_all else self._need(self.vm, vm)
        if iv >= 0 or vm_all:
            n = len(self.vm) - iv - 1
            if n <= 63:
                parts.append("vmcnt(%d)" % n); self.vm = self.vm[iv + 1:]
            else:
                parts.append("vmcnt(63)"); self.vm = self.vm[len(self.vm) - 63:]
                raise AssertionError("vmcnt overflow")
        il = len(self.lg) - 1 if lg_all else self._need(self.lg, lg)
        if il >= 0 or lg_all:
            n = len(self.lg) - il - 1
            if n > 15:
                n = 15
            parts.append("lgkmcnt(%d)" % n); self.lg = self.lg[len(self.lg) - n:] if n else []
        if parts: self.e("s_waitcnt " + " ".join(parts))
    def text(self):
        return "\n".join(self.out) + "\n"
```

```python
import sys, struct
sys.path.insert(0, "dev")
from asmgen import Gen

def f2u(x): return struct.unpack("<I", struct.pack("<f", x))[0]

HB, QB, KVB = 0, 0x600000, 0x800000
KVH = 1088
WS_BYTES = 268435456
OOB = 0x40000000
HSTART = [0, 192, 352, 544, 704, 896, 1056, 1216]
HWID = [192, 160, 192, 160, 192, 160, 160, 160]
XS, WSL, MISC = 0, 65536, 131072
M_CS, M_RM, M_RR, M_KV = MISC, MISC + 512, MISC + 1024, MISC + 2048

def srd(g, d, lo, nbytes):
    g.e(f"s_mov_b32 s{d}, s{lo}")
    g.e(f"s_and_b32 s{d+1}, s{lo+1}, 0xffff")
    g.e(f"s_mov_b32 s{d+2}, {nbytes}")
    g.e(f"s_mov_b32 s{d+3}, 0x00020000")

def vr(a, n=4): return f"v[{a}:{a+n-1}]"
def ar(a, n=4): return f"a[{a}:{a+n-1}]"

def X(t, p, u): return ar(128 * t + 16 * p + 4 * u)
ACC = [64, 80]
WF = [40, 44, 48]
MO, ONES, S1, Q0, Q1, CS = 16, 20, 24, 28, 32, 36
AAUG, BAUG = [52, 56], 60
RL = 96
RROW = [100, 116]
PK, VF = 132, 148
T = 164
KVA, ZA = 208, 224

def k1_prologue(g):
    e = g.e
    e("s_cmp_ge_u32 s2, 256")
    e("s_cbranch_scc1 K1_END")
    e("s_load_dwordx4 s[4:7], s[0:1], 0")
    e("s_load_dwordx2 s[8:9], s[0:1], 32")
    e("s_load_dwordx4 s[12:15], s[0:1], 56")
    e("s_and_b32 s47, s2, 7")
    e("s_lshr_b32 s48, s2, 3")
    e("s_and_b32 s32, s47, 1")
    e("s_lshl_b32 s32, s32, 3")
    e("s_lshr_b32 s49, s48, 2")
    e("s_add_u32 s32, s32, s49")
    e("s_and_b32 s49, s48, 3")
    e("s_and_b32 s33, s49, 1")
    e("s_lshr_b32 s34, s47, 1")
    e("s_lshl_b32 s34, s34, 1")
    e("s_lshr_b32 s50, s49, 1")
    e("s_add_u32 s34, s34, s50")
    e("s_add_u32 s35, s32, s49")
    e("v_and_b32 v1, 63, v0")
    e("v_lshrrev_b32 v2, 6, v0")
    e("v_readfirstlane_b32 s36, v2")
    e("s_lshr_b32 s37, s36, 1")
    e("s_and_b32 s38, s36, 1")
    e("s_mov_b32 s39, 2752")
    e("s_cmp_eq_u32 s33, 0")
    e("s_cselect_b32 s39, 3072, s39")
    e("s_lshr_b32 s47, s34, 1")
    e("s_mul_i32 s47, s47, 704")
    e("s_and_b32 s48, s34, 1")
    e("s_mul_i32 s48, s48, 384")
    e("s_add_u32 s47, s47, s48")
    e("s_cmp_eq_u32 s34, 7")
    e("s_cselect_b32 s47, 2432, s47")
    e("s_lshl_b32 s48, s34, 7")
    e("s_add_u32 s42, s48, 1024")
    e("s_add_u32 s43, s48, 2048")
    e("s_mov_b32 s44, s48")
    e("s_add_u32 s49, s47, 128")
    e("s_add_u32 s50, s47, 256")
    e("s_cmp_eq_u32 s33, 0")
    e("s_cselect_b32 s42, s42, s47")
    e("s_cselect_b32 s43, s43, s49")
    e("s_cselect_b32 s44, s44, s50")
    e("s_mov_b32 s73, s47")
    e("s_lshl_b32 s45, s39, 3")
    e("s_lshl_b32 s46, s39, 6")
    e("s_lshl_b32 s40, s32, 7")
    e("s_lshl_b32 s47, s36, 5")
    e("s_add_u32 s40, s40, s47")
    e("s_lshl_b32 s40, s40, 10")
    e("s_lshl_b32 s41, s36, 4")
    e("s_mul_i32 s41, s41, s39")
    for p in range(8):
        e(f"s_add_u32 s47, s35, {p}")
        e("s_and_b32 s47, s47, 7")
        e(f"s_lshl_b32 s{56+p}, s47, 7")
        e(f"s_add_u32 s{56+p}, s{56+p}, s40")
        e(f"s_mul_i32 s{64+p}, s47, s46")
        e(f"s_add_u32 s{64+p}, s{64+p}, s41")
    e("s_lshl_b32 s50, s36, 12")
    e("s_lshl_b32 s51, s36, 11")
    e(f"s_add_u32 s51, s51, {WSL}")
    e("v_lshrrev_b32 v5, 3, v1")
    e("v_and_b32 v6, 7, v1")
    e("v_lshrrev_b32 v7, 1, v5")
    e("v_xor_b32 v8, v6, v7")
    e("v_lshlrev_b32 v8, 4, v8")
    e("v_lshl_add_u32 v2, v5, 10, v8")
    e("v_xor_b32 v3, 64, v2")
    e("v_and_b32 v7, 1, v7")
    e("v_lshlrev_b32 v7, 2, v7")
    e("v_xor_b32 v8, v6, v7")
    e("v_lshlrev_b32 v8, 4, v8")
    e("v_mul_lo_u32 v4, v5, s39")
    e("v_add_u32 v4, v4, v8")
    e("s_waitcnt lgkmcnt(0)")
    srd(g, 16, 4, 2048 * 1024)
    e("s_mov_b32 s22, %d" % (512 * 2752))
    e("s_cmp_eq_u32 s33, 0")
    e("s_cselect_b32 s20, s6, s8")
    e("s_cselect_b32 s21, s7, s9")
    e("s_cselect_b32 s22, %d, s22" % (512 * 3072))
    e("s_and_b32 s21, s21, 0xffff")
    e("s_mov_b32 s23, 0x00020000")
    srd(g, 24, 14, WS_BYTES)
    srd(g, 28, 12, 256)

def dma_x(g, p, i):
    g.e(f"s_add_u32 m0, s50, {XS + (p % 4) * 16384 + i * 1024}")
    g.e(f"s_add_u32 s47, s{56+p}, {i * 8192}")
    g.vmem(f"buffer_load_dwordx4 v{2 + (i & 1)}, s[16:19], s47 offen lds", ("X", p))

def dma_w(g, gi, i):
    c, p = gi >> 3, gi & 7
    g.e(f"s_add_u32 m0, s51, {(gi % 8) * 8192 + i * 1024}")
    g.e(f"s_add_u32 s47, s{64+p}, s{42+c}")
    if i: g.e("s_add_u32 s47, s47, s45")
    g.vmem("buffer_load_dwordx4 v4, s[20:23], s47 offen lds", ("W", gi))

def k1_setup2(g):
    e = g.e
    e("v_and_b32 v40, 31, v1")
    e("v_lshrrev_b32 v41, 5, v1")
    e("v_lshrrev_b32 v42, 1, v40")
    e("v_and_b32 v42, 7, v42")
    e("s_lshl_b32 s47, s37, 6")
    e("s_lshl_b32 s48, s38, 5")
    e("s_add_u32 s47, s47, s48")
    e("v_add_u32 v43, s47, v40")
    e("v_lshlrev_b32 v44, 7, v43")
    for u in range(4):
        e(f"s_xor_b32 s48, s37, {u}")
        e("s_lshl_b32 s48, s48, 1")
        e("v_add_u32 v45, s48, v41")
        e("v_xor_b32 v45, v45, v42")
        e(f"v_lshl_add_u32 v{5+u}, v45, 4, v44")
        e(f"v_xor_b32 v{9+u}, 0x1000, v{5+u}")
    e("v_lshlrev_b32 v98, 2, v43")
    e("v_xor_b32 v99, 0x80, v98")
    e("v_and_b32 v45, 15, v1")
    e("v_lshrrev_b32 v46, 2, v45")
    e("v_and_b32 v47, 3, v45")
    e("v_bfe_u32 v48, v1, 4, 1")
    e("v_lshl_add_u32 v49, v41, 3, v46")
    e("v_lshlrev_b32 v49, 7, v49")
    e("v_lshrrev_b32 v50, 1, v47")
    e("v_lshl_add_u32 v50, v48, 1, v50")
    e("s_lshl_b32 s48, s38, 2")
    e("v_add_u32 v50, s48, v50")
    e("v_lshrrev_b32 v51, 1, v46")
    e("v_lshlrev_b32 v51, 2, v51")
    e("v_xor_b32 v50, v50, v51")
    e("v_lshl_add_u32 v49, v50, 4, v49")
    e("v_and_b32 v47, 1, v47")
    e("v_lshl_add_u32 v49, v47, 3, v49")
    e("s_lshl_b32 s48, s37, 11")
    e(f"s_add_u32 s49, s48, {WSL}")
    e("v_add_u32 v13, s49, v49")
    e(f"s_sub_u32 s49, {WSL}, s48")
    e("v_add_u32 v14, s49, v49")
    e("v_lshlrev_b32 v15, 4, v1")
    e("v_cmp_eq_u32 s[74:75], 1, v48")
    e("v_cmp_eq_u32 s[76:77], 1, v41")
    e("v_and_b32 v45, 1, v1")
    e("v_cmp_eq_u32 s[78:79], 1, v45")
    e("v_and_b32 v46, 2, v1")
    e("v_cmp_eq_u32 s[84:85], 2, v46")
    e("v_cmp_eq_u32 vcc, v45, v48")
    e("v_mov_b32 v46, 0x3f803f80")
    for r in range(4):
        e(f"v_cndmask_b32 v{MO+r}, 0, v46, vcc")
        e(f"v_mov_b32 v{ONES+r}, v46")
    for r in range(1, 4):
        e(f"v_mov_b32 v{AAUG[0]+r}, 0"); e(f"v_mov_b32 v{AAUG[1]+r}, 0"); e(f"v_mov_b32 v{BAUG+r}, 0")
    e("s_mov_b32 s80, 0x3fb8aa3b")
    e("s_mov_b32 s81, 0x3fb8aa3b")
    e("s_mov_b32 s82, 0x%08x" % f2u(1e-6))
    e("s_lshl_b32 s48, s38, 1")
    e("s_add_u32 s48, s48, s37")
    e("s_lshl_b32 s48, s48, 7")
    e(f"s_add_u32 s48, s48, {M_CS}")
    e("v_lshl_add_u32 v200, v40, 2, s48")
    e("v_xor_b32 v201, 0x80, v200")
    e(f"v_add_u32 v98, {M_RM}, v98")
    e(f"v_add_u32 v99, {M_RM}, v99")
    e("v_lshlrev_b32 v45, 4, v41")
    e("s_lshl_b32 s48, s47, 2")
    e(f"s_add_u32 s48, s48, {M_RR}")
    e("v_add_u32 v202, s48, v45")
    e("v_xor_b32 v203, 0x80, v202")
    e("s_lshl_b32 s48, s32, 2")
    e("s_lshl_b32 s49, s37, 1")
    e("s_add_u32 s48, s48, s49")
    e("s_add_u32 s86, s48, s38")
    e("s_xor_b32 s87, s86, 1")

def read_x(g, p):
    for u in range(4):
        for t in range(2):
            g.ds(f"ds_read_b128 {X(t, p, u)}, v{5 + 4*t + u} offset:{XS + (p % 4) * 16384}", ("X", p))

def read_w(g, step):
    gi, u = step >> 2, step & 3
    b = WF[step % 3]
    a = 13 + (u & 1)
    off = (gi % 8) * 8192 + u * 2048
    g.ds(f"ds_read_b64_tr_b16 v[{b}:{b+1}], v{a} offset:{off}", ("Wf", step))
    g.ds(f"ds_read_b64_tr_b16 v[{b+2}:{b+3}], v{a} offset:{off + 512}", ("Wf", step))

def bf16_round(g, dst, src):
    g.e(f"v_cvt_pk_bf16_f32 v{dst}, v{src}, v{src}")
    g.e(f"v_and_b32 v{dst}, 0xffff0000, v{dst}")

def epi_common(g, c, typ, corient):
    e = g.e
    e(f"v_cndmask_b32 v{T}, v{CS}, v{CS+1}, s[74:75]")
    g.ds(f"ds_write_b32 v200, v{T}", "csw")
    if c == 0:
        e(f"v_cndmask_b32 v{T+1}, v{S1}, v{S1+1}, s[74:75]")
        for r in range(4): e(f"v_add_f32 v{Q0+r}, v{Q0+r}, v{Q1+r}")
        e(f"v_cndmask_b32 v{T+2}, v{Q0}, v{Q0+1}, s[78:79]")
        e(f"v_cndmask_b32 v{T+3}, v{Q0+2}, v{Q0+3}, s[78:79]")
        e(f"v_cndmask_b32 v{T+2}, v{T+2}, v{T+3}, s[84:85]")
        e(f"v_mov_b32 v{T+3}, v{T+2}")
        e(f"v_permlane32_swap_b32 v{T+2}, v{T+3}")
        e(f"v_add_f32 v{T+2}, v{T+2}, v{T+3}")
        e(f"v_mul_f32 v{T+1}, 0x3b000000, v{T+1}")
        e(f"v_mul_f32 v{T+2}, 0x3b000000, v{T+2}")
        e(f"v_fma_f32 v{T+2}, -v{T+1}, v{T+1}, v{T+2}")
        e(f"v_max_f32 v{T+2}, 0, v{T+2}")
        bf16_round(g, T+2, T+2)
        e(f"v_add_f32 v{T+2}, 0x%08x, v{T+2}" % f2u(1e-5))
        bf16_round(g, T+2, T+2)
        e(f"v_sqrt_f32 v{T+2}, v{T+2}")
        bf16_round(g, T+2, T+2)
        e(f"v_rcp_f32 v{RL}, v{T+2}")
        e(f"v_cvt_pk_bf16_f32 v{AAUG[0]}, v{T+1}, v{T+1}")
        g.ds(f"ds_write_b32 v98, v{AAUG[0]}", "st")
        g.ds(f"ds_write_b32 v98, v{RL} offset:512", "st")
    g.wait(lg_all=True)
    e("s_barrier")
    g.ds(f"ds_read_b32 v{T+1}, v201", "csr")
    if c == 0:
        g.ds(f"ds_read_b32 v{AAUG[1]}, v99", "csr")
        g.ds(f"ds_read_b32 v{RL+1}, v99 offset:512", "csr")
        if typ == 0:
            for t in range(2):
                for q in range(4):
                    g.ds(f"ds_read_b128 {vr(RROW[t] + 4*q)}, v{202+t} offset:{32*q}", "rrow")
    g.wait(lg="csr")
    e(f"v_add_f32 v{T}, v{T}, v{T+1}")
    e(f"v_cvt_pk_bf16_f32 v{T+1}, -v{T}, -v{T}")
    e(f"v_and_b32 v{T+1}, 0xffff0000, v{T+1}")
    e(f"v_sub_f32 v{T+1}, -v{T}, v{T+1}")
    e(f"v_cvt_pk_bf16_f32 v{T+1}, -v{T}, v{T+1}")
    e(f"v_cndmask_b32 v{BAUG}, v{T+1}, 0, s[76:77]")
    for t in range(2):
        a, b = (vr(AAUG[t]), vr(BAUG)) if corient else (vr(BAUG), vr(AAUG[t]))
        e(f"v_mfma_f32_32x32x16_bf16 {vr(ACC[t],16)}, {a}, {b}, {vr(ACC[t],16)}")
    g.wait(lg_all=True)

def scale(g, t, corient):
    for q in range(8):
        a = ACC[t] + 2*q
        if corient:
            g.e(f"v_pk_mul_f32 v[{a}:{a+1}], v[{a}:{a+1}], v[{RROW[t]+2*q}:{RROW[t]+2*q+1}]")
        else:
            sel = "op_sel:[0,0] op_sel_hi:[1,0]" if t == 0 else "op_sel:[0,1] op_sel_hi:[1,1]"
            g.e(f"v_pk_mul_f32 v[{a}:{a+1}], v[{a}:{a+1}], v[{RL}:{RL+1}] {sel}")

def phi(g, t, dst):
    A0 = ACC[t]
    for q in range(8):
        g.e(f"v_pk_mul_f32 v[{T+2*q}:{T+2*q+1}], v[{A0+2*q}:{A0+2*q+1}], s[80:81]")
    for r in range(16):
        g.e(f"v_exp_f32_e64 v{T+r}, v{T+r} clamp")
        g.e(f"v_max_f32 v{A0+r}, s82, v{A0+r}")
    for q in range(8):
        g.e(f"v_pk_add_f32 v[{A0+2*q}:{A0+2*q+1}], v[{A0+2*q}:{A0+2*q+1}], v[{T+2*q}:{T+2*q+1}]")
    for q in range(8):
        g.e(f"v_cvt_pk_bf16_f32 v{dst+q}, v{A0+2*q}, v{A0+2*q+1}")

def epi(g, c, typ, sc):
    e = g.e
    corient = (typ == 0 and c < 2)
    if typ == 0 and c == 1:
        e("s_lshl_b32 s47, s34, 2")
        e("v_mov_b32 v204, 0")
        g.vmem("buffer_load_dword v205, v204, s[28:31], s47 offen sc1", "zf")
    epi_common(g, c, typ, corient)
    if typ == 1:
        for t in range(2):
            scale(g, t, False)
            d = VF + 8*t
            for q in range(8):
                e(f"v_cvt_pk_bf16_f32 v{d+q}, v{ACC[t]+2*q}, v{ACC[t]+2*q+1}")
            for q in range(8):
                e(f"v_pk_max_i16 v{d+q}, v{d+q}, 0")
            e(f"s_mul_i32 s47, s{86+t}, 86")
            e("s_lshr_b32 s48, s73, 5")
            e("s_add_u32 s47, s47, s48")
            e("s_lshl_b32 s48, s38, 1")
            e("s_add_u32 s47, s47, s48")
            e(f"s_add_u32 s47, s47, {4*c}")
            e("s_lshl_b32 s47, s47, 10")
            if c == 2:
                e("s_and_b32 s48, s34, 1")
                e("s_cmp_eq_u32 s34, 6")
                e("s_cselect_b32 s48, 1, s48")
                e("s_and_b32 s48, s48, s38")
                e("s_cmp_eq_u32 s48, 1")
                e(f"s_cselect_b32 s47, {OOB}, s47")
            g.vmem(f"buffer_store_dwordx4 {vr(d)}, v15, s[24:27], s47 offen {sc}", "st")
            g.vmem(f"buffer_store_dwordx4 {vr(d+4)}, v15, s[24:27], s47 offen offset:1024 {sc}", "st")
    elif c == 0:
        for t in range(2):
            scale(g, t, True)
            phi(g, t, PK + 8*t)
    elif c == 1:
        for t in range(2):
            scale(g, t, True)
            for q in range(8):
                e(f"v_cvt_pk_bf16_f32 v{VF+8*t+q}, v{ACC[t]+2*q}, v{ACC[t]+2*q+1}")
        for i in range(4):
            cc = "0" if i == 0 else vr(KVA, 16)
            cz = "0" if i == 0 else vr(ZA, 16)
            e(f"v_mfma_f32_32x32x16_bf16 {vr(KVA,16)}, {vr(PK+4*i)}, {vr(VF+4*i)}, {cc}")
            e(f"v_mfma_f32_32x32x16_bf16 {vr(ZA,16)}, {vr(PK+4*i)}, {vr(ONES)}, {cz}")
        e("s_mul_i32 s47, s37, 4352")
        e("s_mul_i32 s48, s38, 2176")
        e("s_add_u32 s47, s47, s48")
        e(f"s_add_u32 s47, s47, {M_KV}")
        e(f"v_bfe_u32 v{T+16}, v1, 4, 1")
        e(f"v_mul_u32_u24 v{T+16}, {KVH}, v{T+16}")
        e(f"v_add_u32 v{T+16}, s47, v{T+16}")
        e(f"v_lshrrev_b32 v{T+17}, 5, v1")
        e(f"v_lshl_add_u32 v{T+18}, v{T+17}, 5, v{T+16}")
        e(f"v_lshl_add_u32 v{T+16}, v{T+17}, 9, v{T+16}")
        e(f"v_and_b32 v{T+17}, 15, v1")
        e(f"v_lshl_add_u32 v{T+16}, v{T+17}, 5, v{T+16}")
        e(f"v_cmp_eq_u32 vcc, 0, v{T+17}")
        for r in range(8):
            e(f"v_cndmask_b32 v{T+r}, v{KVA+r}, v{KVA+8+r}, s[74:75]")
        for r in range(8):
            e(f"v_cndmask_b32 v{T+8+r}, v{ZA+r}, v{ZA+8+r}, s[74:75]")
        g.ds(f"ds_write_b128 v{T+16}, {vr(T)}", "kvw")
        g.ds(f"ds_write_b128 v{T+16}, {vr(T+4)} offset:16", "kvw")
        e("s_mov_b64 exec, vcc")
        g.ds(f"ds_write_b128 v{T+18}, {vr(T+8)} offset:1024", "kvw")
        g.ds(f"ds_write_b128 v{T+18}, {vr(T+12)} offset:1040", "kvw")
        e("s_mov_b64 exec, -1")
        g.wait(lg_all=True)
        e("s_barrier")
        e(f"v_lshlrev_b32 v{T+16}, 2, v0")
        e(f"v_add_u32 v{T+17}, {M_KV}, v{T+16}")
        for i in range(5):
            g.ds(f"ds_read_b32 v{T+i}, v{T+17} offset:{1024*i}", "kvr")
            g.ds(f"ds_read_b32 v{T+8+i}, v{T+17} offset:{4352+1024*i}", "kvr")
        g.wait(vm="zf")
        e("v_readfirstlane_b32 s48, v205")
        e("s_cmp_lg_u32 s48, 0")
        e("s_cbranch_scc1 K1_ZOK")
        e("s_mov_b32 s49, 0")
        e("s_lshl_b32 s47, s34, 2")
        g.label("K1_ZPOLL")
        e("s_sleep 1")
        e("buffer_load_dword v205, v204, s[28:31], s47 offen sc1")
        e("s_waitcnt vmcnt(0)")
        e("v_readfirstlane_b32 s48, v205")
        e("s_add_u32 s49, s49, 1")
        e("s_cmp_gt_u32 s49, 200000")
        e("s_cbranch_scc1 K1_ZOK")
        e("s_cmp_eq_u32 s48, 0")
        e("s_cbranch_scc1 K1_ZPOLL")
        g.label("K1_ZOK")
        g.wait(lg_all=True)
        for i in range(5):
            e(f"v_add_f32 v{T+i}, v{T+i}, v{T+8+i}")
        e("s_mul_i32 s47, s34, 4352")
        e(f"s_add_u32 s47, s47, {KVB}")
        for i in range(4):
            g.vmem(f"buffer_atomic_add_f32 v{T+i}, v{T+16}, s[24:27], s47 offen offset:{1024*i}", "at")
        e("s_add_u32 s47, s47, 4096")
        e("s_cmp_eq_u32 s36, 0")
        e(f"s_cselect_b32 s47, s47, {OOB}")
        g.vmem(f"buffer_atomic_add_f32 v{T+4}, v{T+16}, s[24:27], s47 offen", "at")
    else:
        for t in range(2):
            scale(g, t, False)
            d = VF + 8*t
            phi(g, t, d)
            e(f"s_lshl_b32 s47, s{86+t}, 5")
            e("s_lshl_b32 s48, s34, 2")
            e("s_add_u32 s47, s47, s48")
            e("s_lshl_b32 s48, s38, 1")
            e("s_add_u32 s47, s47, s48")
            e("s_lshl_b32 s47, s47, 10")
            e(f"s_add_u32 s47, s47, {QB}")
            g.vmem(f"buffer_store_dwordx4 {vr(d)}, v15, s[24:27], s47 offen {sc}", "st")
            g.vmem(f"buffer_store_dwordx4 {vr(d+4)}, v15, s[24:27], s47 offen offset:1024 {sc}", "st")

def k1_main(g, typ, sc):
    e = g.e
    pend = []
    def issue(k):
        for _ in range(k):
            if pend:
                f, a, b = pend.pop(0); f(g, a, b)
    nextw = 4
    for gi in range(24):
        c, p = gi >> 3, gi & 7
        corient = (typ == 0 and c < 2)
        for u in range(4):
            step = gi * 4 + u
            if u == 2 and gi < 23:
                g.wait(vm=[("W", gi + 1), ("X", gi + 1)])
                e("s_barrier")
                if gi == 0 and typ == 0:
                    e("s_cmp_eq_u32 s88, 1")
                    e("s_cbranch_scc0 K1_NOZF")
                    e("s_lshl_b32 s47, s34, 2")
                    e("v_mov_b32 v204, 0")
                    e("v_mov_b32 v205, 1")
                    e("s_mov_b64 exec, 1")
                    g.vmem("buffer_store_dword v205, v204, s[28:31], s47 offen sc1", counted=False)
                    e("s_mov_b64 exec, -1")
                    g.label("K1_NOZF")
                if gi + 4 < 8:
                    for i in range(4): pend.append((dma_x, gi + 4, i))
                lim = gi + 4 if gi < 4 else gi + 7
                while nextw <= min(lim, 23):
                    pend.append((dma_w, nextw, 0)); pend.append((dma_w, nextw, 1)); nextw += 1
                if gi + 1 < 8: read_x(g, gi + 1)
            if step + 2 < 96: read_w(g, step + 2)
            g.wait(lg=[("Wf", step), ("X", p) if c == 0 else ("Wf", step)])
            wf = vr(WF[step % 3])
            first = (p == 0 and u == 0)
            for t in range(2):
                cc = "0" if first else vr(ACC[t], 16)
                a, b = (X(t, p, u), wf) if corient else (wf, X(t, p, u))
                e(f"v_mfma_f32_32x32x16_bf16 {vr(ACC[t],16)}, {a}, {b}, {cc}")
                issue(1)
            if c == 0:
                x0 = 16 * p + 4 * u
                e(f"v_mfma_f32_16x16x32_bf16 {vr(S1)}, {vr(MO)}, {X(0,p,u)}, {'0' if first else vr(S1)}")
                e(f"v_mfma_f32_4x4x4_16b_bf16 {vr(Q0)}, a[{x0}:{x0+1}], a[{x0}:{x0+1}], {'0' if first else vr(Q0)}")
                e(f"v_mfma_f32_4x4x4_16b_bf16 {vr(Q1)}, a[{x0+2}:{x0+3}], a[{x0+2}:{x0+3}], {'0' if first else vr(Q1)}")
            if u % 2 == 0:
                e(f"v_mfma_f32_16x16x32_bf16 {vr(CS)}, {vr(MO)}, {wf}, {'0' if first else vr(CS)}")
        if p == 7:
            epi(g, c, typ, sc)
    assert not pend

def gen_k1(sc):
    g = Gen()
    e = g.e
    k1_prologue(g)
    e("s_or_b32 s47, s32, s33")
    e("s_or_b32 s47, s47, s36")
    e("s_cmp_eq_u32 s47, 0")
    e("s_cselect_b32 s88, 1, 0")
    e("s_cbranch_scc0 K1_NOZ")
    e("v_lshlrev_b32 v15, 4, v1")
    for r in range(4): e(f"v_mov_b32 v{16+r}, 0")
    e("s_mul_i32 s47, s34, 4352")
    e(f"s_add_u32 s47, s47, {KVB}")
    for i in range(4):
        g.vmem(f"buffer_store_dwordx4 v[16:19], v15, s[24:27], s47 offen offset:{1024*i} sc1", counted=False)
    e("s_add_u32 s47, s47, 4096")
    e("s_mov_b64 exec, 0xffff")
    g.vmem("buffer_store_dwordx4 v[16:19], v15, s[24:27], s47 offen sc1", counted=False)
    e("s_mov_b64 exec, -1")
    e("s_nop 1")
    g.label("K1_NOZ")
    for p in range(4):
        for i in range(4): dma_x(g, p, i)
        dma_w(g, p, 0); dma_w(g, p, 1)
    k1_setup2(g)
    g.wait(vm=[("W", 0), ("X", 0)])
    e("s_barrier")
    read_x(g, 0)
    read_w(g, 0); read_w(g, 1)
    e("s_cmp_eq_u32 s33, 0")
    e("s_cbranch_scc0 K1_TYPEB")
    st = (list(g.vm), list(g.lg))
    k1_main(g, 0, sc)
    e("s_endpgm")
    g.label("K1_TYPEB")
    g.vm, g.lg = list(st[0]), list(st[1]); g.hist = []
    k1_main(g, 1, sc)
    g.label("K1_END")
    e("s_endpgm")
    return g

def gen_k2(sc):
    g = Gen()
    e = g.e
    e("s_cmp_ge_u32 s2, 256")
    e("s_cbranch_scc1 K2_END")
    e("s_load_dwordx2 s[4:5], s[0:1], 0")
    e("s_load_dwordx2 s[6:7], s[0:1], 16")
    e("s_load_dwordx4 s[8:11], s[0:1], 40")
    e("s_load_dwordx2 s[12:13], s[0:1], 64")
    e("s_and_b32 s47, s2, 7")
    e("s_lshr_b32 s48, s2, 3")
    e("s_lshl_b32 s36, s47, 2")
    e("s_lshr_b32 s49, s48, 3")
    e("s_add_u32 s36, s36, s49")
    e("s_and_b32 s37, s48, 7")
    e("v_and_b32 v1, 63, v0")
    e("v_lshrrev_b32 v2, 6, v0")
    e("v_readfirstlane_b32 s38, v2")
    e("v_lshrrev_b32 v5, 3, v1")
    e("v_and_b32 v6, 7, v1")
    e("v_bfe_u32 v7, v5, 1, 1")
    e("v_lshlrev_b32 v7, 2, v7")
    e("v_xor_b32 v6, v6, v7")
    e("v_lshlrev_b32 v6, 4, v6")
    e("v_lshl_add_u32 v2, v5, 10, v6")
    e("v_lshlrev_b32 v3, 4, v1")
    e("s_mul_i32 s40, s38, 40960")
    e("s_lshl_b32 s47, s37, 7")
    e("s_mul_i32 s41, s38, %d" % (22 * 16 * 1024))
    e("s_add_u32 s41, s41, s47")
    e("s_lshl_b32 s42, s38, 17")
    e("s_add_u32 s42, s42, s47")
    e("s_mul_i32 s43, s36, 172")
    e("s_mul_i32 s47, s38, 22")
    e("s_add_u32 s43, s43, s47")
    e("s_lshl_b32 s43, s43, 10")
    e("s_cmp_eq_u32 s38, 3")
    e(f"s_cselect_b32 s44, {OOB}, s43")
    e("s_lshl_b32 s45, s36, 6")
    e("s_lshl_b32 s47, s38, 3")
    e("s_add_u32 s45, s45, s47")
    e("s_lshl_b32 s45, s45, 10")
    e(f"s_add_u32 s45, s45, {QB}")
    e("s_mul_i32 s46, s38, %d" % (8 * KVH))
    e(f"s_add_u32 s46, s46, {KVB}")
    e("v_lshrrev_b32 v8, 5, v1")
    e("v_and_b32 v9, 15, v1")
    e("v_lshlrev_b32 v10, 9, v8")
    e("v_lshl_add_u32 v10, v9, 5, v10")
    e("v_lshlrev_b32 v11, 5, v8")
    e("v_add_u32 v11, 1024, v11")
    e("v_bfe_u32 v12, v1, 4, 1")
    e("v_cmp_eq_u32 vcc, 1, v12")
    e("v_cndmask_b32 v4, v10, v11, vcc")
    e("v_lshrrev_b32 v10, 2, v9")
    e("v_and_b32 v11, 3, v9")
    e("v_lshl_add_u32 v13, v8, 2, v10")
    e("v_lshlrev_b32 v13, 7, v13")
    e("v_lshrrev_b32 v14, 1, v11")
    e("v_lshl_add_u32 v14, v12, 1, v14")
    e("v_lshrrev_b32 v15, 1, v10")
    e("v_lshlrev_b32 v15, 2, v15")
    e("v_xor_b32 v14, v14, v15")
    e("v_lshl_add_u32 v13, v14, 4, v13")
    e("v_and_b32 v11, 1, v11")
    e("v_lshl_add_u32 v13, v11, 3, v13")
    e("v_add_u32 v5, s40, v13")
    e("v_xor_b32 v6, 64, v5")
    e("s_waitcnt lgkmcnt(0)")
    srd(g, 16, 4, 2048 * 1024)
    srd(g, 20, 6, 512 * 1024)
    srd(g, 24, 8, 1376 * 1024)
    srd(g, 28, 10, 2048 * 1024)
    srd(g, 32, 12, WS_BYTES)
    e("s_mov_b32 s50, 0x%08x" % f2u(1e-6))
    NS = 30
    def HF(i): return ar(64 + 4 * i)
    def PQ(i): return vr(64 + 4 * i)
    def KVR(h): return 128 + 8 * h
    BF = [16, 24, 32]
    ND = [192, 208]
    OF = [224, 228]
    XR = 232
    def loads(s):
        L = []
        slot = s % 20
        for i in range(2):
            def f(i=i):
                e(f"s_add_u32 m0, s40, {slot * 2048 + i * 1024}")
                if s < 22:
                    e(f"s_add_u32 s47, s41, {s * 16384 + i * 8192}")
                    g.vmem("buffer_load_dwordx4 v2, s[24:27], s47 offen lds", ("B", s))
                else:
                    e(f"s_add_u32 s47, s42, {(s - 22) * 16384 + i * 8192}")
                    g.vmem("buffer_load_dwordx4 v2, s[20:23], s47 offen lds", ("B", s))
            L.append(f)
        for t in range(2):
            def f(t=t):
                if s < 22:
                    e(f"s_add_u32 s47, s{44 if s >= 20 else 43}, {s * 1024 + t * 86 * 1024}")
                    g.vmem(f"buffer_load_dwordx4 {HF(2*s+t)}, v3, s[32:35], s47 offen {sc}", ("A", s))
                else:
                    h = s - 22
                    e(f"s_add_u32 s47, s45, {h * 1024 + t * 32768}")
                    g.vmem(f"buffer_load_dwordx4 {PQ(2*h+t)}, v3, s[32:35], s47 offen {sc}", ("A", s))
            L.append(f)
        if s >= 22:
            h = s - 22
            for t in range(2):
                def f(t=t):
                    e(f"s_add_u32 s47, s46, {h * KVH}")
                    g.vmem(f"buffer_load_dwordx4 {vr(KVR(h) + 4*t)}, v4, s[32:35], s47 offen offset:{16*t} {sc}", ("A", s))
                L.append(f)
        return L
    def read_b(s):
        slot = s % 20
        b = BF[s % 3]
        for ct in range(2):
            for k in range(2):
                g.ds(f"ds_read_b64_tr_b16 v[{b+4*ct+2*k}:{b+4*ct+2*k+1}], v{5+ct} offset:{slot*2048 + k*1024}", ("Bf", s))
    LA = 8
    e("v_lshrrev_b32 v7, 3, v0")
    e("v_and_b32 v8, 7, v0")
    e("v_lshlrev_b32 v9, 4, v8")
    e("v_lshl_add_u32 v9, v7, 10, v9")
    e("s_lshl_b32 s51, s36, 16")
    e("s_lshl_b32 s47, s37, 7")
    e("s_add_u32 s51, s51, s47")
    e("s_add_u32 s52, s51, 32768")
    for s in range(LA):
        for f in loads(s): f()
    g.vmem(f"buffer_load_dwordx4 {vr(XR)}, v9, s[16:19], s51 offen", "xr")
    g.vmem(f"buffer_load_dwordx4 {vr(XR+4)}, v9, s[16:19], s52 offen", "xr")
    g.wait(vm=[("B", 0)])
    read_b(0)
    for s in range(NS):
        pend = loads(s + LA) if s + LA < NS else []
        if s + 1 < NS:
            g.wait(vm=[("B", s + 1)])
            read_b(s + 1)
        g.wait(vm=[("A", s)])
        if s >= 22:
            h = s - 22
            k = KVR(h)
            for q in range(4):
                e(f"v_cvt_pk_bf16_f32 v{k+q}, v{k+2*q}, v{k+2*q+1}")
            for t in range(2):
                e(f"v_mfma_f32_32x32x16_bf16 {vr(ND[t],16)}, {vr(k)}, {PQ(2*h+t)}, 0")
            for t in range(2):
                d = ND[t]
                e(f"v_add_f32 v{d+8}, s50, v{d+8}")
                e(f"v_rcp_f32 v{d+8}, v{d+8}")
                for r in range(8): e(f"v_mul_f32 v{d+r}, v{d+r}, v{d+8}")
                for q in range(4): e(f"v_cvt_pk_bf16_f32 v{OF[t]+q}, v{d+2*q}, v{d+2*q+1}")
        g.wait(lg=[("Bf", s)])
        b = BF[s % 3]
        for ct in range(2):
            for t in range(2):
                acc = ar(32 * ct + 16 * t, 16)
                act = HF(2*s+t) if s < 22 else vr(OF[t])
                e(f"v_mfma_f32_32x32x16_bf16 {acc}, {vr(b+4*ct)}, {act}, {'0' if s == 0 else acc}")
                for _ in range(2):
                    if pend: pend.pop(0)()
        assert not pend
    e("v_and_b32 v10, 31, v1")
    e("v_mul_u32_u24 v10, 272, v10")
    e("v_lshrrev_b32 v11, 5, v1")
    e("v_lshl_add_u32 v10, v11, 4, v10")
    e("v_add_u32 v10, s40, v10")
    for ct in range(2):
        for t in range(2):
            for q in range(4):
                a = 32 * ct + 16 * t + 4 * q
                g.ds(f"ds_write_b128 v10, {ar(a)} offset:{t * 32 * 272 + ct * 128 + q * 32}", "rw")
    g.wait(lg_all=True)
    e("s_barrier")
    e("v_mul_u32_u24 v10, 272, v7")
    e("v_lshl_add_u32 v10, v8, 5, v10")
    e("v_add_u32 v11, %d, v10" % (2 * 40960))
    for t in range(2):
        for w in range(4):
            for k in range(2):
                d = 64 + t * 32 + w * 8 + k * 4
                g.ds(f"ds_read_b128 {vr(d)}, v{10 + (w >> 1)} offset:{(w & 1) * 40960 + t * 32 * 272 + k * 16}", ("rr", t))
    g.wait(vm="xr")
    for t in range(2):
        g.wait(lg=[("rr", t)])
        d = 64 + t * 32
        for w in range(1, 4):
            for q in range(4):
                e(f"v_pk_add_f32 v[{d+2*q}:{d+2*q+1}], v[{d+2*q}:{d+2*q+1}], v[{d+8*w+2*q}:{d+8*w+2*q+1}]")
        for q in range(4):
            e(f"v_lshlrev_b32 v{d+8+2*q}, 16, v{XR+4*t+q}")
            e(f"v_and_b32 v{d+8+2*q+1}, 0xffff0000, v{XR+4*t+q}")
        for q in range(4):
            e(f"v_pk_add_f32 v[{d+2*q}:{d+2*q+1}], v[{d+2*q}:{d+2*q+1}], v[{d+8+2*q}:{d+8+2*q+1}]")
        for q in range(4):
            e(f"v_cvt_pk_bf16_f32 v{d+16+q}, v{d+2*q}, v{d+2*q+1}")
        g.vmem(f"buffer_store_dwordx4 {vr(d+16)}, v9, s[28:31], s{51+t} offen", "o")
    g.label("K2_END")
    e("s_endpgm")
    return g

def kd(name, vgpr, sgpr, acc):
    return f""".amdhsa_kernel {name}
  .amdhsa_next_free_vgpr {vgpr}
  .amdhsa_next_free_sgpr {sgpr}
  .amdhsa_accum_offset {acc}
  .amdhsa_group_segment_fixed_size 0
  .amdhsa_kernarg_size 72
  .amdhsa_user_sgpr_count 2
  .amdhsa_user_sgpr_kernarg_segment_ptr 1
  .amdhsa_system_sgpr_workgroup_id_x 1
.end_amdhsa_kernel
"""

def main(out):
    hdr = open("parallel_sum__linear_attn_block__dense_activation_relu__prompt.s.ref").read().split("; Override")[0]
    g1 = gen_k1("sc1"); g2 = gen_k2("")
    s = hdr
    s += "; @launch kernel=pa_kernel grid=(256,1,1) block=(256,1,1) lds=163840\n"
    s += "; @launch kernel=pb_kernel grid=(256,1,1) block=(256,1,1) lds=163840\n"
    s += '.amdgcn_target "amdgcn-amd-amdhsa--gfx950"\n.text\n'
    for name, g in (("pa_kernel", g1), ("pb_kernel", g2)):
        s += f".globl {name}\n.p2align 8\n.type {name},@function\n{name}:\n" + g.text()
    s += '.section .rodata,"a"\n.p2align 6\n' + kd("pa_kernel", 512, 96, 256) + ".p2align 6\n" + kd("pb_kernel", 512, 96, 256)
    open(out, "w").write(s)
    print("nops", g1.nops, g2.nops, "lines", len(g1.out), len(g2.out))

if __name__ == "__main__":
    main(sys.argv[1] if len(sys.argv) > 1 else "v1.s")
```

```python
import sys, struct
sys.path.insert(0, "dev")
from asmgen import Gen

def f2u(x): return struct.unpack("<I", struct.pack("<f", x))[0]

HB, QB, KVB = 0, 0x600000, 0x800000
KVH = 1088
WS_BYTES = 268435456
OOB = 0x40000000
HSTART = [0, 192, 352, 544, 704, 896, 1056, 1216]
HWID = [192, 160, 192, 160, 192, 160, 160, 160]
XS, WSL, MISC = 0, 65536, 131072
M_CS, M_RM, M_RR, M_KV = MISC, MISC + 512, MISC + 1024, MISC + 2048

def srd(g, d, lo, nbytes):
    g.e(f"s_mov_b32 s{d}, s{lo}")
    g.e(f"s_and_b32 s{d+1}, s{lo+1}, 0xffff")
    g.e(f"s_mov_b32 s{d+2}, {nbytes}")
    g.e(f"s_mov_b32 s{d+3}, 0x00020000")

STAMP = False
STB = 0x8000000
class Stamps:
    def __init__(self, base): self.n = 0; self.base = base
    def mark(self, g):
        if not STAMP: return
        g.e("s_memrealtime s[%d:%d]" % (self.base, self.base + 1))
        g.e("s_waitcnt lgkmcnt(0)")
        g.lg = []
        g.e("v_writelane_b32 v255, s%d, %d" % (self.base, self.n))
        self.n += 1
    def flush(self, g, srdreg, kidx, wavesgpr):
        if not STAMP: return
        g.e("s_lshl_b32 s47, s2, 2")
        g.e("s_add_u32 s47, s47, s%d" % wavesgpr)
        g.e("s_lshl_b32 s47, s47, 8")
        g.e("s_add_u32 s47, s47, %d" % (STB + kidx * 0x100000))
        g.e("v_lshlrev_b32 v254, 2, v1")
        g.e("buffer_store_dword v255, v254, s[%d:%d], s47 offen" % (srdreg, srdreg + 3))
def vr(a, n=4): return f"v[{a}:{a+n-1}]"
def ar(a, n=4): return f"a[{a}:{a+n-1}]"

def X(t, p, u): return ar(128 * t + 16 * p + 4 * u)
ACC = [64, 80]
WF = [40, 44, 48]
MO, ONES, S1, Q0, Q1, CS = 16, 20, 24, 28, 32, 36
AAUG, BAUG = [52, 56], 60
RL = 96
RROW = [100, 116]
PK, VF = 132, 148
T = 164
KVA, ZA = 208, 224

def k1_prologue(g):
    e = g.e
    e("s_cmp_ge_u32 s2, 256")
    e("s_cbranch_scc1 K1_END")
    g.st.mark(g)
    e("s_load_dwordx4 s[4:7], s[0:1], 0")
    e("s_load_dwordx2 s[8:9], s[0:1], 32")
    e("s_load_dwordx4 s[12:15], s[0:1], 56")
    e("s_and_b32 s47, s2, 7")
    e("s_lshr_b32 s48, s2, 3")
    e("s_and_b32 s32, s47, 1")
    e("s_lshl_b32 s32, s32, 3")
    e("s_lshr_b32 s49, s48, 2")
    e("s_add_u32 s32, s32, s49")
    e("s_and_b32 s49, s48, 3")
    e("s_and_b32 s33, s49, 1")
    e("s_lshr_b32 s34, s47, 1")
    e("s_lshl_b32 s34, s34, 1")
    e("s_lshr_b32 s50, s49, 1")
    e("s_add_u32 s34, s34, s50")
    e("s_add_u32 s35, s32, s49")
    e("v_and_b32 v1, 63, v0")
    e("v_lshrrev_b32 v2, 6, v0")
    e("v_readfirstlane_b32 s36, v2")
    e("s_lshr_b32 s37, s36, 1")
    e("s_and_b32 s38, s36, 1")
    e("s_mov_b32 s39, 2752")
    e("s_cmp_eq_u32 s33, 0")
    e("s_cselect_b32 s39, 3072, s39")
    e("s_lshr_b32 s47, s34, 1")
    e("s_mul_i32 s47, s47, 704")
    e("s_and_b32 s48, s34, 1")
    e("s_mul_i32 s48, s48, 384")
    e("s_add_u32 s47, s47, s48")
    e("s_cmp_eq_u32 s34, 7")
    e("s_cselect_b32 s47, 2432, s47")
    e("s_lshl_b32 s48, s34, 7")
    e("s_add_u32 s42, s48, 1024")
    e("s_add_u32 s43, s48, 2048")
    e("s_mov_b32 s44, s48")
    e("s_add_u32 s49, s47, 128")
    e("s_add_u32 s50, s47, 256")
    e("s_cmp_eq_u32 s33, 0")
    e("s_cselect_b32 s42, s42, s47")
    e("s_cselect_b32 s43, s43, s49")
    e("s_cselect_b32 s44, s44, s50")
    e("s_mov_b32 s73, s47")
    e("s_lshl_b32 s45, s39, 3")
    e("s_lshl_b32 s46, s39, 6")
    e("s_lshl_b32 s40, s32, 7")
    e("s_lshl_b32 s47, s36, 5")
    e("s_add_u32 s40, s40, s47")
    e("s_lshl_b32 s40, s40, 10")
    e("s_lshl_b32 s41, s36, 4")
    e("s_mul_i32 s41, s41, s39")
    for p in range(8):
        e(f"s_add_u32 s47, s35, {p}")
        e("s_and_b32 s47, s47, 7")
        e(f"s_lshl_b32 s{56+p}, s47, 7")
        e(f"s_add_u32 s{56+p}, s{56+p}, s40")
        e(f"s_mul_i32 s{64+p}, s47, s46")
        e(f"s_add_u32 s{64+p}, s{64+p}, s41")
    e("s_lshl_b32 s50, s36, 12")
    e("s_lshl_b32 s51, s36, 11")
    e(f"s_add_u32 s51, s51, {WSL}")
    e("v_lshrrev_b32 v5, 3, v1")
    e("v_and_b32 v6, 7, v1")
    e("v_lshrrev_b32 v7, 1, v5")
    e("v_xor_b32 v8, v6, v7")
    e("v_lshlrev_b32 v8, 4, v8")
    e("v_lshl_add_u32 v2, v5, 10, v8")
    e("v_xor_b32 v3, 64, v2")
    e("v_and_b32 v7, 1, v7")
    e("v_lshlrev_b32 v7, 2, v7")
    e("v_xor_b32 v8, v6, v7")
    e("v_lshlrev_b32 v8, 4, v8")
    e("v_mul_lo_u32 v4, v5, s39")
    e("v_add_u32 v4, v4, v8")
    e("s_waitcnt lgkmcnt(0)")
    srd(g, 16, 4, 2048 * 1024)
    e("s_mov_b32 s22, %d" % (512 * 2752))
    e("s_cmp_eq_u32 s33, 0")
    e("s_cselect_b32 s20, s6, s8")
    e("s_cselect_b32 s21, s7, s9")
    e("s_cselect_b32 s22, %d, s22" % (512 * 3072))
    e("s_and_b32 s21, s21, 0xffff")
    e("s_mov_b32 s23, 0x00020000")
    srd(g, 24, 14, WS_BYTES)
    srd(g, 28, 12, 256)

def dma_x(g, p, i):
    g.e(f"s_add_u32 m0, s50, {XS + (p % 4) * 16384 + i * 1024}")
    g.e(f"s_add_u32 s47, s{56+p}, {i * 8192}")
    g.vmem(f"buffer_load_dwordx4 v{2 + (i & 1)}, s[16:19], s47 offen lds", ("X", p))

def dma_w(g, gi, i):
    c, p = gi >> 3, gi & 7
    g.e(f"s_add_u32 m0, s51, {(gi % 8) * 8192 + i * 1024}")
    g.e(f"s_add_u32 s47, s{64+p}, s{42+c}")
    if i: g.e("s_add_u32 s47, s47, s45")
    g.vmem("buffer_load_dwordx4 v4, s[20:23], s47 offen lds", ("W", gi))

def k1_setup2(g):
    e = g.e
    e("v_and_b32 v40, 31, v1")
    e("v_lshrrev_b32 v41, 5, v1")
    e("v_lshrrev_b32 v42, 1, v40")
    e("v_and_b32 v42, 7, v42")
    e("s_lshl_b32 s47, s37, 6")
    e("s_lshl_b32 s48, s38, 5")
    e("s_add_u32 s47, s47, s48")
    e("v_add_u32 v43, s47, v40")
    e("v_lshlrev_b32 v44, 7, v43")
    for u in range(4):
        e(f"s_xor_b32 s48, s37, {u}")
        e("s_lshl_b32 s48, s48, 1")
        e("v_add_u32 v45, s48, v41")
        e("v_xor_b32 v45, v45, v42")
        e(f"v_lshl_add_u32 v{5+u}, v45, 4, v44")
        e(f"v_xor_b32 v{9+u}, 0x1000, v{5+u}")
    e("v_lshlrev_b32 v98, 2, v43")
    e("v_xor_b32 v99, 0x80, v98")
    e("v_and_b32 v45, 15, v1")
    e("v_lshrrev_b32 v46, 2, v45")
    e("v_and_b32 v47, 3, v45")
    e("v_bfe_u32 v48, v1, 4, 1")
    e("v_lshl_add_u32 v49, v41, 3, v46")
    e("v_lshlrev_b32 v49, 7, v49")
    e("v_lshrrev_b32 v50, 1, v47")
    e("v_lshl_add_u32 v50, v48, 1, v50")
    e("s_lshl_b32 s48, s38, 2")
    e("v_add_u32 v50, s48, v50")
    e("v_lshrrev_b32 v51, 1, v46")
    e("v_lshlrev_b32 v51, 2, v51")
    e("v_xor_b32 v50, v50, v51")
    e("v_lshl_add_u32 v49, v50, 4, v49")
    e("v_and_b32 v47, 1, v47")
    e("v_lshl_add_u32 v49, v47, 3, v49")
    e("s_lshl_b32 s48, s37, 11")
    e(f"s_add_u32 s49, s48, {WSL}")
    e("v_add_u32 v13, s49, v49")
    e(f"s_sub_u32 s49, {WSL}, s48")
    e("v_add_u32 v14, s49, v49")
    e("v_lshlrev_b32 v15, 4, v1")
    e("v_cmp_eq_u32 s[74:75], 1, v48")
    e("v_cmp_eq_u32 s[76:77], 1, v41")
    e("v_and_b32 v45, 1, v1")
    e("v_cmp_eq_u32 s[78:79], 1, v45")
    e("v_and_b32 v46, 2, v1")
    e("v_cmp_eq_u32 s[84:85], 2, v46")
    e("v_cmp_eq_u32 vcc, v45, v48")
    e("v_mov_b32 v46, 0x3f803f80")
    for r in range(4):
        e(f"v_cndmask_b32 v{MO+r}, 0, v46, vcc")
        e(f"v_mov_b32 v{ONES+r}, v46")
    for r in range(1, 4):
        e(f"v_mov_b32 v{AAUG[0]+r}, 0"); e(f"v_mov_b32 v{AAUG[1]+r}, 0"); e(f"v_mov_b32 v{BAUG+r}, 0")
    e("s_mov_b32 s80, 0x3fb8aa3b")
    e("s_mov_b32 s81, 0x3fb8aa3b")
    e("s_mov_b32 s82, 0x%08x" % f2u(1e-6))
    e("s_lshl_b32 s48, s38, 1")
    e("s_add_u32 s48, s48, s37")
    e("s_lshl_b32 s48, s48, 7")
    e(f"s_add_u32 s48, s48, {M_CS}")
    e("v_lshl_add_u32 v200, v40, 2, s48")
    e("v_xor_b32 v201, 0x80, v200")
    e(f"v_add_u32 v98, {M_RM}, v98")
    e(f"v_add_u32 v99, {M_RM}, v99")
    e("v_lshlrev_b32 v45, 4, v41")
    e("s_lshl_b32 s48, s47, 2")
    e(f"s_add_u32 s48, s48, {M_RR}")
    e("v_add_u32 v202, s48, v45")
    e("v_xor_b32 v203, 0x80, v202")
    e("s_lshl_b32 s48, s32, 2")
    e("s_lshl_b32 s49, s37, 1")
    e("s_add_u32 s48, s48, s49")
    e("s_add_u32 s86, s48, s38")
    e("s_xor_b32 s87, s86, 1")

def read_x(g, p):
    for u in range(4):
        for t in range(2):
            g.ds(f"ds_read_b128 {X(t, p, u)}, v{5 + 4*t + u} offset:{XS + (p % 4) * 16384}", ("X", p))

def read_w(g, step):
    gi, u = step >> 2, step & 3
    b = WF[step % 3]
    a = 13 + (u & 1)
    off = (gi % 8) * 8192 + u * 2048
    g.ds(f"ds_read_b64_tr_b16 v[{b}:{b+1}], v{a} offset:{off}", ("Wf", step))
    g.ds(f"ds_read_b64_tr_b16 v[{b+2}:{b+3}], v{a} offset:{off + 512}", ("Wf", step))

def bf16_round(g, dst, src):
    g.e(f"v_cvt_pk_bf16_f32 v{dst}, v{src}, v{src}")
    g.e(f"v_and_b32 v{dst}, 0xffff0000, v{dst}")

def epi_common(g, c, typ, corient):
    e = g.e
    e(f"v_cndmask_b32 v{T}, v{CS}, v{CS+1}, s[74:75]")
    g.ds(f"ds_write_b32 v200, v{T}", "csw")
    if c == 0:
        e(f"v_cndmask_b32 v{T+1}, v{S1}, v{S1+1}, s[74:75]")
        for r in range(4): e(f"v_add_f32 v{Q0+r}, v{Q0+r}, v{Q1+r}")
        e(f"v_cndmask_b32 v{T+2}, v{Q0}, v{Q0+1}, s[78:79]")
        e(f"v_cndmask_b32 v{T+3}, v{Q0+2}, v{Q0+3}, s[78:79]")
        e(f"v_cndmask_b32 v{T+2}, v{T+2}, v{T+3}, s[84:85]")
        e(f"v_mov_b32 v{T+3}, v{T+2}")
        e(f"v_permlane32_swap_b32 v{T+2}, v{T+3}")
        e(f"v_add_f32 v{T+2}, v{T+2}, v{T+3}")
        e(f"v_mul_f32 v{T+1}, 0x3b000000, v{T+1}")
        e(f"v_mul_f32 v{T+2}, 0x3b000000, v{T+2}")
        e(f"v_fma_f32 v{T+2}, -v{T+1}, v{T+1}, v{T+2}")
        e(f"v_max_f32 v{T+2}, 0, v{T+2}")
        bf16_round(g, T+2, T+2)
        e(f"v_add_f32 v{T+2}, 0x%08x, v{T+2}" % f2u(1e-5))
        bf16_round(g, T+2, T+2)
        e(f"v_sqrt_f32 v{T+2}, v{T+2}")
        bf16_round(g, T+2, T+2)
        e(f"v_rcp_f32 v{RL}, v{T+2}")
        e(f"v_cvt_pk_bf16_f32 v{AAUG[0]}, v{T+1}, v{T+1}")
        g.ds(f"ds_write_b32 v98, v{AAUG[0]}", "st")
        g.ds(f"ds_write_b32 v98, v{RL} offset:512", "st")
    g.wait(lg_all=True)
    e("s_barrier")
    g.ds(f"ds_read_b32 v{T+1}, v201", "csr")
    if c == 0:
        g.ds(f"ds_read_b32 v{AAUG[1]}, v99", "csr")
        g.ds(f"ds_read_b32 v{RL+1}, v99 offset:512", "csr")
        if typ == 0:
            for t in range(2):
                for q in range(4):
                    g.ds(f"ds_read_b128 {vr(RROW[t] + 4*q)}, v{202+t} offset:{32*q}", "rrow")
    g.wait(lg="csr")
    e(f"v_add_f32 v{T}, v{T}, v{T+1}")
    e(f"v_cvt_pk_bf16_f32 v{T+1}, -v{T}, -v{T}")
    e(f"v_and_b32 v{T+1}, 0xffff0000, v{T+1}")
    e(f"v_sub_f32 v{T+1}, -v{T}, v{T+1}")
    e(f"v_cvt_pk_bf16_f32 v{T+1}, -v{T}, v{T+1}")
    e(f"v_cndmask_b32 v{BAUG}, v{T+1}, 0, s[76:77]")
    for t in range(2):
        a, b = (vr(AAUG[t]), vr(BAUG)) if corient else (vr(BAUG), vr(AAUG[t]))
        e(f"v_mfma_f32_32x32x16_bf16 {vr(ACC[t],16)}, {a}, {b}, {vr(ACC[t],16)}")
    g.wait(lg_all=True)

def scale(g, t, corient):
    for q in range(8):
        a = ACC[t] + 2*q
        if corient:
            g.e(f"v_pk_mul_f32 v[{a}:{a+1}], v[{a}:{a+1}], v[{RROW[t]+2*q}:{RROW[t]+2*q+1}]")
        else:
            sel = "op_sel:[0,0] op_sel_hi:[1,0]" if t == 0 else "op_sel:[0,1] op_sel_hi:[1,1]"
            g.e(f"v_pk_mul_f32 v[{a}:{a+1}], v[{a}:{a+1}], v[{RL}:{RL+1}] {sel}")

def phi(g, t, dst):
    A0 = ACC[t]
    for q in range(8):
        g.e(f"v_pk_mul_f32 v[{T+2*q}:{T+2*q+1}], v[{A0+2*q}:{A0+2*q+1}], s[80:81]")
    for r in range(16):
        g.e(f"v_exp_f32_e64 v{T+r}, v{T+r} clamp")
        g.e(f"v_max_f32 v{A0+r}, s82, v{A0+r}")
    for q in range(8):
        g.e(f"v_pk_add_f32 v[{A0+2*q}:{A0+2*q+1}], v[{A0+2*q}:{A0+2*q+1}], v[{T+2*q}:{T+2*q+1}]")
    for q in range(8):
        g.e(f"v_cvt_pk_bf16_f32 v{dst+q}, v{A0+2*q}, v{A0+2*q+1}")

def epi(g, c, typ, sc):
    e = g.e
    corient = (typ == 0 and c < 2)
    if typ == 0 and c == 1:
        e("s_lshl_b32 s47, s34, 2")
        e("v_mov_b32 v204, 0")
        g.vmem("buffer_load_dword v205, v204, s[28:31], s47 offen sc1", "zf")
    epi_common(g, c, typ, corient)
    if typ == 1:
        for t in range(2):
            scale(g, t, False)
            d = VF + 8*t
            for q in range(8):
                e(f"v_cvt_pk_bf16_f32 v{d+q}, v{ACC[t]+2*q}, v{ACC[t]+2*q+1}")
            for q in range(8):
                e(f"v_pk_max_i16 v{d+q}, v{d+q}, 0")
            e(f"s_mul_i32 s47, s{86+t}, 86")
            e("s_lshr_b32 s48, s73, 5")
            e("s_add_u32 s47, s47, s48")
            e("s_lshl_b32 s48, s38, 1")
            e("s_add_u32 s47, s47, s48")
            e(f"s_add_u32 s47, s47, {4*c}")
            e("s_lshl_b32 s47, s47, 10")
            if c == 2:
                e("s_and_b32 s48, s34, 1")
                e("s_cmp_eq_u32 s34, 6")
                e("s_cselect_b32 s48, 1, s48")
                e("s_and_b32 s48, s48, s38")
                e("s_cmp_eq_u32 s48, 1")
                e(f"s_cselect_b32 s47, {OOB}, s47")
            g.vmem(f"buffer_store_dwordx4 {vr(d)}, v15, s[24:27], s47 offen {sc}", "st")
            g.vmem(f"buffer_store_dwordx4 {vr(d+4)}, v15, s[24:27], s47 offen offset:1024 {sc}", "st")
    elif c == 0:
        for t in range(2):
            scale(g, t, True)
            phi(g, t, PK + 8*t)
    elif c == 1:
        for t in range(2):
            scale(g, t, True)
            for q in range(8):
                e(f"v_cvt_pk_bf16_f32 v{VF+8*t+q}, v{ACC[t]+2*q}, v{ACC[t]+2*q+1}")
        for i in range(4):
            cc = "0" if i == 0 else vr(KVA, 16)
            cz = "0" if i == 0 else vr(ZA, 16)
            e(f"v_mfma_f32_32x32x16_bf16 {vr(KVA,16)}, {vr(PK+4*i)}, {vr(VF+4*i)}, {cc}")
            e(f"v_mfma_f32_32x32x16_bf16 {vr(ZA,16)}, {vr(PK+4*i)}, {vr(ONES)}, {cz}")
        e("s_mul_i32 s47, s37, 4352")
        e("s_mul_i32 s48, s38, 2176")
        e("s_add_u32 s47, s47, s48")
        e(f"s_add_u32 s47, s47, {M_KV}")
        e(f"v_bfe_u32 v{T+16}, v1, 4, 1")
        e(f"v_mul_u32_u24 v{T+16}, {KVH}, v{T+16}")
        e(f"v_add_u32 v{T+16}, s47, v{T+16}")
        e(f"v_lshrrev_b32 v{T+17}, 5, v1")
        e(f"v_lshl_add_u32 v{T+18}, v{T+17}, 5, v{T+16}")
        e(f"v_lshl_add_u32 v{T+16}, v{T+17}, 9, v{T+16}")
        e(f"v_and_b32 v{T+17}, 15, v1")
        e(f"v_lshl_add_u32 v{T+16}, v{T+17}, 5, v{T+16}")
        e(f"v_cmp_eq_u32 vcc, 0, v{T+17}")
        for r in range(8):
            e(f"v_cndmask_b32 v{T+r}, v{KVA+r}, v{KVA+8+r}, s[74:75]")
        for r in range(8):
            e(f"v_cndmask_b32 v{T+8+r}, v{ZA+r}, v{ZA+8+r}, s[74:75]")
        g.ds(f"ds_write_b128 v{T+16}, {vr(T)}", "kvw")
        g.ds(f"ds_write_b128 v{T+16}, {vr(T+4)} offset:16", "kvw")
        e("s_mov_b64 exec, vcc")
        g.ds(f"ds_write_b128 v{T+18}, {vr(T+8)} offset:1024", "kvw")
        g.ds(f"ds_write_b128 v{T+18}, {vr(T+12)} offset:1040", "kvw")
        e("s_mov_b64 exec, -1")
        g.wait(lg_all=True)
        e("s_barrier")
        e(f"v_lshlrev_b32 v{T+16}, 2, v0")
        e(f"v_add_u32 v{T+17}, {M_KV}, v{T+16}")
        for i in range(5):
            g.ds(f"ds_read_b32 v{T+i}, v{T+17} offset:{1024*i}", "kvr")
            g.ds(f"ds_read_b32 v{T+8+i}, v{T+17} offset:{4352+1024*i}", "kvr")
        g.wait(vm="zf")
        e("v_readfirstlane_b32 s48, v205")
        e("s_cmp_lg_u32 s48, 0")
        e("s_cbranch_scc1 K1_ZOK")
        e("s_mov_b32 s49, 0")
        e("s_lshl_b32 s47, s34, 2")
        g.label("K1_ZPOLL")
        e("s_sleep 1")
        e("buffer_load_dword v205, v204, s[28:31], s47 offen sc1")
        e("s_waitcnt vmcnt(0)")
        e("v_readfirstlane_b32 s48, v205")
        e("s_add_u32 s49, s49, 1")
        e("s_cmp_gt_u32 s49, 200000")
        e("s_cbranch_scc1 K1_ZOK")
        e("s_cmp_eq_u32 s48, 0")
        e("s_cbranch_scc1 K1_ZPOLL")
        g.label("K1_ZOK")
        g.wait(lg_all=True)
        for i in range(5):
            e(f"v_add_f32 v{T+i}, v{T+i}, v{T+8+i}")
        e("s_mul_i32 s47, s34, 4352")
        e(f"s_add_u32 s47, s47, {KVB}")
        for i in range(4):
            g.vmem(f"buffer_atomic_add_f32 v{T+i}, v{T+16}, s[24:27], s47 offen offset:{1024*i}", "at")
        e("s_add_u32 s47, s47, 4096")
        e("s_cmp_eq_u32 s36, 0")
        e(f"s_cselect_b32 s47, s47, {OOB}")
        g.vmem(f"buffer_atomic_add_f32 v{T+4}, v{T+16}, s[24:27], s47 offen", "at")
    else:
        for t in range(2):
            scale(g, t, False)
            d = VF + 8*t
            phi(g, t, d)
            e(f"s_lshl_b32 s47, s{86+t}, 5")
            e("s_lshl_b32 s48, s34, 2")
            e("s_add_u32 s47, s47, s48")
            e("s_lshl_b32 s48, s38, 1")
            e("s_add_u32 s47, s47, s48")
            e("s_lshl_b32 s47, s47, 10")
            e(f"s_add_u32 s47, s47, {QB}")
            g.vmem(f"buffer_store_dwordx4 {vr(d)}, v15, s[24:27], s47 offen {sc}", "st")
            g.vmem(f"buffer_store_dwordx4 {vr(d+4)}, v15, s[24:27], s47 offen offset:1024 {sc}", "st")

def k1_main(g, typ, sc):
    e = g.e
    pend = []
    def issue(k):
        for _ in range(k):
            if pend:
                f, a, b = pend.pop(0); f(g, a, b)
    nextw = 4
    for gi in range(24):
        c, p = gi >> 3, gi & 7
        corient = (typ == 0 and c < 2)
        for u in range(4):
            step = gi * 4 + u
            if u == 2 and gi < 23:
                g.wait(vm=[("W", gi + 1), ("X", gi + 1)])
                e("s_barrier")
                if gi == 0 and typ == 0:
                    e("s_cmp_eq_u32 s88, 1")
                    e("s_cbranch_scc0 K1_NOZF")
                    e("s_lshl_b32 s47, s34, 2")
                    e("v_mov_b32 v204, 0")
                    e("v_mov_b32 v205, 1")
                    e("s_mov_b64 exec, 1")
                    g.vmem("buffer_store_dword v205, v204, s[28:31], s47 offen sc1", counted=False)
                    e("s_mov_b64 exec, -1")
                    g.label("K1_NOZF")
                if gi + 4 < 8:
                    for i in range(4): pend.append((dma_x, gi + 4, i))
                lim = gi + 4 if gi < 4 else gi + 7
                while nextw <= min(lim, 23):
                    pend.append((dma_w, nextw, 0)); pend.append((dma_w, nextw, 1)); nextw += 1
                if gi + 1 < 8: read_x(g, gi + 1)
            if step + 2 < 96: read_w(g, step + 2)
            g.wait(lg=[("Wf", step), ("X", p) if c == 0 else ("Wf", step)])
            wf = vr(WF[step % 3])
            first = (p == 0 and u == 0)
            for t in range(2):
                cc = "0" if first else vr(ACC[t], 16)
                a, b = (X(t, p, u), wf) if corient else (wf, X(t, p, u))
                e(f"v_mfma_f32_32x32x16_bf16 {vr(ACC[t],16)}, {a}, {b}, {cc}")
                issue(1)
            if c == 0:
                x0 = 16 * p + 4 * u
                e(f"v_mfma_f32_16x16x32_bf16 {vr(S1)}, {vr(MO)}, {X(0,p,u)}, {'0' if first else vr(S1)}")
                e(f"v_mfma_f32_4x4x4_16b_bf16 {vr(Q0)}, a[{x0}:{x0+1}], a[{x0}:{x0+1}], {'0' if first else vr(Q0)}")
                e(f"v_mfma_f32_4x4x4_16b_bf16 {vr(Q1)}, a[{x0+2}:{x0+3}], a[{x0+2}:{x0+3}], {'0' if first else vr(Q1)}")
            if u % 2 == 0:
                e(f"v_mfma_f32_16x16x32_bf16 {vr(CS)}, {vr(MO)}, {wf}, {'0' if first else vr(CS)}")
        if p == 7:
            g.st.mark(g)
            epi(g, c, typ, sc)
            g.st.mark(g)
    if STAMP:
        e("s_waitcnt vmcnt(0)")
        g.st.mark(g)
        g.st.flush(g, 24, 0, 36)
    assert not pend

def gen_k1(sc):
    g = Gen()
    g.st = Stamps(90)
    e = g.e
    k1_prologue(g)
    g.st.mark(g)
    e("s_or_b32 s47, s32, s33")
    e("s_or_b32 s47, s47, s36")
    e("s_cmp_eq_u32 s47, 0")
    e("s_cselect_b32 s88, 1, 0")
    e("s_cbranch_scc0 K1_NOZ")
    e("v_lshlrev_b32 v15, 4, v1")
    for r in range(4): e(f"v_mov_b32 v{16+r}, 0")
    e("s_mul_i32 s47, s34, 4352")
    e(f"s_add_u32 s47, s47, {KVB}")
    for i in range(4):
        g.vmem(f"buffer_store_dwordx4 v[16:19], v15, s[24:27], s47 offen offset:{1024*i} sc1", counted=False)
    e("s_add_u32 s47, s47, 4096")
    e("s_mov_b64 exec, 0xffff")
    g.vmem("buffer_store_dwordx4 v[16:19], v15, s[24:27], s47 offen sc1", counted=False)
    e("s_mov_b64 exec, -1")
    e("s_nop 1")
    g.label("K1_NOZ")
    for p in range(4):
        for i in range(4): dma_x(g, p, i)
        dma_w(g, p, 0); dma_w(g, p, 1)
    k1_setup2(g)
    g.st.mark(g)
    g.wait(vm=[("W", 0), ("X", 0)])
    e("s_barrier")
    g.st.mark(g)
    read_x(g, 0)
    read_w(g, 0); read_w(g, 1)
    e("s_cmp_eq_u32 s33, 0")
    e("s_cbranch_scc0 K1_TYPEB")
    st = (list(g.vm), list(g.lg)); n0 = g.st.n
    k1_main(g, 0, sc)
    e("s_endpgm")
    g.label("K1_TYPEB")
    g.vm, g.lg = list(st[0]), list(st[1]); g.hist = []; g.st.n = n0
    k1_main(g, 1, sc)
    g.label("K1_END")
    e("s_endpgm")
    return g

def gen_k2(sc):
    g = Gen()
    e = g.e
    e("s_cmp_ge_u32 s2, 256")
    e("s_cbranch_scc1 K2_END")
    g.st = Stamps(90)
    g.st.mark(g)
    e("s_load_dwordx2 s[4:5], s[0:1], 0")
    e("s_load_dwordx2 s[6:7], s[0:1], 16")
    e("s_load_dwordx4 s[8:11], s[0:1], 40")
    e("s_load_dwordx2 s[12:13], s[0:1], 64")
    e("s_and_b32 s47, s2, 7")
    e("s_lshr_b32 s48, s2, 3")
    e("s_lshl_b32 s36, s47, 2")
    e("s_lshr_b32 s49, s48, 3")
    e("s_add_u32 s36, s36, s49")
    e("s_and_b32 s37, s48, 7")
    e("v_and_b32 v1, 63, v0")
    e("v_lshrrev_b32 v2, 6, v0")
    e("v_readfirstlane_b32 s38, v2")
    e("v_lshrrev_b32 v5, 3, v1")
    e("v_and_b32 v6, 7, v1")
    e("v_bfe_u32 v7, v5, 1, 1")
    e("v_lshlrev_b32 v7, 2, v7")
    e("v_xor_b32 v6, v6, v7")
    e("v_lshlrev_b32 v6, 4, v6")
    e("v_lshl_add_u32 v2, v5, 10, v6")
    e("v_lshlrev_b32 v3, 4, v1")
    e("s_mul_i32 s40, s38, 40960")
    e("s_lshl_b32 s47, s37, 7")
    e("s_mul_i32 s41, s38, %d" % (22 * 16 * 1024))
    e("s_add_u32 s41, s41, s47")
    e("s_lshl_b32 s42, s38, 17")
    e("s_add_u32 s42, s42, s47")
    e("s_mul_i32 s43, s36, 172")
    e("s_mul_i32 s47, s38, 22")
    e("s_add_u32 s43, s43, s47")
    e("s_lshl_b32 s43, s43, 10")
    e("s_cmp_eq_u32 s38, 3")
    e(f"s_cselect_b32 s44, {OOB}, s43")
    e("s_lshl_b32 s45, s36, 6")
    e("s_lshl_b32 s47, s38, 3")
    e("s_add_u32 s45, s45, s47")
    e("s_lshl_b32 s45, s45, 10")
    e(f"s_add_u32 s45, s45, {QB}")
    e("s_mul_i32 s46, s38, %d" % (8 * KVH))
    e(f"s_add_u32 s46, s46, {KVB}")
    e("v_lshrrev_b32 v8, 5, v1")
    e("v_and_b32 v9, 15, v1")
    e("v_lshlrev_b32 v10, 9, v8")
    e("v_lshl_add_u32 v10, v9, 5, v10")
    e("v_lshlrev_b32 v11, 5, v8")
    e("v_add_u32 v11, 1024, v11")
    e("v_bfe_u32 v12, v1, 4, 1")
    e("v_cmp_eq_u32 vcc, 1, v12")
    e("v_cndmask_b32 v4, v10, v11, vcc")
    e("v_lshrrev_b32 v10, 2, v9")
    e("v_and_b32 v11, 3, v9")
    e("v_lshl_add_u32 v13, v8, 2, v10")
    e("v_lshlrev_b32 v13, 7, v13")
    e("v_lshrrev_b32 v14, 1, v11")
    e("v_lshl_add_u32 v14, v12, 1, v14")
    e("v_lshrrev_b32 v15, 1, v10")
    e("v_lshlrev_b32 v15, 2, v15")
    e("v_xor_b32 v14, v14, v15")
    e("v_lshl_add_u32 v13, v14, 4, v13")
    e("v_and_b32 v11, 1, v11")
    e("v_lshl_add_u32 v13, v11, 3, v13")
    e("v_add_u32 v5, s40, v13")
    e("v_xor_b32 v6, 64, v5")
    e("s_waitcnt lgkmcnt(0)")
    srd(g, 16, 4, 2048 * 1024)
    srd(g, 20, 6, 512 * 1024)
    srd(g, 24, 8, 1376 * 1024)
    srd(g, 28, 10, 2048 * 1024)
    srd(g, 32, 12, WS_BYTES)
    e("s_mov_b32 s50, 0x%08x" % f2u(1e-6))
    NS = 30
    def HF(i): return ar(64 + 4 * i)
    def PQ(i): return vr(64 + 4 * i)
    def KVR(h): return 128 + 8 * h
    BF = [16, 24, 32]
    ND = [192, 208]
    OF = [224, 228]
    XR = 232
    def loads(s):
        L = []
        slot = s % 20
        for i in range(2):
            def f(i=i):
                e(f"s_add_u32 m0, s40, {slot * 2048 + i * 1024}")
                if s < 22:
                    e(f"s_add_u32 s47, s41, {s * 16384 + i * 8192}")
                    g.vmem("buffer_load_dwordx4 v2, s[24:27], s47 offen lds", ("B", s))
                else:
                    e(f"s_add_u32 s47, s42, {(s - 22) * 16384 + i * 8192}")
                    g.vmem("buffer_load_dwordx4 v2, s[20:23], s47 offen lds", ("B", s))
            L.append(f)
        for t in range(2):
            def f(t=t):
                if s < 22:
                    e(f"s_add_u32 s47, s{44 if s >= 20 else 43}, {s * 1024 + t * 86 * 1024}")
                    g.vmem(f"buffer_load_dwordx4 {HF(2*s+t)}, v3, s[32:35], s47 offen {sc}", ("A", s))
                else:
                    h = s - 22
                    e(f"s_add_u32 s47, s45, {h * 1024 + t * 32768}")
                    g.vmem(f"buffer_load_dwordx4 {PQ(2*h+t)}, v3, s[32:35], s47 offen {sc}", ("A", s))
            L.append(f)
        if s >= 22:
            h = s - 22
            for t in range(2):
                def f(t=t):
                    e(f"s_add_u32 s47, s46, {h * KVH}")
                    g.vmem(f"buffer_load_dwordx4 {vr(KVR(h) + 4*t)}, v4, s[32:35], s47 offen offset:{16*t} {sc}", ("A", s))
                L.append(f)
        return L
    def read_b(s):
        slot = s % 20
        b = BF[s % 3]
        for ct in range(2):
            for k in range(2):
                g.ds(f"ds_read_b64_tr_b16 v[{b+4*ct+2*k}:{b+4*ct+2*k+1}], v{5+ct} offset:{slot*2048 + k*1024}", ("Bf", s))
    LA = 8
    e("v_lshrrev_b32 v7, 3, v0")
    e("v_and_b32 v8, 7, v0")
    e("v_lshlrev_b32 v9, 4, v8")
    e("v_lshl_add_u32 v9, v7, 10, v9")
    e("s_lshl_b32 s51, s36, 16")
    e("s_lshl_b32 s47, s37, 7")
    e("s_add_u32 s51, s51, s47")
    e("s_add_u32 s52, s51, 32768")
    for s in range(LA):
        for f in loads(s): f()
    g.vmem(f"buffer_load_dwordx4 {vr(XR)}, v9, s[16:19], s51 offen", "xr")
    g.vmem(f"buffer_load_dwordx4 {vr(XR+4)}, v9, s[16:19], s52 offen", "xr")
    g.st.mark(g)
    g.wait(vm=[("B", 0)])
    g.st.mark(g)
    read_b(0)
    for s in range(NS):
        pend = loads(s + LA) if s + LA < NS else []
        if s + 1 < NS:
            g.wait(vm=[("B", s + 1)])
            read_b(s + 1)
        g.wait(vm=[("A", s)])
        if s >= 22:
            h = s - 22
            k = KVR(h)
            for q in range(4):
                e(f"v_cvt_pk_bf16_f32 v{k+q}, v{k+2*q}, v{k+2*q+1}")
            for t in range(2):
                e(f"v_mfma_f32_32x32x16_bf16 {vr(ND[t],16)}, {vr(k)}, {PQ(2*h+t)}, 0")
            for t in range(2):
                d = ND[t]
                e(f"v_add_f32 v{d+8}, s50, v{d+8}")
                e(f"v_rcp_f32 v{d+8}, v{d+8}")
                for r in range(8): e(f"v_mul_f32 v{d+r}, v{d+r}, v{d+8}")
                for q in range(4): e(f"v_cvt_pk_bf16_f32 v{OF[t]+q}, v{d+2*q}, v{d+2*q+1}")
        g.wait(lg=[("Bf", s)])
        b = BF[s % 3]
        for ct in range(2):
            for t in range(2):
                acc = ar(32 * ct + 16 * t, 16)
                act = HF(2*s+t) if s < 22 else vr(OF[t])
                e(f"v_mfma_f32_32x32x16_bf16 {acc}, {vr(b+4*ct)}, {act}, {'0' if s == 0 else acc}")
                for _ in range(2):
                    if pend: pend.pop(0)()
        assert not pend
        if s in (10, 21, 29): g.st.mark(g)
    e("v_and_b32 v10, 31, v1")
    e("v_mul_u32_u24 v10, 272, v10")
    e("v_lshrrev_b32 v11, 5, v1")
    e("v_lshl_add_u32 v10, v11, 4, v10")
    e("v_add_u32 v10, s40, v10")
    for ct in range(2):
        for t in range(2):
            for q in range(4):
                a = 32 * ct + 16 * t + 4 * q
                g.ds(f"ds_write_b128 v10, {ar(a)} offset:{t * 32 * 272 + ct * 128 + q * 32}", "rw")
    g.wait(lg_all=True)
    e("s_barrier")
    e("v_mul_u32_u24 v10, 272, v7")
    e("v_lshl_add_u32 v10, v8, 5, v10")
    e("v_add_u32 v11, %d, v10" % (2 * 40960))
    for t in range(2):
        for w in range(4):
            for k in range(2):
                d = 64 + t * 32 + w * 8 + k * 4
                g.ds(f"ds_read_b128 {vr(d)}, v{10 + (w >> 1)} offset:{(w & 1) * 40960 + t * 32 * 272 + k * 16}", ("rr", t))
    g.wait(vm="xr")
    for t in range(2):
        g.wait(lg=[("rr", t)])
        d = 64 + t * 32
        for w in range(1, 4):
            for q in range(4):
                e(f"v_pk_add_f32 v[{d+2*q}:{d+2*q+1}], v[{d+2*q}:{d+2*q+1}], v[{d+8*w+2*q}:{d+8*w+2*q+1}]")
        for q in range(4):
            e(f"v_lshlrev_b32 v{d+8+2*q}, 16, v{XR+4*t+q}")
            e(f"v_and_b32 v{d+8+2*q+1}, 0xffff0000, v{XR+4*t+q}")
        for q in range(4):
            e(f"v_pk_add_f32 v[{d+2*q}:{d+2*q+1}], v[{d+2*q}:{d+2*q+1}], v[{d+8+2*q}:{d+8+2*q+1}]")
        for q in range(4):
            e(f"v_cvt_pk_bf16_f32 v{d+16+q}, v{d+2*q}, v{d+2*q+1}")
        g.vmem(f"buffer_store_dwordx4 {vr(d+16)}, v9, s[28:31], s{51+t} offen", "o")
    if STAMP:
        g.st.mark(g)
        e("s_waitcnt vmcnt(0)")
        g.st.mark(g)
        g.st.flush(g, 32, 1, 38)
    g.label("K2_END")
    e("s_endpgm")
    return g

def kd(name, vgpr, sgpr, acc):
    return f""".amdhsa_kernel {name}
  .amdhsa_next_free_vgpr {vgpr}
  .amdhsa_next_free_sgpr {sgpr}
  .amdhsa_accum_offset {acc}
  .amdhsa_group_segment_fixed_size 0
  .amdhsa_kernarg_size 72
  .amdhsa_user_sgpr_count 2
  .amdhsa_user_sgpr_kernarg_segment_ptr 1
  .amdhsa_system_sgpr_workgroup_id_x 1
.end_amdhsa_kernel
"""

def main(out):
    hdr = open("parallel_sum__linear_attn_block__dense_activation_relu__prompt.s.ref").read().split("; Override")[0]
    g1 = gen_k1("sc1"); g2 = gen_k2("")
    s = hdr
    s += "; @launch kernel=pa_kernel grid=(256,1,1) block=(256,1,1) lds=163840\n"
    s += "; @launch kernel=pb_kernel grid=(256,1,1) block=(256,1,1) lds=163840\n"
    s += '.amdgcn_target "amdgcn-amd-amdhsa--gfx950"\n.text\n'
    for name, g in (("pa_kernel", g1), ("pb_kernel", g2)):
        s += f".globl {name}\n.p2align 8\n.type {name},@function\n{name}:\n" + g.text()
    s += '.section .rodata,"a"\n.p2align 6\n' + kd("pa_kernel", 512, 96, 256) + ".p2align 6\n" + kd("pb_kernel", 512, 96, 256)
    open(out, "w").write(s)
    print("nops", g1.nops, g2.nops, "lines", len(g1.out), len(g2.out))

if __name__ == "__main__":
    if len(sys.argv) > 2 and sys.argv[2] == "stamp": STAMP = True
    main(sys.argv[1] if len(sys.argv) > 1 else "v1.s")
```

```python
import sys
sys.path.insert(0, "dev")
from asmgen import Gen
import gen1
base = sys.argv[1]
s = open(base).read()
L1 = "; @launch kernel=pa_kernel grid=(256,1,1) block=(256,1,1) lds=163840\n"
L2 = "; @launch kernel=pb_kernel grid=(256,1,1) block=(256,1,1) lds=163840\n"
LE = "; @launch kernel=pe_kernel grid=(256,1,1) block=(256,1,1) lds=0\n"
def mk(name, launches, body):
    ek = ".globl pe_kernel\n.p2align 8\n.type pe_kernel,@function\npe_kernel:\n" + body + "    s_endpgm\n"
    t = s.replace(L1 + L2, launches)
    t = t.replace('.section .rodata,"a"', ek + '.section .rodata,"a"') + ".p2align 6\n" + gen1.kd("pe_kernel", 64, 96, 64)
    open(name, "w").write(t)
bufs = [(0, 2048*1024), (8, 512*3072), (16, 512*1024), (32, 512*2752), (40, 1376*1024), (48, 2048*1024), (64, 0x900000)]
def body(kind):
    g = Gen(); e = g.e
    e("s_cmp_ge_u32 s2, 256")
    e("s_cbranch_scc1 PE_END")
    for i, (off, n) in enumerate(bufs):
        e(f"s_load_dwordx2 s[{4+2*i}:{5+2*i}], s[0:1], {off}")
    e("s_waitcnt lgkmcnt(0)")
    for i, (off, n) in enumerate(bufs):
        gen1.srd(g, 32 + 4*i, 4 + 2*i, n)
    if kind == "all":
        e("s_lshl_b32 s20, s2, 13")
        e("v_lshlrev_b32 v1, 4, v0")
        for i in range(5):
            e(f"buffer_load_dwordx4 v[4:7], v1, s[{32+4*i}:{35+4*i}], s20 offen")
            e("s_add_u32 s21, s20, 4096")
            e(f"buffer_load_dwordx4 v[4:7], v1, s[{32+4*i}:{35+4*i}], s21 offen")
    elif kind == "tlb":
        e("v_lshlrev_b32 v1, 16, v0")
        for i in range(7):
            e(f"buffer_load_dword v4, v1, s[{32+4*i}:{35+4*i}], 0 offen")
    e("s_waitcnt vmcnt(0)")
    g.label("PE_END")
    return g.text()
mk("x_f.s", LE + L1 + L2, "")
mk("x_g.s", LE + L1 + L2, body("all"))
mk("x_h.s", LE + L1 + L2, body("tlb"))
```

```python
import sys, struct
sys.path.insert(0, "dev")
from asmgen import Gen

def f2u(x): return struct.unpack("<I", struct.pack("<f", x))[0]
NAME = "parallel_sum__linear_attn_block__dense_activation_relu__prompt_kernel"

HB, QB, KVB, FLB, KFB = 0, 0x600000, 0x800000, 0x900000, 0x910000
KVH = 1088
WS_BYTES = 268435456
OOB = 0x40000000
PAGE = 8192
XPAGE = [0, 2, 4, 6, 18]
MISC = 16 * PAGE
M_CS, M_RM, M_RR, M_KV = MISC, MISC + 512, MISC + 1024, MISC + 2048
STAMP = 0
VERB = False
STB = 0x8000000
OPT = dict(rot=2, pre=12, spin=20000, fdelay=18, adelay=18, period=66, hpoll=21, hlead=2, cpf=2, dpf=1, fs=5, pub=8, h2ld=8, h2chk=9, slp=2, qld=6, p2=66, dbg=0)

def vr(a, n=4): return f"v[{a}:{a+n-1}]"
def ar(a, n=4): return f"a[{a}:{a+n-1}]"
def sr(a, n=4): return f"s[{a}:{a+n-1}]"

SX, SWP, SWS2, SWS, SDBG, SW2, SWO, SOUT = 24, 28, 32, 36, 40, 44, 48, 52
sRB, sTYP, sJ, sW, sM, sN, sRB2, sCB = 56, 57, 58, 59, 60, 61, 62, 63
sXO, sPO, sSO = 64, 72, 80
sT0, sT1, sT2 = 88, 89, 90
sCOL = [4, 5, 6]
sXL, sBL, sT3 = 7, 8, 9
sRT = [10, 11]
sZ, sEPS, sLOG = 12, 13, 14
mB4, mH, mB0, mB1 = 16, 18, 20, 22
sNON = 92
sHST = [94, 95, 96]
sB2, sBO, sHA, sHA2, sPQ = 97, 98, 99, 100, 101
sKV, sFL, sKF, sXR = 91, 2, 3, 0

vXD, vWP, vWS, vBD = 2, 6, 8, 10
vXA = [12, 16]
vWA = 20
vCSW, vCSR, vL16, vSTO, vSTX, vSKIP = 26, 27, 28, 29, 30, 31
vRR, RL, vCSP, vTMP, vCSV, vCTLO = 32, 34, 36, 37, 38, 39
MO, S1, Q0, Q1, CS = 40, 44, 48, 52, 56
WF = [60, 64, 68]
AAUG, BAUG = [72, 76], 80
ACCS = [[84, 100], [116, 132]]
RROW = [148, 164]
PK, VF, T = 180, 196, 212
ONES = S1
RLL, EPSR = 52, 54
vFLO, vCTL, vZERO, vFLG, vNON = 244, 245, 246, 248, 250
vKFL = 48
vBT, vKVO, vXO = 12, 18, 19
ACC2, BF, ND, OF = 116, [56, 64, 72], [84, 100], [[196, 200], [204, 208]]
KVR = [180, 188, 212, 220, 228, 236, 40, 20]
def X(t, p, u): return 128 * t + 16 * p + 4 * u

class Stamps:
    def __init__(self): self.n = 0
    def mark2(self, g):
        if STAMP != 2: return
        g.e("s_memtime vcc"); g.e("s_waitcnt lgkmcnt(0)"); g.lg = []
        g.e("v_writelane_b32 v255, vcc_lo, %d" % self.n); self.n += 1
    def mark(self, g):
        if STAMP != 1: return
        g.e("s_memrealtime vcc"); g.e("s_waitcnt lgkmcnt(0)"); g.lg = []
        g.e("v_writelane_b32 v255, vcc_lo, %d" % self.n)
        g.e("s_memtime vcc"); g.e("s_waitcnt lgkmcnt(0)")
        g.e("v_writelane_b32 v255, vcc_lo, %d" % (self.n + 30)); self.n += 1

def srd(g, d, lo, nbytes):
    g.e(f"s_mov_b32 s{d}, s{lo}")
    g.e(f"s_and_b32 s{d+1}, s{lo+1}, 0xffff")
    g.e(f"s_mov_b32 s{d+2}, {nbytes}")
    g.e(f"s_mov_b32 s{d+3}, 0x00020000")

def page_plan():
    free = []
    wpage = {}; wav = {}
    for g in range(8): wpage[g] = 8 + g; wav[g] = -1
    ev = []
    xr = {3: 4, 4: 5, 0: 6, 1: 7, 2: 8}
    for sl, b in xr.items(): ev += [(b, XPAGE[sl]), (b, XPAGE[sl] + 1)]
    for g in range(8): ev.append((g + 1, wpage[g]))
    for g in range(8, 24):
        ev.sort(); b, pg = ev.pop(0)
        wpage[g] = pg; wav[g] = b
        ev.append((g + 1, pg))
    ev += [(24, 16), (24, 17)]
    ev.sort()
    bpage = {}; bav = {}
    for s in range(20): bav[s], bpage[s] = ev[s]
    for s in range(20, 30): bpage[s] = bpage[s - 20]; bav[s] = 24
    return wpage, wav, bpage, bav
WPAGE, WAV, BPAGE, BAV = page_plan()

def uses_primary(typ, c): return c == 0 or (typ == 0 and c == 1) or (typ == 1 and c == 2)
def step_kind(s):
    if s < 8: return ("h", s)
    if s < 16: return ("o", s - 8)
    return ("h", s - 8)
def aslot(k):
    p, r = k >> 3, k & 7
    return X(r >> 2, p, r & 3)
def areg(s, t): return aslot(2 * s + t)

def it_x(p):
    L = []
    for i in range(4):
        prep = [f"s_add_u32 m0, s{sXL}, {XPAGE[p % 5] * PAGE}"] if i == 0 else []
        L.append((prep, f"buffer_load_dwordx4 v{vXD+i}, {sr(SX)}, s{sXO+p} offen offset:{1024*i} lds", ("X", p), i < 3))
    return L
def it_w(typ, gi):
    c, p = gi >> 3, gi & 7
    q = uses_primary(typ, c)
    s, v, tb = (SWP, vWP, sPO) if q else (SWS2, vWS, sSO)
    prep = [f"s_add_u32 m0, s{sBL}, {WPAGE[gi] * PAGE}", f"s_add_u32 s{sT0}, s{tb+p}, s{sCOL[c]}"]
    if typ == 1 and gi == 16:
        prep += [f"v_or_b32 v{vWP}, v{vWP}, v{vSKIP}", f"v_or_b32 v{vWP+1}, v{vWP+1}, v{vSKIP}"]
    return [(prep, f"buffer_load_dwordx4 v{v}, {sr(s)}, s{sT0} offen lds", ("W", gi), True),
            ([], f"buffer_load_dwordx4 v{v+1}, {sr(s)}, s{sT0} offen offset:1024 lds", ("W", gi), False)]
def it_b(s):
    k, idx = step_kind(s)
    sd, base = (SW2, sB2) if k == "h" else (SWO, sBO)
    prep = [f"s_add_u32 m0, s{sBL}, {BPAGE[s] * PAGE}", f"s_add_u32 s{sT0}, s{base}, {idx * 16384}"]
    return [(prep, f"buffer_load_dwordx4 v{vBD}, {sr(sd)}, s{sT0} offen lds", ("B", s), True),
            ([], f"buffer_load_dwordx4 v{vBD+1}, {sr(sd)}, s{sT0} offen offset:1024 lds", ("B", s), False)]
def it_a(s, t):
    k, idx = step_kind(s)
    if k == "h": prep = [f"s_add_u32 s{sT3}, s{sHA2 if idx >= 20 else sHA}, {idx * 1024 + t * 86 * 1024}"]
    else: prep = [f"s_add_u32 s{sT3}, s{sPQ}, {idx * 1024 + t * 32768}"]
    return (prep, f"buffer_load_dwordx4 {ar(areg(s, t))}, v{vL16}, {sr(SWS)}, s{sT3} offen sc1", ("A", s), False)
def emit_item(g, it):
    for x in it[0]: g.e(x)
    g.vmem(it[1], it[2])

def prologue(g):
    e = g.e
    e("s_cmp_ge_u32 s2, 256")
    e("s_cbranch_scc1 L_END")
    g.st.mark(g)
    e("s_load_dwordx16 s[4:19], s[0:1], 0")
    e("s_load_dwordx2 s[20:21], s[0:1], 64")
    if OPT["cpf"] == 1:
        e("s_getpc_b64 s[22:23]")
        e("v_lshlrev_b32 v252, 7, v0")
        g.vmem("global_load_dword v253, v252, s[22:23]", "pf")
    if OPT["cpf"] == 2:
        e("s_getpc_b64 s[22:23]")
        e("s_bfe_u32 s24, s2, 0x30003")
        e("s_lshl_b32 s24, s24, 12")
        e("v_lshrrev_b32 v252, 3, v0")
        e("v_lshl_add_u32 v252, v252, 7, s24")
        g.vmem("global_load_dword v253, v252, s[22:23]", "pf")
    e("v_and_b32 v1, 63, v0")
    e("v_lshrrev_b32 v2, 6, v0")
    e(f"s_and_b32 s{sT0}, s2, 7")
    e(f"v_readfirstlane_b32 s{sW}, v2")
    e(f"s_lshr_b32 s{sT1}, s2, 3")
    e(f"s_and_b32 s{sRB}, s{sT0}, 3")
    e(f"s_lshl_b32 s{sRB}, s{sRB}, 2")
    e(f"s_lshr_b32 s{sT2}, s{sT1}, 3")
    e(f"s_add_u32 s{sRB}, s{sRB}, s{sT2}")
    e(f"s_lshl_b32 s{sRB2}, s{sT0}, 2")
    e(f"s_add_u32 s{sRB2}, s{sRB2}, s{sT2}")
    e(f"s_and_b32 s{sCB}, s{sT1}, 7")
    e(f"s_and_b32 s{sTYP}, s{sCB}, 1")
    e(f"s_lshr_b32 s{sJ}, s{sT0}, 2")
    e(f"s_lshl_b32 s{sJ}, s{sJ}, 2")
    e(f"s_lshr_b32 s{sT0}, s{sCB}, 1")
    e(f"s_add_u32 s{sJ}, s{sJ}, s{sT0}")
    if OPT["rot"] == 1: e(f"s_add_u32 s91, s{sCB}, s{sT2}")
    elif OPT["rot"] == 2: e(f"s_lshl_b32 s91, s{sT2}, 1"); e(f"s_add_u32 s91, s91, s{sCB}")
    else: e("s_mov_b32 s91, 0")
    e("v_lshrrev_b32 v12, 3, v1")
    e("v_and_b32 v13, 7, v1")
    e("v_lshrrev_b32 v14, 1, v12")
    e("v_xor_b32 v15, v13, v14")
    e("v_lshlrev_b32 v15, 4, v15")
    e(f"v_lshl_add_u32 v{vXD}, v12, 10, v15")
    e(f"v_xor_b32 v{vXD+1}, 64, v{vXD}")
    e(f"v_add_u32 v{vXD+2}, {2*7168}, v{vXD}")
    e(f"v_add_u32 v{vXD+3}, {3*7168}, v{vXD+1}")
    e(f"v_add_u32 v{vXD+1}, 7168, v{vXD+1}")
    e("v_and_b32 v14, 1, v14")
    e("v_lshlrev_b32 v14, 2, v14")
    e("v_xor_b32 v15, v13, v14")
    e("v_lshlrev_b32 v15, 4, v15")
    e("s_movk_i32 s97, 2752")
    e("s_movk_i32 s96, 3072")
    e(f"s_cmp_eq_u32 s{sTYP}, 0")
    e("s_cselect_b32 s98, s96, s97")
    e("s_cselect_b32 s99, s97, s96")
    e(f"v_mad_u32_u24 v{vWP}, s98, v12, v15")
    e("s_lshl_b32 s100, s98, 3")
    e("s_sub_u32 s100, s100, 1024")
    e(f"v_add_u32 v{vWP+1}, s100, v{vWP}")
    e(f"s_lshl_b32 s92, s{sRB}, 7")
    e(f"s_lshl_b32 s{sT0}, s{sW}, 5")
    e(f"s_add_u32 s92, s92, s{sT0}")
    e("s_lshl_b32 s92, s92, 10")
    e(f"s_lshl_b32 s93, s{sW}, 4")
    def tab(p):
        e(f"s_add_u32 s{sT0}, s91, {p}")
        e(f"s_and_b32 s{sT0}, s{sT0}, 7")
        e(f"s_lshl_b32 s{sXO+p}, s{sT0}, 7")
        e(f"s_add_u32 s{sXO+p}, s{sXO+p}, s92")
        e(f"s_lshl_b32 s{sT0}, s{sT0}, 6")
        e(f"s_add_u32 s{sT0}, s{sT0}, s93")
        e(f"s_mul_i32 s{sPO+p}, s{sT0}, s98")
        e(f"s_mul_i32 s{sSO+p}, s{sT0}, s99")
    g.tab = tab
    for p in range(3): tab(p)
    e(f"s_lshl_b32 s95, s{sJ}, 7")
    e(f"s_add_u32 s95, s95, 1024")
    e(f"s_lshr_b32 s{sT0}, s{sJ}, 1")
    e(f"s_mul_i32 s{sT0}, s{sT0}, 704")
    e(f"s_and_b32 s{sT1}, s{sJ}, 1")
    e(f"s_lshl_b32 s{sT1}, s{sT1}, 7")
    e(f"s_add_u32 s{sT0}, s{sT0}, s{sT1}")
    e(f"s_lshl_b32 s{SWP+2}, s98, 9")
    e(f"s_lshl_b32 s{SWS2+2}, s99, 9")
    e(f"s_mov_b32 s{SWP+3}, 0x00020000")
    e(f"s_mov_b32 s{SWS2+3}, 0x00020000")
    e(f"s_mov_b32 s{SX+2}, {2048*1024}")
    e(f"s_mov_b32 s{SX+3}, 0x00020000")
    e(f"s_cmp_eq_u32 s{sTYP}, 0")
    e(f"s_cselect_b32 s95, s95, s{sT0}")
    e("s_waitcnt lgkmcnt(0)")
    e(f"s_cselect_b32 s{SWP}, s6, s12")
    e(f"s_cselect_b32 s{SWP+1}, s7, s13")
    e(f"s_cselect_b32 s{SWS2}, s12, s6")
    e(f"s_cselect_b32 s{SWS2+1}, s13, s7")
    e(f"s_mov_b32 s{SX}, s4")
    e(f"s_and_b32 s{SX+1}, s5, 0xffff")
    e(f"s_and_b32 s{SWP+1}, s{SWP+1}, 0xffff")
    e(f"s_mov_b32 s{SWO}, s8")
    e(f"s_and_b32 s{SWO+1}, s9, 0xffff")
    e(f"s_mov_b32 s{sCOL[0]}, s95")
    e(f"s_lshl_b32 s{sXL}, s{sW}, 12")
    e(f"s_lshl_b32 s{sBL}, s{sW}, 11")

def setup1(g):
    e = g.e
    e(f"s_and_b32 s{SWS2+1}, s{SWS2+1}, 0xffff")
    e(f"s_mov_b32 s{SWO+2}, {512*1024}")
    e(f"s_mov_b32 s{SWO+3}, 0x00020000")
    srd(g, SWS, 20, WS_BYTES)
    srd(g, SDBG, 18, 256)
    srd(g, SW2, 14, 1376 * 1024)
    srd(g, SOUT, 16, 2048 * 1024)
    e(f"s_lshr_b32 s{sM}, s{sW}, 1")
    e(f"s_and_b32 s{sN}, s{sW}, 1")
    for p in range(3, 8): g.tab(p)

def setup2(g):
    e = g.e
    t = T
    e(f"v_mad_u32_u24 v{vWS}, s99, v12, v15")
    e("s_lshl_b32 s100, s99, 3")
    e("s_sub_u32 s100, s100, 1024")
    e(f"v_add_u32 v{vWS+1}, s100, v{vWS}")
    e(f"v_lshl_add_u32 v{vBD}, v12, 10, v15")
    e(f"v_add_u32 v{vBD+1}, 7168, v{vBD}")
    e(f"s_and_b32 s{sT0}, s{sJ}, 1")
    e(f"s_cmp_eq_u32 s{sJ}, 6")
    e(f"s_cselect_b32 s{sT0}, 1, s{sT0}")
    e(f"s_and_b32 s101, s{sT0}, s{sTYP}")
    e(f"v_bfe_u32 v{vSKIP}, v15, 6, 1")
    e(f"v_and_b32 v{vSKIP}, s101, v{vSKIP}")
    e(f"v_lshlrev_b32 v{vSKIP}, 30, v{vSKIP}")
    e(f"v_and_b32 v{t}, 31, v1")
    e(f"v_lshrrev_b32 v{t+1}, 5, v1")
    e(f"v_bfe_u32 v{t+2}, v1, 1, 3")
    e(f"s_lshl_b32 s{sT1}, s{sM}, 6")
    e(f"s_lshl_b32 s{sT0}, s{sN}, 5")
    e(f"s_add_u32 s{sT1}, s{sT1}, s{sT0}")
    e(f"v_add_u32 v{t+3}, s{sT1}, v{t}")
    e(f"v_lshlrev_b32 v{t+4}, 7, v{t+3}")
    for u in range(4):
        e(f"s_xor_b32 s{sT0}, s{sM}, {u}")
        e(f"s_lshl_b32 s{sT0}, s{sT0}, 1")
        e(f"v_add_u32 v{t+5}, s{sT0}, v{t+1}")
        e(f"v_xor_b32 v{t+5}, v{t+5}, v{t+2}")
        e(f"v_lshl_add_u32 v{vXA[0]+u}, v{t+5}, 4, v{t+4}")
        e(f"v_xor_b32 v{vXA[1]+u}, 0x1000, v{vXA[0]+u}")
    e(f"v_lshlrev_b32 v{vSTO}, 2, v{t+3}")
    e(f"v_add_u32 v{vSTO}, {M_RM}, v{vSTO}")
    e(f"v_xor_b32 v{vSTX}, 0x80, v{vSTO}")
    e(f"v_bfe_u32 v{t+5}, v1, 2, 2")
    e(f"v_and_b32 v{t+6}, 3, v1")
    e(f"v_bfe_u32 v{t+7}, v1, 4, 1")
    e(f"v_lshrrev_b32 v{t+8}, 1, v{t+6}")
    e(f"v_lshl_add_u32 v{t+8}, v{t+7}, 1, v{t+8}")
    e(f"v_lshrrev_b32 v{t+9}, 1, v{t+5}")
    e(f"v_lshlrev_b32 v{t+9}, 2, v{t+9}")
    e(f"v_xor_b32 v{t+8}, v{t+8}, v{t+9}")
    e(f"v_lshlrev_b32 v{t+8}, 4, v{t+8}")
    e(f"v_and_b32 v{t+9}, 1, v{t+6}")
    e(f"v_lshl_add_u32 v{t+8}, v{t+9}, 3, v{t+8}")
    e(f"v_lshl_add_u32 v{t+8}, v{t+5}, 7, v{t+8}")
    e(f"v_lshl_add_u32 v247, v{t+1}, 9, v{t+8}")
    e(f"v_lshl_add_u32 v{t+9}, v{t+1}, 10, v{t+8}")
    e(f"s_lshl_b32 s{sT0}, s{sN}, 6")
    e(f"v_xor_b32 v{t+9}, s{sT0}, v{t+9}")
    e(f"s_lshl_b32 s{sT0}, s{sM}, 11")
    e(f"v_add_u32 v{vWA}, s{sT0}, v{t+9}")
    e(f"v_subrev_u32 v{vWA+1}, s{sT0}, v{t+9}")
    e(f"v_add_u32 v{vWA+1}, 2048, v{vWA+1}")
    for r in (1, 2):
        e(f"v_add_u32 v{vWA+2*r}, {65536*r}, v{vWA}")
        e(f"v_add_u32 v{vWA+2*r+1}, {65536*r}, v{vWA+1}")
    e(f"v_lshlrev_b32 v{vL16}, 4, v1")
    e(f"v_cmp_eq_u32 {sr(mB4,2)}, 1, v{t+7}")
    e(f"v_cmp_eq_u32 {sr(mH,2)}, 1, v{t+1}")
    e(f"v_and_b32 v{t+9}, 1, v1")
    e(f"v_cmp_eq_u32 {sr(mB0,2)}, 1, v{t+9}")
    e(f"v_and_b32 v{t+10}, 2, v1")
    e(f"v_cmp_eq_u32 {sr(mB1,2)}, 2, v{t+10}")
    e(f"v_cmp_eq_u32 vcc, v{t+9}, v{t+7}")
    e(f"v_mov_b32 v{t+10}, 0x3f803f80")
    for r in range(4): e(f"v_cndmask_b32 v{MO+r}, 0, v{t+10}, vcc")
    for r in range(1, 4):
        e(f"v_mov_b32 v{AAUG[0]+r}, 0"); e(f"v_mov_b32 v{AAUG[1]+r}, 0"); e(f"v_mov_b32 v{BAUG+r}, 0")
    e(f"v_mov_b32 v{vZERO}, 0")
    e(f"s_mov_b32 s{sLOG}, 0x3fb8aa3b")
    e(f"s_mov_b32 s{sLOG+1}, 0x3fb8aa3b")
    e(f"s_mov_b32 s{sEPS}, 0x%08x" % f2u(1e-6))
    e(f"s_lshl_b32 s{sT0}, s{sN}, 1")
    e(f"s_add_u32 s{sT0}, s{sT0}, s{sM}")
    e(f"s_lshl_b32 s{sT0}, s{sT0}, 7")
    e(f"s_add_u32 s{sT0}, s{sT0}, {M_CS}")
    e(f"v_lshl_add_u32 v{vCSW}, v{t}, 2, s{sT0}")
    e(f"v_xor_b32 v{vCSR}, 0x80, v{vCSW}")
    e(f"v_lshlrev_b32 v{t+9}, 4, v{t+1}")
    e(f"s_lshl_b32 s{sT0}, s{sT1}, 2")
    e(f"s_add_u32 s{sT0}, s{sT0}, {M_RR}")
    e(f"v_add_u32 v{vRR}, s{sT0}, v{t+9}")
    e(f"v_xor_b32 v{vRR+1}, 0x80, v{vRR}")
    e(f"s_lshl_b32 s{sT0}, s{sRB}, 2")
    e(f"s_lshl_b32 s{sT2}, s{sM}, 1")
    e(f"s_add_u32 s{sT0}, s{sT0}, s{sT2}")
    e(f"s_add_u32 s{sRT[0]}, s{sT0}, s{sN}")
    e(f"s_xor_b32 s{sRT[1]}, s{sRT[0]}, 1")
    e(f"v_and_b32 v{t+9}, 15, v1")
    e(f"v_lshlrev_b32 v{vFLO}, 3, v{t+9}")
    e(f"v_lshlrev_b32 v{vCTLO}, 2, v1")
    e(f"s_lshr_b32 s{sT0}, s{sJ}, 1")
    e(f"s_mul_i32 s{sT0}, s{sT0}, 704")
    e(f"s_and_b32 s{sT1}, s{sJ}, 1")
    e(f"s_lshl_b32 s{sT2}, s{sT1}, 7")
    e(f"s_add_u32 s{sT2}, s{sT2}, s{sT0}")
    e(f"s_add_u32 s{sCOL[2]}, s{sT2}, 256")
    e(f"s_lshl_b32 s{sT1}, s{sT1}, 6")
    e(f"s_sub_u32 s{sT0}, s{sT0}, s{sT1}")
    e(f"s_add_u32 s{sT0}, s{sT0}, 576")
    e(f"s_lshl_b32 s{sCOL[1]}, s{sJ}, 7")
    e(f"s_add_u32 s{sT2}, s{sCOL[1]}, 2048")
    e(f"s_cmp_eq_u32 s{sTYP}, 0")
    e(f"s_cselect_b32 s{sCOL[1]}, s{sT2}, s{sCOL[1]}")
    e(f"s_cselect_b32 s{sCOL[2]}, s{sCOL[2]}, s{sT0}")
    e(f"s_lshl_b32 s{sT0}, s{sN}, 11")
    e(f"s_lshl_b32 s{sHST[1]}, s{sJ}, 12")
    e(f"s_add_u32 s{sHST[1]}, s{sHST[1]}, s{sT0}")
    e(f"s_add_u32 s{sHST[1]}, s{sHST[1]}, {QB}")
    for c in (0, 2):
        e(f"s_lshl_b32 s{sHST[c]}, s{sCOL[c]}, 5")
        e(f"s_add_u32 s{sHST[c]}, s{sHST[c]}, s{sT0}")
    e(f"s_and_b32 s{sT0}, s101, s{sN}")
    e(f"s_cmp_eq_u32 s{sT0}, 1")
    e(f"s_cselect_b32 s{sHST[2]}, {OOB}, s{sHST[2]}")
    e(f"s_lshl_b32 s{sT0}, s{sCB}, 7")
    e(f"s_mul_i32 s{sB2}, s{sW}, {22 * 16 * 1024}")
    e(f"s_add_u32 s{sB2}, s{sB2}, s{sT0}")
    e(f"s_lshl_b32 s{sBO}, s{sW}, 17")
    e(f"s_add_u32 s{sBO}, s{sBO}, s{sT0}")
    e(f"s_lshl_b32 s{sXR}, s{sRB2}, 16")
    e(f"s_add_u32 s{sXR}, s{sXR}, s{sT0}")
    e(f"s_add_u32 s{sXR+1}, s{sXR}, 32768")
    e(f"s_mul_i32 s{sHA}, s{sRB2}, 172")
    e(f"s_mul_i32 s{sT0}, s{sW}, 22")
    e(f"s_add_u32 s{sHA}, s{sHA}, s{sT0}")
    e(f"s_lshl_b32 s{sHA}, s{sHA}, 10")
    e(f"s_cmp_eq_u32 s{sW}, 3")
    e(f"s_cselect_b32 s{sHA2}, {OOB}, s{sHA}")
    e(f"s_lshl_b32 s{sPQ}, s{sRB2}, 6")
    e(f"s_lshl_b32 s{sT0}, s{sW}, 3")
    e(f"s_add_u32 s{sPQ}, s{sPQ}, s{sT0}")
    e(f"s_lshl_b32 s{sPQ}, s{sPQ}, 10")
    e(f"s_add_u32 s{sPQ}, s{sPQ}, {QB}")
    e(f"s_mul_i32 s{sKV}, s{sW}, {8 * KVH}")
    e(f"s_add_u32 s{sKV}, s{sKV}, {KVB}")
    if STAMP: e("v_writelane_b32 v255, s2, 63")
    e(f"s_lshl_b32 s{sFL}, s{sRB2}, 2")
    e(f"s_add_u32 s{sFL}, s{sFL}, s{sW}")
    e(f"s_lshl_b32 s{sFL}, s{sFL}, 7")
    e(f"s_add_u32 s{sFL}, s{sFL}, {FLB}")
    e(f"s_lshl_b32 s{sKF}, s{sW}, 10")
    e(f"s_add_u32 s{sKF}, s{sKF}, {KFB}")

def I(t, c=1): return ("i", t, c)
def setup3_ops():
    L = [I(f"v_add_u32 v{vBT}, s{sBL}, v247"), I(f"v_xor_b32 v{vBT+1}, 64, v{vBT}")]
    for r in (1, 2):
        L += [I(f"v_add_u32 v{vBT+2*r}, {65536*r}, v{vBT}"), I(f"v_add_u32 v{vBT+2*r+1}, {65536*r}, v{vBT+1}")]
    L += [I(f"v_lshrrev_b32 v{vXD}, 5, v1"),
          I(f"v_lshlrev_b32 v{vXD+1}, 8, v{vXD}"),
          I(f"v_lshl_add_u32 v{vXD+1}, v{vFLO}, 1, v{vXD+1}"),
          I(f"v_lshlrev_b32 v{vXD}, 4, v{vXD}"),
          I(f"v_add_u32 v{vXD}, 1024, v{vXD}"),
          I(f"v_cndmask_b32 v{vKVO}, v{vXD+1}, v{vXD}, {sr(mB4,2)}"),
          I(f"v_add_u32 v{vXD+1}, 480, v{vXD+1}"),
          I(f"v_cndmask_b32 v{vXD+2}, v{vXD+1}, v{vXD}, {sr(mB4,2)}"),
          I(f"v_lshrrev_b32 v{vXD}, 3, v0"),
          I(f"v_and_b32 v{vXD+1}, 7, v0"),
          I(f"v_lshlrev_b32 v{vXD+1}, 4, v{vXD+1}"),
          I(f"v_lshl_add_u32 v{vXO}, v{vXD}, 10, v{vXD+1}")]
    return L

def read_x1(g, p, u, t):
    off = XPAGE[p % 5] * PAGE
    if off < 65536:
        g.ds(f"ds_read_b128 {ar(X(t, p, u))}, v{vXA[t] + u} offset:{off}", ("X", p, u))
    else:
        g.e(f"v_add_u32 v{vTMP}, {off}, v{vXA[t] + u}")
        g.ds(f"ds_read_b128 {ar(X(t, p, u))}, v{vTMP}", ("X", p, u))
def read_x(g, p, u):
    for t in range(2): read_x1(g, p, u, t)
def read_w(g, step):
    gi, u = step >> 2, step & 3
    b = WF[step % 3]
    pg = WPAGE[gi]
    off = (pg & 7) * PAGE + (u & ~1) * 2048
    a = vWA + 2 * (pg >> 3) + (u & 1)
    g.ds(f"ds_read_b64_tr_b16 v[{b}:{b+1}], v{a} offset:{off}", ("Wf", step))
    g.ds(f"ds_read_b64_tr_b16 v[{b+2}:{b+3}], v{a} offset:{off + 512}", ("Wf", step))

def flag_store(addr_ops, tag):
    return [("blk", addr_ops, 6), ("waitvm", tag),
            ("blk", ["s_mov_b64 exec, 1",
                     ("vm", f"buffer_store_dwordx2 v[{vNON}:{vNON+1}], v{vZERO}, {sr(SWS)}, s{sT1} offen sc1"),
                     "s_mov_b64 exec, -1"], 4)]
def flag_addr(kind):
    return [f"s_lshl_b32 s{sT1}, s{sRB}, 1", f"s_add_u32 s{sT1}, s{sT1}, s{sM}", f"s_lshl_b32 s{sT1}, s{sT1}, 2",
            f"s_lshr_b32 s{sT2}, s{sJ}, 1", f"s_add_u32 s{sT1}, s{sT1}, s{sT2}", f"s_lshl_b32 s{sT1}, s{sT1}, 4",
            f"s_and_b32 s{sT2}, s{sJ}, 1", f"s_lshl_b32 s{sT2}, s{sT2}, 1", f"s_add_u32 s{sT1}, s{sT1}, s{sT2}",
            f"s_add_u32 s{sT1}, s{sT1}, s{sN}", f"s_add_u32 s{sT1}, s{sT1}, {kind * 4}", f"s_lshl_b32 s{sT1}, s{sT1}, 3",
            f"s_add_u32 s{sT1}, s{sT1}, {FLB}"]
def kvflag_addr():
    return [f"s_lshl_b32 s{sT1}, s{sRB}, 2", f"s_add_u32 s{sT1}, s{sT1}, s{sW}", f"s_lshl_b32 s{sT1}, s{sT1}, 3",
            f"s_lshl_b32 s{sT2}, s{sJ}, 9", f"s_add_u32 s{sT1}, s{sT1}, s{sT2}", f"s_add_u32 s{sT1}, s{sT1}, {KFB}"]
def bfr(d, s): return [I(f"v_cvt_pk_bf16_f32 v{d}, v{s}, v{s}"), I(f"v_and_b32 v{d}, 0xffff0000, v{d}")]
SEL = ["op_sel:[0,0] op_sel_hi:[1,0]", "op_sel:[0,1] op_sel_hi:[1,1]"]
SEL3 = ["op_sel:[0,0,0] op_sel_hi:[1,0,1]", "op_sel:[0,1,0] op_sel_hi:[1,1,1]"]

def epilogue(c, typ, fast):
    L = []
    A = ACCS[c & 1]
    corient = (typ == 0 and c < 2)
    t = T; cs = vCSV
    bau = [I(f"v_add_f32 v{cs}, v{cs}, v{vCSP}"),
           I(f"v_cvt_pk_bf16_f32 v{t}, -v{cs}, -v{cs}"),
           I(f"v_and_b32 v{t}, 0xffff0000, v{t}"),
           I(f"v_sub_f32 v{t}, -v{cs}, v{t}"),
           I(f"v_cvt_pk_bf16_f32 v{t}, -v{cs}, v{t}"),
           I(f"v_cndmask_b32 v{BAUG}, v{t}, 0, {sr(mH,2)}")]
    if c == 0:
        L += [I(f"v_cndmask_b32 v{t+1}, v{S1}, v{S1+1}, {sr(mB4,2)}")]
        L += [I(f"v_add_f32 v{Q0+r}, v{Q0+r}, v{Q1+r}") for r in range(4)]
        L += [I(f"v_cndmask_b32 v{t+2}, v{Q0}, v{Q0+1}, {sr(mB0,2)}"),
              I(f"v_cndmask_b32 v{t+3}, v{Q0+2}, v{Q0+3}, {sr(mB0,2)}"),
              I(f"v_cndmask_b32 v{t+2}, v{t+2}, v{t+3}, {sr(mB1,2)}"),
              I(f"v_mov_b32 v{t+3}, v{t+2}"),
              I(f"v_mul_f32 v{t+1}, 0x3b000000, v{t+1}"),
              I(f"v_cvt_pk_bf16_f32 v{AAUG[0]}, v{t+1}, v{t+1}"),
              I(f"v_permlane32_swap_b32 v{t+2}, v{t+3}"),
              I(f"v_add_f32 v{t+2}, v{t+2}, v{t+3}"),
              I(f"v_mul_f32 v{t+2}, 0x3b000000, v{t+2}"),
              I(f"v_fma_f32 v{t+2}, -v{t+1}, v{t+1}, v{t+2}"),
              I(f"v_max_f32 v{t+2}, 0, v{t+2}")]
        L += bfr(t+2, t+2)
        L += [I(f"v_add_f32 v{t+2}, 0x%08x, v{t+2}" % f2u(1e-5))]
        L += bfr(t+2, t+2)
        L += [I(f"v_sqrt_f32 v{t+2}, v{t+2}", 2), ("ds", f"ds_write_b32 v{vSTO}, v{AAUG[0]}", "fw")]
        L += bfr(t+2, t+2)
        L += [I(f"v_rcp_f32 v{RL}, v{t+2}", 2), bau[0]]
        L += [("ds", f"ds_write_b32 v{vSTO}, v{RL} offset:512", "fw"), ("bar", bau[1:])]
        L += [("ds", f"ds_read_b32 v{AAUG[1]}, v{vSTX}", "fr"), ("ds", f"ds_read_b32 v{RL+1}, v{vSTX} offset:512", "fr")]
        if typ == 0:
            for tt in range(2):
                for q in range(4):
                    L += [("ds", f"ds_read_b128 {vr(RROW[tt] + 4*q)}, v{vRR+tt} offset:{32*q}", "fr")]
        L += [("delay", 1), ("waitlg", "fr")]
    else:
        L += bau
    for tt in range(2):
        a, b = (vr(AAUG[tt]), vr(BAUG)) if corient else (vr(BAUG), vr(AAUG[tt]))
        L += [("mfma", f"v_mfma_f32_32x32x16_bf16 {vr(A[tt],16)}, {a}, {b}, {vr(A[tt],16)}")]
    L += [("delay", 1)]
    def pk(op, d, a, b, c3=None, mod=""):
        s = f"{op} v[{d}:{d+1}], v[{a}:{a+1}], {b}"
        if c3 is not None: s += f", v[{c3}:{c3+1}]"
        return s + (" " + mod if mod else "")
    def cvt(tt, d): return [I(f"v_cvt_pk_bf16_f32 v{d+q}, v{A[tt]+2*q}, v{A[tt]+2*q+1}") for q in range(8)]
    def store(tt, d, stride, tag):
        return [("st", [([f"s_mul_i32 s{sT3}, s{sRT[tt]}, {stride}", f"s_add_u32 s{sT3}, s{sT3}, s{sHST[c]}"],
                         f"buffer_store_dwordx4 {vr(d)}, v{vL16}, {sr(SWS)}, s{sT3} offen sc1", tag, True),
                        ([], f"buffer_store_dwordx4 {vr(d+4)}, v{vL16}, {sr(SWS)}, s{sT3} offen offset:1024 sc1", tag, False)])]
    tag = "st%d" % c
    if c == 1 and typ == 1:
        L += [("burst", [pk("v_pk_mul_f32", t+16*tt+2*q, A[tt]+2*q, f"v[{RLL}:{RLL+1}]", None, SEL[tt]) for tt in range(2) for q in range(8)])]
        for tt in range(2):
            for r in range(16):
                L += [I(f"v_exp_f32_e64 v{t+16*tt+r}, v{t+16*tt+r} clamp", 2), I(f"v_max_f32 v{A[tt]+r}, v{EPSR+tt}, v{A[tt]+r}")]
        L += [("burst", [pk("v_pk_fma_f32", A[tt]+2*q, A[tt]+2*q, f"v[{RL}:{RL+1}]", t+16*tt+2*q, SEL3[tt]) for tt in range(2) for q in range(8)])]
        for tt in range(2): L += cvt(tt, VF + 8*tt) + store(tt, VF + 8*tt, 32768, tag)
        L += [("delay", OPT["fdelay"])] + flag_store(flag_addr(1), tag)
    elif c == 0 and typ == 0:
        B = [pk("v_pk_mul_f32", A[tt]+2*q, A[tt]+2*q, f"v[{RROW[tt]+2*q}:{RROW[tt]+2*q+1}]") for tt in range(2) for q in range(8)]
        B += [pk("v_pk_mul_f32", t+16*tt+2*q, A[tt]+2*q, sr(sLOG, 2)) for tt in range(2) for q in range(8)]
        L += [("burst", B)]
        for tt in range(2):
            for r in range(16):
                L += [I(f"v_exp_f32_e64 v{t+16*tt+r}, v{t+16*tt+r} clamp", 2), I(f"v_max_f32 v{A[tt]+r}, s{sEPS}, v{A[tt]+r}")]
        L += [("burst", [pk("v_pk_add_f32", A[tt]+2*q, A[tt]+2*q, f"v[{t+16*tt+2*q}:{t+16*tt+2*q+1}]") for tt in range(2) for q in range(8)])]
        for tt in range(2): L += cvt(tt, PK + 8*tt)
        L += [I(f"v_mov_b32 v{ONES+r}, 0x3f803f80") for r in range(4)]
    elif c == 1 and typ == 0:
        B = [pk("v_pk_mul_f32", A[tt]+2*q, A[tt]+2*q, f"v[{RROW[tt]+2*q}:{RROW[tt]+2*q+1}]") for tt in range(2) for q in range(8)]
        B += [x[1] for tt in range(2) for x in cvt(tt, VF + 8*tt)]
        L += [("burst", B)]
        KVA, ZA = A[0], A[1]
        adr = [I(f"v_bfe_u32 v{t+16}, v1, 4, 1"), I(f"v_mul_u32_u24 v{t+16}, {KVH}, v{t+16}"),
               ("blk", [f"s_mul_i32 s{sT1}, s{sM}, 4352", f"s_mul_i32 s{sT2}, s{sN}, 2176", f"s_add_u32 s{sT1}, s{sT1}, s{sT2}",
                        f"s_add_u32 s{sT1}, s{sT1}, {M_KV}", f"v_add_u32 v{t+16}, s{sT1}, v{t+16}"], 5),
               I(f"v_lshrrev_b32 v{t+17}, 5, v1"),
               I(f"v_lshl_add_u32 v{t+18}, v{t+17}, 4, v{t+16}"), I(f"v_lshl_add_u32 v{t+16}, v{t+17}, 8, v{t+16}"),
               I(f"v_lshl_add_u32 v{t+16}, v{vFLO}, 1, v{t+16}"), I(f"v_lshlrev_b32 v{t+19}, 2, v0"),
               I(f"v_add_u32 v{t+20}, {M_KV}, v{t+19}")]
        ms = []
        for i in range(4): ms.append(f"v_mfma_f32_32x32x16_bf16 {vr(KVA,16)}, {vr(PK+4*i)}, {vr(VF+4*i)}, {'0' if i == 0 else vr(KVA,16)}")
        for i in range(4): ms.append(f"v_mfma_f32_32x32x16_bf16 {vr(ZA,16)}, {vr(PK+4*i)}, {vr(ONES)}, {'0' if i == 0 else vr(ZA,16)}")
        L += [("mfmas", ms, adr)]
        L += [I(f"v_cndmask_b32 v{t+r}, v{KVA+r}, v{KVA+8+r}, {sr(mB4,2)}") for r in range(8)]
        L += [("ds", f"ds_write_b128 v{t+16}, {vr(t)}", "fw"), ("ds", f"ds_write_b128 v{t+16}, {vr(t+4)} offset:512", "fw")]
        L += [I(f"v_cndmask_b32 v{t+8+r}, v{ZA+r}, v{ZA+8+r}, {sr(mB4,2)}") for r in range(8)]
        L += [("blk", ["s_mov_b32 exec_lo, 0x00010001", "s_mov_b32 exec_hi, 0x00010001",
                       ("ds", f"ds_write_b128 v{t+18}, {vr(t+8)} offset:1024", "fw"),
                       ("ds", f"ds_write_b128 v{t+18}, {vr(t+12)} offset:1056", "fw"),
                       "s_mov_b64 exec, -1"], 6), ("bar", setup3_ops())]
        L += [("ds", f"ds_read2st64_b32 v[{t+2*i}:{t+2*i+1}], v{t+20} offset0:{4*i} offset1:{17+4*i}", "fr") for i in range(5)]
        L += [("delay", 1), ("waitlg", "fr")]
        L += [I(f"v_add_f32 v{t+2*i}, v{t+2*i}, v{t+2*i+1}") for i in range(5)]
        its = []
        for i in range(4):
            prep = [f"s_mul_i32 s{sT3}, s{sJ}, 4352", f"s_add_u32 s{sT3}, s{sT3}, {KVB}"] if i == 0 else []
            its.append((prep, f"buffer_atomic_add_f32 v{t+2*i}, v{t+19}, {sr(SWS)}, s{sT3} offen offset:{1024*i}", "at", True))
        its.append(([f"s_add_u32 s{sT3}, s{sT3}, 4096", f"s_cmp_eq_u32 s{sW}, 0", f"s_cselect_b32 s{sT3}, s{sT3}, {OOB}"],
                    f"buffer_atomic_add_f32 v{t+8}, v{t+19}, {sr(SWS)}, s{sT3} offen", "at", False))
        L += [("st", its), ("delay", OPT["adelay"])] + flag_store(kvflag_addr(), "at")
    else:
        for tt in range(2):
            d = VF + 8*tt
            if fast: L += [I(pk("v_pk_mul_f32", A[tt]+2*q, A[tt]+2*q, f"v[{RL}:{RL+1}]", None, SEL[tt])) for q in range(8)]
            else: L += [I(f"v_mul_f32 v{A[tt]+r}, v{RL+tt}, v{A[tt]+r}") for r in range(16)]
            for hf in range(2):
                L += [I(f"v_cvt_pk_bf16_f32 v{d+q}, v{A[tt]+2*q}, v{A[tt]+2*q+1}") for q in range(4*hf, 4*hf+4)]
                L += [I(f"v_pk_max_i16 v{d+q}, v{d+q}, 0") for q in range(4*hf, 4*hf+4)]
                if fast: L += [("st", [store(tt, d, 86 * 1024, tag)[0][1][hf]])]
            if not fast: L += store(tt, d, 86 * 1024, tag)
        kind = 0 if c == 0 else (2 if typ == 0 else 3)
        if c == 0:
            L += [I(f"v_mul_f32 v{RLL+tt}, s{sLOG}, v{RL+tt}") for tt in range(2)]
            L += [I(f"v_rcp_f32 v{EPSR+tt}, v{RL+tt}", 2) for tt in range(2)]
            L += setup3_ops()
            L += [I(f"v_mul_f32 v{EPSR+tt}, s{sEPS}, v{EPSR+tt}") for tt in range(2)]
        L += [("delay", OPT["fdelay"] - 5)] if not fast else [("late",)]
        L += flag_store(flag_addr(kind), tag)
    return L

class Sched:
    def __init__(self, g, typ):
        self.g = g; self.typ = typ
        self.q = []; self.side = []; self.wait_bar = False; self.delay = 0
        self.wq = []; self.sq = []; self.aq = []; self.bq = []
        self.cur = None
        self.bar = -1; self.free_stage = 0; self.tok = 0.0
    def adv(self, cy): self.tok = min(2.0, self.tok + cy / OPT["period"])
    def pick(self, force=False):
        if self.cur is not None: return self.cur
        if self.sq: return self.sq
        if self.wq and self.wq[0][0] <= self.bar and (self.tok >= 1 or force or self.wq[0][2][2][1] <= self.bar + 4): return self.wq
        if self.tok < 1 and not force: return None
        if self.aq and self.aq[0][0] < self.free_stage: return self.aq
        if self.bq and self.bq[0][0] <= self.bar and not self.wq: return self.bq
        return None
    def vm(self, force=False):
        q = self.pick(force)
        if q is None: return 0
        it = q.pop(0)[2] if q is not self.sq else q.pop(0)
        emit_item(self.g, it)
        self.cur = q if it[3] else None
        self.tok -= 1
        return len(it[0]) + 2
    def emit1(self, op):
        g = self.g; k = op[0]
        if k == "i": g.e(op[1])
        elif k == "ds": g.ds(op[1], op[2])
        elif k == "vm": g.vmem(op[1], op[2] if len(op) > 2 else "misc")
        elif k == "mfma": g.e(op[1])
        elif k == "waitlg": g.wait(lg=op[1])
        elif k == "waitvm":
            if VERB: print("   typ", self.typ, "waitvm", op[1], "at step", self.step)
            while self.sq or self.cur is not None: self.vm(True)
            g.wait(vm=op[1])
        elif k in ("blk", "burst"):
            for x in op[1]:
                if isinstance(x, str): g.e(x)
                else: self.emit1(x)
        elif k == "st":
            if VERB: print("   typ", self.typ, "st", op[1][0][2], "at step", self.step)
            self.sq += op[1]
    def cost(self, op):
        k = op[0]
        if k in ("i", "blk"): return op[2]
        return {"ds": 1, "vm": 2, "waitlg": 1, "waitvm": 1, "st": 0}[k]
    def tick(self):
        if self.delay > 0: self.delay -= 1
    def fill(self, slots):
        slots = min(slots, 4)
        while slots > 0:
            if self.side: q = self.side
            elif self.q and not self.wait_bar and self.delay == 0: q = self.q
            else: return
            op = q[0]
            if op[0] in ("mfma", "mfmas", "late", "burst"): return
            if op[0] == "bar": q.pop(0); self.wait_bar = True; self.side = list(op[1]); continue
            if op[0] == "delay": q.pop(0); self.delay = op[1]; return
            if op[0] == "i" and self.cost(op) > slots: return
            q.pop(0); slots -= self.cost(op); self.emit1(op)
    def big(self):
        while self.q and not self.side and self.q[0][0] in ("mfma", "mfmas", "burst") and not self.wait_bar and self.delay == 0:
            op = self.q.pop(0)
            if op[0] == "burst":
                for n, x in enumerate(op[1]):
                    self.g.e(x)
                    if n % 16 == 15: self.adv(72); self.vm()
            elif op[0] == "mfma":
                self.g.e(op[1]); self.adv(32); self.vm()
            else:
                self.side = list(op[2]); self.delay = 1
                for m in op[1]:
                    self.g.e(m); self.adv(32); self.fill(6 - self.vm())
                while self.side: self.emit1(self.side.pop(0))
                self.delay = 0
                return
    def drain(self, until_late=False):
        while self.side: self.emit1(self.side.pop(0))
        if self.wait_bar and self.q:
            self.g.wait(lg="fw"); self.g.e("s_barrier")
        self.wait_bar = False; self.delay = 0
        while self.q:
            op = self.q[0]
            if op[0] == "late":
                if until_late: return
                self.q.pop(0); continue
            self.q.pop(0)
            if op[0] == "bar":
                for x in op[1]: self.emit1(x)
                self.g.wait(lg="fw"); self.g.e("s_barrier"); continue
            if op[0] == "delay": continue
            if op[0] == "mfmas":
                for m in op[1]: self.g.e(m)
                for x in op[2]: self.emit1(x)
                continue
            self.emit1(op)
            if op[0] == "st":
                while self.sq or (self.cur is not None and self.cur is not self.sq): self.vm(True)

npoll = [0]
def poll(g, first_tag, reload, check):
    if OPT["dbg"] & 1: return
    n = npoll[0]; npoll[0] += 1
    g.wait(vm=first_tag)
    g.e(f"s_mov_b32 s{sT2}, 0")
    check()
    g.e(f"s_cbranch_scc1 L_POK{n}")
    g.label(f"L_PL{n}")
    if OPT["slp"]: g.e("s_sleep %d" % OPT["slp"])
    g.e(reload)
    g.e("s_waitcnt vmcnt(0)")
    g.e(f"s_add_u32 s{sT2}, s{sT2}, 1")
    g.e(f"s_cmp_gt_u32 s{sT2}, {OPT['spin']}")
    g.e(f"s_cbranch_scc1 L_POK{n}")
    check()
    g.e(f"s_cbranch_scc0 L_PL{n}")
    g.label(f"L_POK{n}")
    g.e("s_nop 4")
    if STAMP == 1: g.e(f"v_writelane_b32 v255, s{sT2}, {52 + n % 5}")

CTL_LD = f"buffer_load_dword v{vCTL}, v{vCTLO}, {sr(SDBG)}, 0 offen sc1"
FLG_LD = f"buffer_load_dwordx2 v[{vFLG}:{vFLG+1}], v{vFLO}, {sr(SWS)}, s{sFL} offen sc1"
KFL_LD = f"buffer_load_dwordx4 {vr(vKFL)}, v{vL16}, {sr(SWS)}, s{sKF} offen sc1"
def flag_check(g, mask):
    def f():
        g.e(f"v_cmp_eq_u64 vcc, v[{vFLG}:{vFLG+1}], {sr(sNON,2)}")
        g.e(f"s_and_b32 vcc_lo, vcc_lo, {mask}")
        g.e(f"s_cmp_eq_u32 vcc_lo, {mask}")
    return f

def body(g, typ):
    e = g.e
    S = Sched(g, typ)
    S.wq = [(-1, 0, it) for it in g.wq0]
    S.cur = S.wq if g.cur_open else None
    for p in range(4, 8):
        S.wq += [(p - 4, 0, it) for it in it_x(p)] + [(-1, 0, it) for it in it_w(typ, p)]
    for gi in range(8, 24): S.wq += [(WAV[gi], 0, it) for it in it_w(typ, gi)]
    S.bq = [(BAV[s], 0, it) for s in range(20) for it in it_b(s)]
    if OPT["dbg"] & 8: S.bq = []
    if OPT["dbg"] & 64: S.wq = []
    for gi in range(24):
        c, p = gi >> 3, gi & 7
        corient = (typ == 0 and c < 2)
        A = ACCS[c & 1]
        for u in range(4):
            step = gi * 4 + u
            first = (p == 0 and u == 0)
            wf = vr(WF[step % 3])
            S.tick(); S.step = step
            if first and c > 0:
                e(f"v_cndmask_b32 v{vCSV}, v{CS}, v{CS+1}, {sr(mB4,2)}")
            S.big()
            if (u % 2 == 0 or p == 7) and not OPT["dbg"] & 16:
                e(f"v_mfma_f32_16x16x32_bf16 {vr(CS)}, {vr(MO)}, {wf}, {'0' if first else vr(CS)}"); S.adv(16)
            if c == 0:
                x0 = X(0, p, u)
                e(f"v_mfma_f32_4x4x4_16b_bf16 {vr(Q0)}, a[{x0}:{x0+1}], a[{x0}:{x0+1}], {'0' if first else vr(Q0)}")
                e(f"v_mfma_f32_4x4x4_16b_bf16 {vr(Q1)}, a[{x0+2}:{x0+3}], a[{x0+2}:{x0+3}], {'0' if first else vr(Q1)}")
                e(f"v_mfma_f32_16x16x32_bf16 {vr(S1)}, {vr(MO)}, {ar(x0)}, {'0' if first else vr(S1)}"); S.adv(40)
                read_w(g, step + 2)
            def M(t):
                cc = "0" if first else vr(A[t], 16)
                a, b = (ar(X(t, p, u)), wf) if corient else (wf, ar(X(t, p, u)))
                e(f"v_mfma_f32_32x32x16_bf16 {vr(A[t],16)}, {a}, {b}, {cc}"); S.adv(32)
            M(0)
            sl = 6
            if c == 0:
                if step + 2 < 32: read_x1(g, (step + 2) >> 2, (step + 2) & 3, 0); sl -= 1
                sl -= S.vm()
            elif step + 2 < 96:
                read_w(g, step + 2); sl -= 2
            S.fill(sl)
            M(1)
            sl = 5
            if step + 2 < 32: read_x1(g, (step + 2) >> 2, (step + 2) & 3, 1); sl -= 1
            if p == 7 and u == 2:
                g.ds(f"ds_read_b32 v{vCSP}, v{vCSR}", "csp"); sl -= 1
            sl -= S.vm()
            if u == 1: sl -= 1
            if p == 6 and u == 3:
                e(f"v_cndmask_b32 v{vTMP}, v{CS}, v{CS+1}, {sr(mB4,2)}")
                g.ds(f"ds_write_b32 v{vCSW}, v{vTMP}", "fw"); sl -= 2
            if c == 2 and u == 3: S.free_stage = p + 1
            if u == 1:
                while any(x[2][2][1] <= gi + 1 for x in S.wq):
                    assert S.vm(True)
                g.st.mark2(g)
                g.wait(vm=[("W", gi + 1), ("X", gi + 1)], lg=["fw", ("Wf", step + 1), ("X", (step+1) >> 2, (step+1) & 3)])
                if not OPT["dbg"] & 4: e("s_barrier")
                g.st.mark2(g)
                S.bar = gi; S.wait_bar = False
                if gi == 2: publish_ctl(g, typ)
                if gi == 5: g.vmem(CTL_LD, "ctl")
                if gi == 9:
                    def chk():
                        e(f"v_readlane_b32 s{sNON}, v{vCTL}, 16")
                        e(f"v_readlane_b32 s{sNON+1}, v{vCTL}, 17")
                        if typ == 0:
                            e(f"v_readlane_b32 vcc_lo, v{vCTL}, s{sJ}")
                            e(f"s_min_u32 vcc_lo, vcc_lo, s{sNON}")
                            e(f"s_cmp_lg_u32 vcc_lo, 0")
                        else:
                            e(f"s_cmp_lg_u32 s{sNON}, 0")
                    poll(g, "ctl", CTL_LD, chk)
                    e(f"v_mov_b32 v{vNON}, s{sNON}")
                    e(f"v_mov_b32 v{vNON+1}, s{sNON+1}")
                if gi == OPT["hpoll"] - OPT["hlead"]: g.vmem(FLG_LD, "flg")
                if gi == OPT["hpoll"]:
                    poll(g, "flg", FLG_LD, flag_check(g, 0xf))
                    S.aq += [((2*s+t) >> 3, 0, it_a(s, t)) for s in range(8) for t in range(2)]
            elif step + 1 < 96:
                g.wait(lg=[("Wf", step + 1), ("X", (step+1) >> 2, (step+1) & 3)])
            S.fill(sl + OPT["fs"] - 5)
        if p == 7:
            g.st.mark(g)
            if c < 2:
                n = len([op for op in S.q if op[0] == "i"])
                if n: print("  typ", typ, "chunk", c, "leftover valu", n)
                S.drain()
                g.wait(lg="csp")
                if not OPT["dbg"] & 2: S.q += epilogue(c, typ, False)
    if OPT["dbg"] & 1:
        stamp_flush(g); e("s_endpgm"); return
    n = len([op for op in S.q if op[0] == "i"])
    if n: print("  typ", typ, "chunk 2 leftover valu", n)
    k = len(S.q)
    while k > 0 and S.q[k-1][0] in ("blk", "waitvm", "delay") and len(S.q) - k < 4: k -= 1
    late = S.q[k:] if len(S.q) - k >= 3 else []
    if late: S.q = S.q[:k]; print("  typ", typ, "late chunk-1 flag")
    S.drain()
    while S.sq or S.cur is not None: assert S.vm(True)
    g.wait(lg="csp")
    e(f"v_cndmask_b32 v{vCSV}, v{CS}, v{CS+1}, {sr(mB4,2)}")
    ep = epilogue(2, typ, True)
    i = [k for k, op in enumerate(ep) if op[0] == "delay"][0]
    S.q = ep[:i]
    S.drain()
    if S.aq: print("  typ", typ, "late A loads", len(S.aq))
    while S.aq: assert S.vm(True)
    S.q = late + ep[i:]
    S.drain(until_late=True)
    S.cur = None
    late2 = S.q; S.q = []
    g.st.mark(g)
    g.wait(lg_all=True)
    e("s_barrier")
    S.bar = 24; S.free_stage = 8
    sv = OPT["period"]; OPT["period"] = OPT["p2"]
    phase2(g, S, late2)
    OPT["period"] = sv

def publish_ctl(g, typ):
    if typ != 0: return
    e = g.e
    e(f"s_cmp_eq_u32 s{sZ}, 1")
    e("s_cbranch_scc0 L_NOZF")
    e(f"s_lshl_b32 s{sT1}, s{sJ}, 2")
    e(f"v_mov_b32 v{vTMP}, 1")
    e("s_mov_b64 exec, 1")
    g.vmem(f"buffer_store_dword v{vTMP}, v{vZERO}, {sr(SDBG)}, s{sT1} offen sc1", counted=False)
    e("s_mov_b64 exec, -1")
    g.label("L_NOZF")

def phase2(g, S, late2):
    e = g.e
    NS = 30
    def read_b(s):
        pg = BPAGE[s]; rng = pg >> 3; off = (pg & 7) * PAGE
        b = BF[s % 3]
        return [lambda ct=ct, k=k: g.ds(f"ds_read_b64_tr_b16 v[{b+4*ct+2*k}:{b+4*ct+2*k+1}], v{vBT+2*rng+ct} offset:{off + k*1024}", ("Bf", s))
                for ct in range(2) for k in range(2)]
    def ensure(q, s):
        while any(x[2][2][1] == s for x in q):
            if S.cur is None and q is S.bq and S.aq:
                it = q.pop(0)[2]; emit_item(g, it); S.cur = q if it[3] else None
            else:
                assert S.vm(True)
    def oprep(h):
        k = KVR[h]; s = 8 + h
        L = [("waitvm", [("KV", h), ("A", s)])]
        L += [I(f"v_cvt_pk_bf16_f32 v{k+q}, v{k+2*q}, v{k+2*q+1}") for q in range(4)]
        L += [("mfma", f"v_mfma_f32_32x32x16_bf16 {vr(ND[t],16)}, {vr(k)}, {ar(areg(s, t))}, 0") for t in range(2)]
        L += [("gap",)]
        for t in range(2): L += [I(f"v_add_f32 v{ND[t]+8}, s{sEPS}, v{ND[t]+8}")]
        for t in range(2): L += [I(f"v_rcp_f32 v{ND[t]+8}, v{ND[t]+8}", 2)]
        for t in range(2):
            d = ND[t]
            L += [I(f"v_mul_f32 v{d+r}, v{d+r}, v{d+8}") for r in range(8)]
            L += [I(f"v_cvt_pk_bf16_f32 v{OF[h & 1][t]+q}, v{d+2*q}, v{d+2*q+1}") for q in range(4)]
        return L
    ensure(S.bq, 0)
    g.wait(vm=[("B", 0)])
    for f in read_b(0): f()
    for s in range(NS):
        kind, idx = step_kind(s)
        if s == OPT["qld"]:
            g.vmem(FLG_LD, "flg"); g.vmem(KFL_LD, "kfl")
        if s == OPT["pub"]:
            g.st.mark(g)
            S.q = late2; S.drain()
            g.st.mark(g)
            poll(g, "flg", FLG_LD, flag_check(g, 0xf0))
            for s2 in range(8, 16):
                for t in range(2): emit_item(g, it_a(s2, t))
            g.st.mark(g)
            def chk():
                e(f"v_cmp_eq_u64 vcc, v[{vKFL}:{vKFL+1}], {sr(sNON,2)}")
                e(f"v_cmp_eq_u64 {sr(mB0,2)}, v[{vKFL+2}:{vKFL+3}], {sr(sNON,2)}")
                e(f"s_and_b64 vcc, vcc, {sr(mB0,2)}")
                e("s_cmp_eq_u64 vcc, -1")
            poll(g, "kfl", KFL_LD, chk)
            for h in range(8):
                e(f"s_add_u32 s{sT3}, s{sKV}, {h * KVH}")
                for t in range(2):
                    g.vmem(f"buffer_load_dwordx4 {vr(KVR[h] + 4*t)}, v{vXD+2 if t else vKVO}, {sr(SWS)}, s{sT3} offen offset:{32*t} sc1", ("KV", h))
            g.st.mark(g)
        if s == OPT["h2ld"]:
            while S.cur is not None: S.vm(True)
            g.vmem(FLG_LD, "flg")
        if s == 8:
            for op in oprep(0):
                if op[0] != "gap": S.emit1(op)
            g.st.mark(g)
        if s == OPT["h2chk"]:
            while S.cur is not None: S.vm(True)
            poll(g, "flg", FLG_LD, flag_check(g, 0xff00))
            g.st.mark(g)
            S.aq += [(0, 0, it_a(s2, t)) for s2 in range(16, 30) for t in range(2)]
            for _ in range(8): S.vm(True)
        if s >= 1 and s - 1 + 20 < NS:
            S.bq += [(24, 0, it) for it in it_b(s - 1 + 20)]
        rb = []
        if s + 1 < NS:
            ensure(S.bq, s + 1)
            g.wait(vm=[("B", s + 1)])
            rb = read_b(s + 1)
        ops = []
        if 8 <= s < 15: ops = oprep(s - 7)
        if kind == "h":
            ensure(S.aq, s)
            g.wait(vm=[("A", s)], lg=[("Bf", s)])
        else:
            g.wait(lg=[("Bf", s)])
        b = BF[s % 3]
        mi = 0
        for ct in range(2):
            for t in range(2):
                acc = vr(ACC2 + 32 * ct + 16 * t, 16)
                act = ar(areg(s, t)) if kind == "h" else vr(OF[idx & 1][t])
                e(f"v_mfma_f32_32x32x16_bf16 {acc}, {vr(b+4*ct)}, {act}, {'0' if s == 0 else acc}"); S.adv(32)
                if mi == 0:
                    while ops and ops[0][0] != "gap":
                        op = ops.pop(0); S.emit1(op)
                        if op[0] == "mfma":
                            S.adv(32)
                            if rb: rb.pop(0)()
                            if rb: rb.pop(0)()
                    if ops: ops.pop(0)
                    elif rb: rb.pop(0)(); rb.pop(0)()
                    S.vm(s >= OPT["h2chk"])
                elif mi == 1:
                    while rb: rb.pop(0)()
                    S.vm(s >= OPT["h2chk"])
                else:
                    S.vm(s >= OPT["h2chk"])
                    n = (len(ops) + 1) // 2 if mi == 2 else len(ops)
                    for _ in range(n): S.emit1(ops.pop(0))
                mi += 1
        if s == 20:
            g.vmem(f"buffer_load_dwordx4 {vr(84)}, v{vXO}, {sr(SX)}, s{sXR} offen", "xr")
            g.vmem(f"buffer_load_dwordx4 {vr(88)}, v{vXO}, {sr(SX)}, s{sXR+1} offen", "xr")
        if s == 24:
            t = T
            e(f"v_and_b32 v{t}, 31, v1")
            e(f"v_lshrrev_b32 v{t+1}, 3, v{t}")
            e(f"v_lshlrev_b32 v{t+1}, 13, v{t+1}")
            e(f"v_and_b32 v{t+2}, 7, v1")
            e(f"v_lshl_add_u32 v{t+1}, v{t+2}, 8, v{t+1}")
            e(f"v_add_u32 v{t+1}, s{sBL}, v{t+1}")
            e(f"v_lshrrev_b32 v{t+3}, 5, v1")
            for q in range(4):
                e(f"v_add_u32 v{t+4}, {2*q}, v{t+3}")
                e(f"v_xor_b32 v{t+4}, v{t+4}, v{t+2}")
                e(f"v_lshl_add_u32 v{t+8+q}, v{t+4}, 4, v{t+1}")
            e(f"v_lshrrev_b32 v{t}, 6, v0")
            e(f"v_lshlrev_b32 v{t}, 13, v{t}")
            e(f"v_bfe_u32 v{t+1}, v0, 3, 3")
            e(f"v_lshl_add_u32 v{t}, v{t+1}, 8, v{t}")
            e(f"v_lshlrev_b32 v{t+2}, 1, v{t+2}")
            e(f"v_xor_b32 v{t+2}, v{t+2}, v{t+1}")
            e(f"v_lshl_add_u32 v{t+4}, v{t+2}, 4, v{t}")
            e(f"v_xor_b32 v{t+5}, 16, v{t+4}")
        if s == 27:
            g.wait(vm="xr")
            for tt in range(2):
                for q in range(4):
                    e(f"v_lshlrev_b32 v{92+8*tt+2*q}, 16, v{84+4*tt+q}")
                    e(f"v_and_b32 v{92+8*tt+2*q+1}, 0xffff0000, v{84+4*tt+q}")
        if s in (15, 29): g.st.mark(g)
    assert not S.aq and not S.bq
    t = T
    for ct in range(2):
        for tt in range(2):
            for q in range(4):
                a = ACC2 + 32 * ct + 16 * tt + 4 * q
                g.ds(f"ds_write_b128 v{t+8+q}, {vr(a)} offset:{tt * 4 * PAGE + ct * 128}", "rw")
    g.wait(lg_all=True)
    e("s_barrier")
    R = ACC2
    for tt in range(2):
        for w in range(4):
            for k in range(2):
                d = R + tt * 32 + w * 8 + k * 4
                g.ds(f"ds_read_b128 {vr(d)}, v{t+4+k} offset:{tt * 4 * PAGE + w * 2048}", ("rr", tt))
    for tt in range(2):
        g.wait(lg=[("rr", tt)])
        d = R + tt * 32
        for q in range(4):
            e(f"v_pk_add_f32 v[{d+2*q}:{d+2*q+1}], v[{d+2*q}:{d+2*q+1}], v[{d+8+2*q}:{d+8+2*q+1}]")
            e(f"v_pk_add_f32 v[{d+16+2*q}:{d+16+2*q+1}], v[{d+16+2*q}:{d+16+2*q+1}], v[{d+24+2*q}:{d+24+2*q+1}]")
        for q in range(4):
            e(f"v_pk_add_f32 v[{d+2*q}:{d+2*q+1}], v[{d+2*q}:{d+2*q+1}], v[{92+8*tt+2*q}:{92+8*tt+2*q+1}]")
        for q in range(4):
            e(f"v_pk_add_f32 v[{d+2*q}:{d+2*q+1}], v[{d+2*q}:{d+2*q+1}], v[{d+16+2*q}:{d+16+2*q+1}]")
        for q in range(4):
            e(f"v_cvt_pk_bf16_f32 v{d+8+q}, v{d+2*q}, v{d+2*q+1}")
        g.vmem(f"buffer_store_dwordx4 {vr(d+8)}, v{vXO}, {sr(SOUT)}, s{sXR+tt} offen", "o")
    stamp_flush(g)
    e("s_endpgm")

def stamp_flush(g):
    e = g.e
    if STAMP:
        g.st.mark(g)
        e("s_waitcnt vmcnt(0)")
        g.st.mark(g)
        e(f"v_readlane_b32 s{sT0}, v255, 63")
        e(f"s_lshl_b32 s{sT0}, s{sT0}, 2")
        e(f"s_add_u32 s{sT0}, s{sT0}, s{sW}")
        e(f"s_lshl_b32 s{sT0}, s{sT0}, 8")
        e(f"s_add_u32 s{sT0}, s{sT0}, {STB}")
        e("v_lshlrev_b32 v254, 2, v1")
        e(f"buffer_store_dword v255, v254, {sr(SWS)}, s{sT0} offen")

def gen():
    g = Gen(); g.st = Stamps(); e = g.e
    prologue(g)
    g.st.mark(g)
    items = []
    for p in range(4): items += it_x(p) + it_w(0, p)
    pre = OPT["pre"]
    for it in items[:min(12, pre)]: emit_item(g, it)
    setup1(g)
    if OPT["dpf"]:
        e("v_lshlrev_b32 v252, 7, v1")
        e(f"s_mul_i32 s{sT1}, s2, 5504")
        e(f"s_cmp_eq_u32 s{sW}, 0")
        e(f"s_cselect_b32 s{sT1}, s{sT1}, {OOB}")
        e("s_mov_b32 exec_hi, 0x7ff")
        g.vmem(f"buffer_load_dword v253, v252, {sr(SW2)}, s{sT1} offen", "pf")
        e(f"s_lshl_b32 s{sT1}, s2, 11")
        e(f"s_cmp_eq_u32 s{sW}, 1")
        e(f"s_cselect_b32 s{sT1}, s{sT1}, {OOB}")
        e("s_mov_b64 exec, 0xffff")
        g.vmem(f"buffer_load_dword v253, v252, {sr(SWO)}, s{sT1} offen", "pf")
        e("s_mov_b64 exec, -1")
    e(f"s_or_b32 s{sT1}, s{sRB}, s{sTYP}")
    e(f"s_or_b32 s{sT1}, s{sT1}, s{sW}")
    e(f"s_cmp_eq_u32 s{sT1}, 0")
    e(f"s_cselect_b32 s{sZ}, 1, 0")
    e("s_cbranch_scc0 L_NOZ")
    e(f"s_memrealtime {sr(sNON,2)}")
    e(f"v_lshlrev_b32 v{vL16}, 4, v1")
    for r in range(4): e(f"v_mov_b32 v{T+r}, 0")
    e(f"s_mul_i32 s{sT1}, s{sJ}, 4352")
    e(f"s_add_u32 s{sT1}, s{sT1}, {KVB}")
    for i in range(4):
        g.vmem(f"buffer_store_dwordx4 {vr(T)}, v{vL16}, {sr(SWS)}, s{sT1} offen offset:{1024*i} sc1", counted=False)
    e(f"s_add_u32 s{sT1}, s{sT1}, 4096")
    e("s_mov_b64 exec, 0xffff")
    g.vmem(f"buffer_store_dwordx4 {vr(T)}, v{vL16}, {sr(SWS)}, s{sT1} offen sc1", counted=False)
    e("s_mov_b64 exec, 1")
    e("s_waitcnt lgkmcnt(0)")
    e(f"s_or_b32 s{sNON}, s{sNON}, 1")
    e(f"v_mov_b32 v{T+4}, s{sNON}")
    e(f"v_mov_b32 v{T+5}, s{sNON+1}")
    e(f"s_cmp_eq_u32 s{sJ}, 0")
    e(f"s_cselect_b32 s{sT1}, 64, {OOB}")
    g.vmem(f"buffer_store_dwordx2 v[{T+4}:{T+5}], v{T}, {sr(SDBG)}, s{sT1} offen sc1", counted=False)
    e("s_mov_b64 exec, -1")
    e("s_nop 1")
    g.label("L_NOZ")
    for it in items[12:pre]: emit_item(g, it)
    g.cur_open = items[pre - 1][3]
    assert not g.cur_open
    g.wq0 = items[pre:]
    setup2(g)
    g.st.mark(g)
    g.wait(vm=[("W", 0), ("X", 0)])
    e("s_barrier")
    g.st.mark(g)
    read_x(g, 0, 0); read_w(g, 0); read_x(g, 0, 1); read_w(g, 1)
    g.wait(lg=[("Wf", 0)])
    e(f"s_cmp_eq_u32 s{sTYP}, 0")
    e("s_cbranch_scc0 L_TYPEB")
    st = (list(g.vm), list(g.lg), g.st.n)
    body(g, 0)
    g.label("L_TYPEB")
    g.vm, g.lg, g.st.n = list(st[0]), list(st[1]), st[2]; g.hist = []
    body(g, 1)
    g.label("L_END")
    e("s_endpgm")
    return g

def kd(name, vgpr, sgpr, acc):
    return f""".amdhsa_kernel {name}
  .amdhsa_next_free_vgpr {vgpr}
  .amdhsa_next_free_sgpr {sgpr}
  .amdhsa_accum_offset {acc}
  .amdhsa_group_segment_fixed_size 0
  .amdhsa_kernarg_size 72
  .amdhsa_user_sgpr_count 2
  .amdhsa_user_sgpr_kernarg_segment_ptr 1
  .amdhsa_system_sgpr_workgroup_id_x 1
.end_amdhsa_kernel
"""

def main(out):
    hdr = open("parallel_sum__linear_attn_block__dense_activation_relu__prompt.s.ref").read().split("; Override")[0]
    g = gen()
    s = hdr
    s += "; @launch grid=(256,1,1) block=(256,1,1) lds=163840\n"
    s += '.amdgcn_target "amdgcn-amd-amdhsa--gfx950"\n.text\n'
    s += f".globl {NAME}\n.p2align 8\n.type {NAME},@function\n{NAME}:\n" + g.text()
    s += '.section .rodata,"a"\n.p2align 6\n' + kd(NAME, 512, 102, 256)
    open(out, "w").write(s)
    print("nops", g.nops, "lines", len(g.out), "stamps", g.st.n)

if __name__ == "__main__":
    for a in sys.argv[2:]:
        if a == "stamp": STAMP = 1
        elif a == "stamp2": STAMP = 2
        elif a == "v": VERB = True
        else:
            k, v = a.split("="); OPT[k] = int(v)
    main(sys.argv[1])
```

```python
import sys, struct
sys.path.insert(0, "dev")
from asmgen import Gen

def f2u(x): return struct.unpack("<I", struct.pack("<f", x))[0]
NAME = "parallel_sum__linear_attn_block__dense_activation_relu__prompt_kernel"

HB, QB, KVB, FLB, KFB = 0, 0x800000, 0xA00000, 0xB00000, 0xB10000
HRT = 131072
KVH = 1088
WS_BYTES = 268435456
OOB = 0x40000000
PAGE = 8192
XPAGE = [0, 2, 4, 6, 18]
MISC = 16 * PAGE
M_CS, M_RM, M_RR, M_KV = MISC, MISC + 512, MISC + 1024, MISC + 2048
STAMP = 0
VERB = False
STB = 0x8000000
OPT = dict(rot=2, pre=16, spin=20000, fdelay=14, adelay=16, period=66, debt=1, w1w=15, qrate=4, krate=1, h2n=0, hpoll=19, hlead=2, cpf=2, dpf=1, fs=5, pub=7, qchk=8, olead=4, h2smp=4, ovm=4, ov=6, h2chk=11, slp=2, qld=4, p2=64, dbg=0, lin=0, vm2=17, pc2=50, osc=0, bl=1, xr=1, pr=1, hb=1, hdelay=8, dpos=0)

def vr(a, n=4): return f"v[{a}:{a+n-1}]"
def ar(a, n=4): return f"a[{a}:{a+n-1}]"
def sr(a, n=4): return f"s[{a}:{a+n-1}]"

SX, SWP, SWS2, SWS, SDBG, SW2, SWO, SOUT = 24, 28, 32, 36, 40, 44, 48, 52
sRB, sTYP, sJ, sW, sM, sN, sRB2, sCB = 56, 57, 58, 59, 60, 61, 62, 63
sXO, sPO, sSO = 64, 72, 80
sT0, sT1, sT2 = 88, 89, 90
sCOL = [4, 5, 6]
sXL, sBL, sT3 = 7, 8, 9
sRT = [10, 11]
sZ, sEPS, sLOG = 12, 13, 14
sK14 = 12
sHAK, sKEY = 64, 65
mB4, mH, mB0, mB1 = 16, 18, 20, 22
sNON = 92
sHST = [94, 95, 96]
sB2, sBO, sHA, sHA2, sPQ = 97, 98, 99, 100, 101
sKV, sFL, sKF, sXR = 91, 2, 3, 0

vXD, vWP, vWS, vBD = 2, 6, 8, 10
vXA = [12, 16]
vWA = 20
vCSW, vCSR, vL16, vSTO, vSTX, vSKIP = 26, 27, 28, 29, 30, 31
vRR, RL, vCSP, vTMP, vCSV, vCTLO = 32, 34, 36, 37, 38, 39
MO, S1, Q0, Q1, CS = 40, 44, 48, 52, 56
WF = [60, 64, 68]
AAUG, BAUG = [72, 76], 80
ACCS = [[84, 100], [116, 132]]
RROW = [148, 164]
PK, VF, T = 180, 196, 212
ONES = S1
RLL, EPSR = 52, 54
vFLO, vCTL, vZERO, vFLG, vNON = 244, 245, 246, 248, 250
vKFL = 48
vBT, vKVO, vXO = 12, 18, 19
ACC2, BF, ND, OF = 116, [56, 64, 72], [84, 100], [[196, 200], [204, 208]]
KVR = [180, 188, 212, 220, 228, 236, 40, 20]
def X(t, p, u): return 128 * t + 16 * p + 4 * u

class Stamps:
    def __init__(self): self.n = 0
    def mark2(self, g):
        if STAMP != 2: return
        g.e("s_memtime vcc"); g.e("s_waitcnt lgkmcnt(0)"); g.lg = []
        g.e("v_writelane_b32 v255, vcc_lo, %d" % self.n); self.n += 1
    def mark(self, g):
        if STAMP != 1: return
        g.e("s_memrealtime vcc"); g.e("s_waitcnt lgkmcnt(0)"); g.lg = []
        g.e("v_writelane_b32 v255, vcc_lo, %d" % self.n)
        g.e("s_memtime vcc"); g.e("s_waitcnt lgkmcnt(0)")
        g.e("v_writelane_b32 v255, vcc_lo, %d" % (self.n + 30)); self.n += 1

def srd(g, d, lo, nbytes):
    g.e(f"s_mov_b32 s{d}, s{lo}")
    g.e(f"s_and_b32 s{d+1}, s{lo+1}, 0xffff")
    g.e(f"s_mov_b32 s{d+2}, {nbytes}")
    g.e(f"s_mov_b32 s{d+3}, 0x00020000")

def page_plan():
    free = []
    wpage = {}; wav = {}
    for g in range(8): wpage[g] = 8 + g; wav[g] = -1
    ev = []
    xr = {3: 4, 4: 5, 0: 6, 1: 7, 2: 8}
    for sl, b in xr.items(): ev += [(b, XPAGE[sl]), (b, XPAGE[sl] + 1)]
    for g in range(8): ev.append((g + 1, wpage[g]))
    for g in range(8, 24):
        ev.sort(); b, pg = ev.pop(0)
        wpage[g] = pg; wav[g] = b
        ev.append((g + 1, pg))
    ev += [(24, 16), (24, 17)]
    ev.sort()
    return wpage, wav, ev
WPAGE, WAV, BEV = page_plan()
BPAGE = {}

def uses_primary(typ, c): return c == 0 or (typ == 0 and c == 1) or (typ == 1 and c == 2)
def step_kind(s):
    if s < 8: return ("h", s)
    if s < 16: return ("o", s - 8)
    return ("h", s - 8)
def aslot(k):
    p, r = k >> 3, k & 7
    return X(r >> 2, p, r & 3)
def aslot_of(s, t):
    if not OPT["pr"]: return 2 * s + t
    if s < 8: return 2 * s + t
    if s < 24: return 32 + 2 * (s - 8) + t
    return 2 * (s - 24) + t
def areg(s, t): return aslot(aslot_of(s, t))
def breg(s, ct): return aslot(16 + 2 * s + ct)

def it_x(p):
    L = []
    for i in range(4):
        prep = [f"s_add_u32 m0, s{sXL}, {XPAGE[p % 5] * PAGE}"] if i == 0 else []
        L.append((prep, f"buffer_load_dwordx4 v{vXD+i}, {sr(SX)}, s{sXO+p} offen offset:{1024*i} lds", ("X", p), i < 3))
    return L
def it_w(typ, gi):
    c, p = gi >> 3, gi & 7
    q = uses_primary(typ, c)
    s, v, tb = (SWP, vWP, sPO) if q else (SWS2, vWS, sSO)
    prep = [f"s_add_u32 m0, s{sBL}, {WPAGE[gi] * PAGE}", f"s_add_u32 s{sT0}, s{tb+p}, s{sCOL[c]}"]
    if typ == 1 and gi == 16:
        prep += [f"v_or_b32 v{vWP}, v{vWP}, v{vSKIP}", f"v_or_b32 v{vWP+1}, v{vWP+1}, v{vSKIP}"]
    return [(prep, f"buffer_load_dwordx4 v{v}, {sr(s)}, s{sT0} offen lds", ("W", gi), True),
            ([], f"buffer_load_dwordx4 v{v+1}, {sr(s)}, s{sT0} offen offset:1024 lds", ("W", gi), False)]
def it_b(s):
    k, idx = step_kind(s)
    sd, base = (SW2, sB2) if k == "h" else (SWO, sBO)
    if OPT["xr"] and idx < 16:
        prep = [f"s_add_u32 m0, s{sBL}, {BPAGE[s] * PAGE}", f"s_xor_b32 s{sT0}, s{sK14}, {idx * 16384}", f"s_add_u32 s{sT0}, s{sT0}, s{base}"]
    else:
        prep = [f"s_add_u32 m0, s{sBL}, {BPAGE[s] * PAGE}", f"s_add_u32 s{sT0}, s{base}, {idx * 16384}"]
    return [(prep, f"buffer_load_dwordx4 v{vBD}, {sr(sd)}, s{sT0} offen lds", ("B", s), True),
            ([], f"buffer_load_dwordx4 v{vBD+1}, {sr(sd)}, s{sT0} offen offset:1024 lds", ("B", s), False)]
def it_a(s, t):
    k, idx = step_kind(s)
    if k == "h" and idx < 16: prep = [f"s_xor_b32 s{sT3}, s{sHAK}, {idx * 1024 + t * HRT}"]
    elif k == "h": prep = [f"s_add_u32 s{sT3}, s{sHA2 if idx >= 20 else sHA}, {idx * 1024 + t * HRT}"]
    else: prep = [f"s_xor_b32 s{sT3}, s{sPQ}, {idx * 1024 + t * 32768}"]
    return (prep, f"buffer_load_dwordx4 {ar(areg(s, t))}, v{vL16}, {sr(SWS)}, s{sT3} offen sc1", ("A", s), False)
def emit_item(g, it):
    for x in it[0]: g.e(x)
    g.vmem(it[1], it[2])

def prologue(g):
    e = g.e
    e("s_cmp_ge_u32 s2, 256")
    e("s_cbranch_scc1 L_END")
    g.st.mark(g)
    e("s_load_dwordx16 s[4:19], s[0:1], 0")
    e("s_load_dwordx2 s[20:21], s[0:1], 64")
    if OPT["cpf"] == 1:
        e("s_getpc_b64 s[22:23]")
        e("v_lshlrev_b32 v252, 7, v0")
        g.vmem("global_load_dword v253, v252, s[22:23]", "pf")
    if OPT["cpf"] == 2:
        e("s_getpc_b64 s[22:23]")
        e("s_bfe_u32 s24, s2, 0x30003")
        e("s_lshl_b32 s24, s24, 12")
        e("v_lshrrev_b32 v252, 3, v0")
        e("v_lshl_add_u32 v252, v252, 7, s24")
        g.vmem("global_load_dword v253, v252, s[22:23]", "pf")
    e("v_and_b32 v1, 63, v0")
    e("v_lshrrev_b32 v2, 6, v0")
    if OPT["lin"]: e(f"s_lshr_b32 s{sT0}, s2, 5")
    else: e(f"s_and_b32 s{sT0}, s2, 7")
    e(f"v_readfirstlane_b32 s{sW}, v2")
    if OPT["lin"]: e(f"s_and_b32 s{sT1}, s2, 31")
    else: e(f"s_lshr_b32 s{sT1}, s2, 3")
    e(f"s_and_b32 s{sRB}, s{sT0}, 3")
    e(f"s_lshl_b32 s{sRB}, s{sRB}, 2")
    e(f"s_lshr_b32 s{sT2}, s{sT1}, 3")
    e(f"s_add_u32 s{sRB}, s{sRB}, s{sT2}")
    e(f"s_lshl_b32 s{sRB2}, s{sT0}, 2")
    e(f"s_add_u32 s{sRB2}, s{sRB2}, s{sT2}")
    e(f"s_and_b32 s{sCB}, s{sT1}, 7")
    e(f"s_and_b32 s{sTYP}, s{sCB}, 1")
    e(f"s_lshr_b32 s{sJ}, s{sT0}, 2")
    e(f"s_lshl_b32 s{sJ}, s{sJ}, 2")
    e(f"s_lshr_b32 s{sT0}, s{sCB}, 1")
    e(f"s_add_u32 s{sJ}, s{sJ}, s{sT0}")
    if OPT["rot"] == 1: e(f"s_add_u32 s91, s{sCB}, s{sT2}")
    elif OPT["rot"] == 2: e(f"s_lshl_b32 s91, s{sT2}, 1"); e(f"s_add_u32 s91, s91, s{sCB}")
    else: e("s_mov_b32 s91, 0")
    e("v_lshrrev_b32 v12, 3, v1")
    e("v_and_b32 v13, 7, v1")
    e("v_lshrrev_b32 v14, 1, v12")
    e("v_xor_b32 v15, v13, v14")
    e("v_lshlrev_b32 v15, 4, v15")
    e(f"v_lshl_add_u32 v{vXD}, v12, 10, v15")
    e(f"v_xor_b32 v{vXD+1}, 64, v{vXD}")
    e(f"v_add_u32 v{vXD+2}, {2*7168}, v{vXD}")
    e(f"v_add_u32 v{vXD+3}, {3*7168}, v{vXD+1}")
    e(f"v_add_u32 v{vXD+1}, 7168, v{vXD+1}")
    e("v_and_b32 v14, 1, v14")
    e("v_lshlrev_b32 v14, 2, v14")
    e("v_xor_b32 v15, v13, v14")
    e("v_lshlrev_b32 v15, 4, v15")
    e("s_movk_i32 s97, 2752")
    e("s_movk_i32 s96, 3072")
    e(f"s_cmp_eq_u32 s{sTYP}, 0")
    e("s_cselect_b32 s98, s96, s97")
    e("s_cselect_b32 s99, s97, s96")
    e(f"v_mad_u32_u24 v{vWP}, s98, v12, v15")
    e("s_lshl_b32 s100, s98, 3")
    e("s_sub_u32 s100, s100, 1024")
    e(f"v_add_u32 v{vWP+1}, s100, v{vWP}")
    e(f"s_lshl_b32 s92, s{sRB}, 7")
    e(f"s_lshl_b32 s{sT0}, s{sW}, 5")
    e(f"s_add_u32 s92, s92, s{sT0}")
    e("s_lshl_b32 s92, s92, 10")
    e(f"s_lshl_b32 s93, s{sW}, 4")
    def tab(p):
        e(f"s_add_u32 s{sT0}, s91, {p}")
        e(f"s_and_b32 s{sT0}, s{sT0}, 7")
        e(f"s_lshl_b32 s{sXO+p}, s{sT0}, 7")
        e(f"s_add_u32 s{sXO+p}, s{sXO+p}, s92")
        e(f"s_lshl_b32 s{sT0}, s{sT0}, 6")
        e(f"s_add_u32 s{sT0}, s{sT0}, s93")
        e(f"s_mul_i32 s{sPO+p}, s{sT0}, s98")
        e(f"s_mul_i32 s{sSO+p}, s{sT0}, s99")
    g.tab = tab
    for p in range(3): tab(p)
    e(f"s_lshl_b32 s95, s{sJ}, 7")
    e(f"s_add_u32 s95, s95, 1024")
    e(f"s_lshr_b32 s{sT0}, s{sJ}, 1")
    e(f"s_mul_i32 s{sT0}, s{sT0}, 704")
    e(f"s_and_b32 s{sT1}, s{sJ}, 1")
    e(f"s_lshl_b32 s{sT1}, s{sT1}, 7")
    e(f"s_add_u32 s{sT0}, s{sT0}, s{sT1}")
    e(f"s_lshl_b32 s{SWP+2}, s98, 9")
    e(f"s_lshl_b32 s{SWS2+2}, s99, 9")
    e(f"s_mov_b32 s{SWP+3}, 0x00020000")
    e(f"s_mov_b32 s{SWS2+3}, 0x00020000")
    e(f"s_mov_b32 s{SX+2}, {2048*1024}")
    e(f"s_mov_b32 s{SX+3}, 0x00020000")
    e(f"s_cmp_eq_u32 s{sTYP}, 0")
    e(f"s_cselect_b32 s95, s95, s{sT0}")
    e("s_waitcnt lgkmcnt(0)")
    e(f"s_cselect_b32 s{SWP}, s6, s12")
    e(f"s_cselect_b32 s{SWP+1}, s7, s13")
    e(f"s_cselect_b32 s{SWS2}, s12, s6")
    e(f"s_cselect_b32 s{SWS2+1}, s13, s7")
    e(f"s_mov_b32 s{SX}, s4")
    e(f"s_and_b32 s{SX+1}, s5, 0xffff")
    e(f"s_and_b32 s{SWP+1}, s{SWP+1}, 0xffff")
    e(f"s_mov_b32 s{SWO}, s8")
    e(f"s_and_b32 s{SWO+1}, s9, 0xffff")
    e(f"s_mov_b32 s{sCOL[0]}, s95")
    e(f"s_lshl_b32 s{sXL}, s{sW}, 12")
    e(f"s_lshl_b32 s{sBL}, s{sW}, 11")

def setup1(g):
    e = g.e
    e(f"s_and_b32 s{SWS2+1}, s{SWS2+1}, 0xffff")
    e(f"s_mov_b32 s{SWO+2}, {512*1024}")
    e(f"s_mov_b32 s{SWO+3}, 0x00020000")
    srd(g, SWS, 20, WS_BYTES)
    srd(g, SDBG, 18, 256)
    srd(g, SW2, 14, 1376 * 1024)
    srd(g, SOUT, 16, 2048 * 1024)
    e(f"s_lshr_b32 s{sM}, s{sW}, 1")
    e(f"s_and_b32 s{sN}, s{sW}, 1")
    for p in range(3, 8): g.tab(p)

def setup2(g):
    e = g.e
    t = T
    e(f"v_mad_u32_u24 v{vWS}, s99, v12, v15")
    e("s_lshl_b32 s100, s99, 3")
    e("s_sub_u32 s100, s100, 1024")
    e(f"v_add_u32 v{vWS+1}, s100, v{vWS}")
    e(f"v_lshl_add_u32 v{vBD}, v12, 10, v15")
    e(f"v_add_u32 v{vBD+1}, 7168, v{vBD}")
    e(f"s_and_b32 s{sT0}, s{sJ}, 1")
    e(f"s_cmp_eq_u32 s{sJ}, 6")
    e(f"s_cselect_b32 s{sT0}, 1, s{sT0}")
    e(f"s_and_b32 s101, s{sT0}, s{sTYP}")
    e(f"v_bfe_u32 v{vSKIP}, v15, 6, 1")
    e(f"v_and_b32 v{vSKIP}, s101, v{vSKIP}")
    e(f"v_lshlrev_b32 v{vSKIP}, 30, v{vSKIP}")
    e(f"v_and_b32 v{t}, 31, v1")
    e(f"v_lshrrev_b32 v{t+1}, 5, v1")
    e(f"v_bfe_u32 v{t+2}, v1, 1, 3")
    e(f"s_lshl_b32 s{sT1}, s{sM}, 6")
    e(f"s_lshl_b32 s{sT0}, s{sN}, 5")
    e(f"s_add_u32 s{sT1}, s{sT1}, s{sT0}")
    e(f"v_add_u32 v{t+3}, s{sT1}, v{t}")
    e(f"v_lshlrev_b32 v{t+4}, 7, v{t+3}")
    for u in range(4):
        e(f"s_xor_b32 s{sT0}, s{sM}, {u}")
        e(f"s_lshl_b32 s{sT0}, s{sT0}, 1")
        e(f"v_add_u32 v{t+5}, s{sT0}, v{t+1}")
        e(f"v_xor_b32 v{t+5}, v{t+5}, v{t+2}")
        e(f"v_lshl_add_u32 v{vXA[0]+u}, v{t+5}, 4, v{t+4}")
        e(f"v_xor_b32 v{vXA[1]+u}, 0x1000, v{vXA[0]+u}")
    e(f"v_lshlrev_b32 v{vSTO}, 2, v{t+3}")
    e(f"v_add_u32 v{vSTO}, {M_RM}, v{vSTO}")
    e(f"v_xor_b32 v{vSTX}, 0x80, v{vSTO}")
    e(f"v_bfe_u32 v{t+5}, v1, 2, 2")
    e(f"v_and_b32 v{t+6}, 3, v1")
    e(f"v_bfe_u32 v{t+7}, v1, 4, 1")
    e(f"v_lshrrev_b32 v{t+8}, 1, v{t+6}")
    e(f"v_lshl_add_u32 v{t+8}, v{t+7}, 1, v{t+8}")
    e(f"v_lshrrev_b32 v{t+9}, 1, v{t+5}")
    e(f"v_lshlrev_b32 v{t+9}, 2, v{t+9}")
    e(f"v_xor_b32 v{t+8}, v{t+8}, v{t+9}")
    e(f"v_lshlrev_b32 v{t+8}, 4, v{t+8}")
    e(f"v_and_b32 v{t+9}, 1, v{t+6}")
    e(f"v_lshl_add_u32 v{t+8}, v{t+9}, 3, v{t+8}")
    e(f"v_lshl_add_u32 v{t+8}, v{t+5}, 7, v{t+8}")
    e(f"v_lshl_add_u32 v247, v{t+1}, 9, v{t+8}")
    e(f"v_lshl_add_u32 v{t+9}, v{t+1}, 10, v{t+8}")
    e(f"s_lshl_b32 s{sT0}, s{sN}, 6")
    e(f"v_xor_b32 v{t+9}, s{sT0}, v{t+9}")
    e(f"s_lshl_b32 s{sT0}, s{sM}, 11")
    e(f"v_add_u32 v{vWA}, s{sT0}, v{t+9}")
    e(f"v_subrev_u32 v{vWA+1}, s{sT0}, v{t+9}")
    e(f"v_add_u32 v{vWA+1}, 2048, v{vWA+1}")
    for r in (1, 2):
        e(f"v_add_u32 v{vWA+2*r}, {65536*r}, v{vWA}")
        e(f"v_add_u32 v{vWA+2*r+1}, {65536*r}, v{vWA+1}")
    e(f"v_lshlrev_b32 v{vL16}, 4, v1")
    e(f"v_cmp_eq_u32 {sr(mB4,2)}, 1, v{t+7}")
    e(f"v_cmp_eq_u32 {sr(mH,2)}, 1, v{t+1}")
    e(f"v_and_b32 v{t+9}, 1, v1")
    e(f"v_cmp_eq_u32 {sr(mB0,2)}, 1, v{t+9}")
    e(f"v_and_b32 v{t+10}, 2, v1")
    e(f"v_cmp_eq_u32 {sr(mB1,2)}, 2, v{t+10}")
    e(f"v_cmp_eq_u32 vcc, v{t+9}, v{t+7}")
    e(f"v_mov_b32 v{t+10}, 0x3f803f80")
    for r in range(4): e(f"v_cndmask_b32 v{MO+r}, 0, v{t+10}, vcc")
    for r in range(1, 4):
        e(f"v_mov_b32 v{AAUG[0]+r}, 0"); e(f"v_mov_b32 v{AAUG[1]+r}, 0"); e(f"v_mov_b32 v{BAUG+r}, 0")
    e(f"v_mov_b32 v{vZERO}, 0")
    e(f"s_mov_b32 s{sLOG}, 0x3fb8aa3b")
    e(f"s_mov_b32 s{sLOG+1}, 0x3fb8aa3b")
    e(f"s_mov_b32 s{sEPS}, 0x%08x" % f2u(1e-6))
    e(f"s_lshl_b32 s{sT0}, s{sN}, 1")
    e(f"s_add_u32 s{sT0}, s{sT0}, s{sM}")
    e(f"s_lshl_b32 s{sT0}, s{sT0}, 7")
    e(f"s_add_u32 s{sT0}, s{sT0}, {M_CS}")
    e(f"v_lshl_add_u32 v{vCSW}, v{t}, 2, s{sT0}")
    e(f"v_xor_b32 v{vCSR}, 0x80, v{vCSW}")
    e(f"v_lshlrev_b32 v{t+9}, 4, v{t+1}")
    e(f"s_lshl_b32 s{sT0}, s{sT1}, 2")
    e(f"s_add_u32 s{sT0}, s{sT0}, {M_RR}")
    e(f"v_add_u32 v{vRR}, s{sT0}, v{t+9}")
    e(f"v_xor_b32 v{vRR+1}, 0x80, v{vRR}")
    e(f"s_lshl_b32 s{sT0}, s{sRB}, 2")
    e(f"s_lshl_b32 s{sT2}, s{sM}, 1")
    e(f"s_add_u32 s{sT0}, s{sT0}, s{sT2}")
    e(f"s_add_u32 s{sRT[0]}, s{sT0}, s{sN}")
    e(f"s_xor_b32 s{sRT[1]}, s{sRT[0]}, 1")
    e(f"v_and_b32 v{t+9}, 15, v1")
    e(f"v_lshlrev_b32 v{vFLO}, 3, v{t+9}")
    e(f"v_lshlrev_b32 v{vCTLO}, 2, v1")
    e(f"s_lshr_b32 s{sT0}, s{sJ}, 1")
    e(f"s_mul_i32 s{sT0}, s{sT0}, 704")
    e(f"s_and_b32 s{sT1}, s{sJ}, 1")
    e(f"s_lshl_b32 s{sT2}, s{sT1}, 7")
    e(f"s_add_u32 s{sT2}, s{sT2}, s{sT0}")
    e(f"s_add_u32 s{sCOL[2]}, s{sT2}, 256")
    e(f"s_lshl_b32 s{sT1}, s{sT1}, 6")
    e(f"s_sub_u32 s{sT0}, s{sT0}, s{sT1}")
    e(f"s_add_u32 s{sT0}, s{sT0}, 576")
    e(f"s_lshl_b32 s{sCOL[1]}, s{sJ}, 7")
    e(f"s_add_u32 s{sT2}, s{sCOL[1]}, 2048")
    e(f"s_cmp_eq_u32 s{sTYP}, 0")
    e(f"s_cselect_b32 s{sCOL[1]}, s{sT2}, s{sCOL[1]}")
    e(f"s_cselect_b32 s{sCOL[2]}, s{sCOL[2]}, s{sT0}")
    e(f"s_lshl_b32 s{sT0}, s{sN}, 11")
    e(f"s_lshl_b32 s{sHST[1]}, s{sJ}, 12")
    e(f"s_add_u32 s{sHST[1]}, s{sHST[1]}, s{sT0}")
    e(f"s_add_u32 s{sHST[1]}, s{sHST[1]}, {QB}")
    e(f"s_lshr_b32 s{sT1}, s{sJ}, 1")
    e(f"s_mul_i32 s{sT1}, s{sT1}, 10240")
    e(f"s_add_u32 s{sT0}, s{sT0}, s{sT1}")
    for c in (0, 2):
        e(f"s_lshl_b32 s{sHST[c]}, s{sCOL[c]}, 5")
        e(f"s_add_u32 s{sHST[c]}, s{sHST[c]}, s{sT0}")
    e(f"s_and_b32 s{sT0}, s101, s{sN}")
    e(f"s_cmp_eq_u32 s{sT0}, 1")
    e(f"s_cselect_b32 s{sHST[2]}, {OOB}, s{sHST[2]}")
    e(f"s_lshl_b32 s{sT0}, s{sCB}, 7")
    e(f"s_mul_i32 s{sB2}, s{sW}, {22 * 16 * 1024}")
    e(f"s_add_u32 s{sB2}, s{sB2}, s{sT0}")
    e(f"s_lshl_b32 s{sBO}, s{sW}, 17")
    e(f"s_add_u32 s{sBO}, s{sBO}, s{sT0}")
    e(f"s_lshl_b32 s{sXR}, s{sRB2}, 16")
    e(f"s_add_u32 s{sXR}, s{sXR}, s{sT0}")
    e(f"s_add_u32 s{sXR+1}, s{sXR}, 32768")
    e(f"s_lshl_b32 s{sHA}, s{sRB2}, 3")
    e(f"s_add_u32 s{sHA}, s{sHA}, s{sW}")
    e(f"s_lshl_b32 s{sHA}, s{sHA}, 15")
    e(f"s_cmp_eq_u32 s{sW}, 3")
    e(f"s_cselect_b32 s{sHA2}, {OOB}, s{sHA}")
    e(f"s_lshl_b32 s{sPQ}, s{sRB2}, 6")
    e(f"s_lshl_b32 s{sT0}, s{sW}, 3")
    e(f"s_add_u32 s{sPQ}, s{sPQ}, s{sT0}")
    e(f"s_lshl_b32 s{sPQ}, s{sPQ}, 10")
    e(f"s_add_u32 s{sPQ}, s{sPQ}, {QB}")
    e(f"s_mul_i32 s{sKV}, s{sW}, {8 * KVH}")
    e(f"s_add_u32 s{sKV}, s{sKV}, {KVB}")
    if STAMP: e("v_writelane_b32 v255, s2, 63")
    e(f"s_lshl_b32 s{sFL}, s{sRB2}, 2")
    e(f"s_add_u32 s{sFL}, s{sFL}, s{sW}")
    e(f"s_lshl_b32 s{sFL}, s{sFL}, 7")
    e(f"s_add_u32 s{sFL}, s{sFL}, {FLB}")
    e(f"s_lshl_b32 s{sKF}, s{sW}, 10")
    e(f"s_add_u32 s{sKF}, s{sKF}, {KFB}")

def I(t, c=1): return ("i", t, c)
def setup3_ops():
    L = [I(f"v_add_u32 v{vBT}, s{sBL}, v247"), I(f"v_xor_b32 v{vBT+1}, 64, v{vBT}")]
    for r in (1, 2):
        L += [I(f"v_add_u32 v{vBT+2*r}, {65536*r}, v{vBT}"), I(f"v_add_u32 v{vBT+2*r+1}, {65536*r}, v{vBT+1}")]
    L += [I(f"v_lshrrev_b32 v{vXD}, 5, v1"),
          I(f"v_lshlrev_b32 v{vXD+1}, 8, v{vXD}"),
          I(f"v_lshl_add_u32 v{vXD+1}, v{vFLO}, 1, v{vXD+1}"),
          I(f"v_lshlrev_b32 v{vXD}, 4, v{vXD}"),
          I(f"v_add_u32 v{vXD}, 1024, v{vXD}"),
          I(f"v_cndmask_b32 v{vKVO}, v{vXD+1}, v{vXD}, {sr(mB4,2)}"),
          I(f"v_add_u32 v{vXD+1}, 480, v{vXD+1}"),
          I(f"v_cndmask_b32 v{vXD+2}, v{vXD+1}, v{vXD}, {sr(mB4,2)}"),
          I(f"v_lshrrev_b32 v{vXD}, 3, v0"),
          I(f"v_and_b32 v{vXD+1}, 7, v0"),
          I(f"v_lshlrev_b32 v{vXD+1}, 4, v{vXD+1}"),
          I(f"v_lshl_add_u32 v{vXO}, v{vXD}, 10, v{vXD+1}")]
    return L

def read_x1(g, p, u, t):
    off = XPAGE[p % 5] * PAGE
    if off < 65536:
        g.ds(f"ds_read_b128 {ar(X(t, p, u))}, v{vXA[t] + u} offset:{off}", ("X", p, u))
    else:
        g.e(f"v_add_u32 v{vTMP}, {off}, v{vXA[t] + u}")
        g.ds(f"ds_read_b128 {ar(X(t, p, u))}, v{vTMP}", ("X", p, u))
def read_x(g, p, u):
    for t in range(2): read_x1(g, p, u, t)
def read_w(g, step):
    gi, u = step >> 2, step & 3
    b = WF[step % 3]
    pg = WPAGE[gi]
    off = (pg & 7) * PAGE + (u & ~1) * 2048
    a = vWA + 2 * (pg >> 3) + (u & 1)
    g.ds(f"ds_read_b64_tr_b16 v[{b}:{b+1}], v{a} offset:{off}", ("Wf", step))
    g.ds(f"ds_read_b64_tr_b16 v[{b+2}:{b+3}], v{a} offset:{off + 512}", ("Wf", step))

def flag_store(addr_ops, tag):
    return [("blk", addr_ops, 6), ("waitvm", tag),
            ("blk", ["s_mov_b64 exec, 1",
                     ("vm", f"buffer_store_dwordx2 v[{vNON}:{vNON+1}], v{vZERO}, {sr(SWS)}, s{sT1} offen sc1"),
                     "s_mov_b64 exec, -1"], 4)]
def flag_addr(kind):
    return [f"s_lshl_b32 s{sT1}, s{sRB}, 1", f"s_add_u32 s{sT1}, s{sT1}, s{sM}", f"s_lshl_b32 s{sT1}, s{sT1}, 2",
            f"s_lshr_b32 s{sT2}, s{sJ}, 1", f"s_add_u32 s{sT1}, s{sT1}, s{sT2}", f"s_lshl_b32 s{sT1}, s{sT1}, 4",
            f"s_and_b32 s{sT2}, s{sJ}, 1", f"s_lshl_b32 s{sT2}, s{sT2}, 1", f"s_add_u32 s{sT1}, s{sT1}, s{sT2}",
            f"s_add_u32 s{sT1}, s{sT1}, s{sN}", f"s_add_u32 s{sT1}, s{sT1}, {kind * 4}", f"s_lshl_b32 s{sT1}, s{sT1}, 3",
            f"s_add_u32 s{sT1}, s{sT1}, {FLB}"]
def kvflag_addr():
    return [f"s_lshl_b32 s{sT1}, s{sRB}, 2", f"s_add_u32 s{sT1}, s{sT1}, s{sW}", f"s_lshl_b32 s{sT1}, s{sT1}, 3",
            f"s_lshl_b32 s{sT2}, s{sJ}, 9", f"s_add_u32 s{sT1}, s{sT1}, s{sT2}", f"s_add_u32 s{sT1}, s{sT1}, {KFB}"]
def bfr(d, s): return [I(f"v_cvt_pk_bf16_f32 v{d}, v{s}, v{s}"), I(f"v_and_b32 v{d}, 0xffff0000, v{d}")]
SEL = ["op_sel:[0,0] op_sel_hi:[1,0]", "op_sel:[0,1] op_sel_hi:[1,1]"]
SEL3 = ["op_sel:[0,0,0] op_sel_hi:[1,0,1]", "op_sel:[0,1,0] op_sel_hi:[1,1,1]"]

def epilogue(c, typ, fast):
    L = []
    A = ACCS[c & 1]
    corient = (typ == 0 and c < 2)
    t = T; cs = vCSV
    bau = [I(f"v_add_f32 v{cs}, v{cs}, v{vCSP}"),
           I(f"v_cvt_pk_bf16_f32 v{t}, -v{cs}, -v{cs}"),
           I(f"v_and_b32 v{t}, 0xffff0000, v{t}"),
           I(f"v_sub_f32 v{t}, -v{cs}, v{t}"),
           I(f"v_cvt_pk_bf16_f32 v{t}, -v{cs}, v{t}"),
           I(f"v_cndmask_b32 v{BAUG}, v{t}, 0, {sr(mH,2)}")]
    if c == 0:
        L += [I(f"v_cndmask_b32 v{t+1}, v{S1}, v{S1+1}, {sr(mB4,2)}")]
        L += [I(f"v_add_f32 v{Q0+r}, v{Q0+r}, v{Q1+r}") for r in range(4)]
        L += [I(f"v_cndmask_b32 v{t+2}, v{Q0}, v{Q0+1}, {sr(mB0,2)}"),
              I(f"v_cndmask_b32 v{t+3}, v{Q0+2}, v{Q0+3}, {sr(mB0,2)}"),
              I(f"v_cndmask_b32 v{t+2}, v{t+2}, v{t+3}, {sr(mB1,2)}"),
              I(f"v_mov_b32 v{t+3}, v{t+2}"),
              I(f"v_mul_f32 v{t+1}, 0x3b000000, v{t+1}"),
              I(f"v_cvt_pk_bf16_f32 v{AAUG[0]}, v{t+1}, v{t+1}"),
              I(f"v_permlane32_swap_b32 v{t+2}, v{t+3}"),
              I(f"v_add_f32 v{t+2}, v{t+2}, v{t+3}"),
              I(f"v_mul_f32 v{t+2}, 0x3b000000, v{t+2}"),
              I(f"v_fma_f32 v{t+2}, -v{t+1}, v{t+1}, v{t+2}"),
              I(f"v_max_f32 v{t+2}, 0, v{t+2}")]
        L += bfr(t+2, t+2)
        L += [I(f"v_add_f32 v{t+2}, 0x%08x, v{t+2}" % f2u(1e-5))]
        L += bfr(t+2, t+2)
        L += [I(f"v_sqrt_f32 v{t+2}, v{t+2}", 2), ("ds", f"ds_write_b32 v{vSTO}, v{AAUG[0]}", "fw")]
        L += bfr(t+2, t+2)
        L += [I(f"v_rcp_f32 v{RL}, v{t+2}", 2), bau[0]]
        L += [("ds", f"ds_write_b32 v{vSTO}, v{RL} offset:512", "fw"), ("bar", bau[1:])]
        L += [("ds", f"ds_read_b32 v{AAUG[1]}, v{vSTX}", "fr"), ("ds", f"ds_read_b32 v{RL+1}, v{vSTX} offset:512", "fr")]
        if typ == 0:
            for tt in range(2):
                for q in range(4):
                    L += [("ds", f"ds_read_b128 {vr(RROW[tt] + 4*q)}, v{vRR+tt} offset:{32*q}", "fr")]
        L += [("delay", 1), ("waitlg", "fr")]
    else:
        L += bau
    for tt in range(2):
        a, b = (vr(AAUG[tt]), vr(BAUG)) if corient else (vr(BAUG), vr(AAUG[tt]))
        L += [("mfma", f"v_mfma_f32_32x32x16_bf16 {vr(A[tt],16)}, {a}, {b}, {vr(A[tt],16)}")]
    L += [("delay", 1)]
    def pk(op, d, a, b, c3=None, mod=""):
        s = f"{op} v[{d}:{d+1}], v[{a}:{a+1}], {b}"
        if c3 is not None: s += f", v[{c3}:{c3+1}]"
        return s + (" " + mod if mod else "")
    def cvt(tt, d): return [I(f"v_cvt_pk_bf16_f32 v{d+q}, v{A[tt]+2*q}, v{A[tt]+2*q+1}") for q in range(8)]
    def store(tt, d, stride, tag):
        return [("st", [([f"s_mul_i32 s{sT3}, s{sRT[tt]}, {stride}", f"s_add_u32 s{sT3}, s{sT3}, s{sHST[c]}"],
                         f"buffer_store_dwordx4 {vr(d)}, v{vL16}, {sr(SWS)}, s{sT3} offen sc1", tag, True),
                        ([], f"buffer_store_dwordx4 {vr(d+4)}, v{vL16}, {sr(SWS)}, s{sT3} offen offset:1024 sc1", tag, False)])]
    tag = "st%d" % c
    if c == 1 and typ == 1:
        L += [("burst", [pk("v_pk_mul_f32", t+16*tt+2*q, A[tt]+2*q, f"v[{RLL}:{RLL+1}]", None, SEL[tt]) for tt in range(2) for q in range(8)])]
        L += [("rate", OPT["qrate"])]
        for tt in range(2):
            for r in range(16):
                L += [I(f"v_exp_f32_e64 v{t+16*tt+r}, v{t+16*tt+r} clamp", 2), I(f"v_max_f32 v{A[tt]+r}, v{EPSR+tt}, v{A[tt]+r}")]
        L += [("burst", [pk("v_pk_fma_f32", A[tt]+2*q, A[tt]+2*q, f"v[{RL}:{RL+1}]", t+16*tt+2*q, SEL3[tt]) for tt in range(2) for q in range(8)])]
        for tt in range(2): L += cvt(tt, VF + 8*tt) + store(tt, VF + 8*tt, 32768, tag)
        L += [("rate", 0), ("delay", OPT["fdelay"])] + flag_store(flag_addr(1), tag)
    elif c == 0 and typ == 0:
        B = [pk("v_pk_mul_f32", A[tt]+2*q, A[tt]+2*q, f"v[{RROW[tt]+2*q}:{RROW[tt]+2*q+1}]") for tt in range(2) for q in range(8)]
        B += [pk("v_pk_mul_f32", t+16*tt+2*q, A[tt]+2*q, sr(sLOG, 2)) for tt in range(2) for q in range(8)]
        L += [("burst", B), ("rate", OPT["krate"])]
        for tt in range(2):
            for r in range(16):
                L += [I(f"v_exp_f32_e64 v{t+16*tt+r}, v{t+16*tt+r} clamp", 2), I(f"v_max_f32 v{A[tt]+r}, s{sEPS}, v{A[tt]+r}")]
        L += [("burst", [pk("v_pk_add_f32", A[tt]+2*q, A[tt]+2*q, f"v[{t+16*tt+2*q}:{t+16*tt+2*q+1}]") for tt in range(2) for q in range(8)])]
        for tt in range(2): L += cvt(tt, PK + 8*tt)
        L += [("rate", 0)]
    elif c == 1 and typ == 0:
        B = [pk("v_pk_mul_f32", A[tt]+2*q, A[tt]+2*q, f"v[{RROW[tt]+2*q}:{RROW[tt]+2*q+1}]") for tt in range(2) for q in range(8)]
        B += [x[1] for tt in range(2) for x in cvt(tt, VF + 8*tt)]
        L += [("burst", B)]
        KVA = A[0]
        adr = [I(f"v_bfe_u32 v{t+16}, v1, 4, 1"), I(f"v_mul_u32_u24 v{t+16}, {KVH}, v{t+16}"),
               ("blk", [f"s_mul_i32 s{sT1}, s{sM}, 4352", f"s_mul_i32 s{sT2}, s{sN}, 2176", f"s_add_u32 s{sT1}, s{sT1}, s{sT2}",
                        f"s_add_u32 s{sT1}, s{sT1}, {M_KV}", f"v_add_u32 v{t+16}, s{sT1}, v{t+16}"], 5),
               I(f"v_lshrrev_b32 v{t+17}, 5, v1"),
               I(f"v_lshrrev_b32 v{t+18}, 1, v{vFLO}"), I(f"v_add_u32 v{t+18}, v{t+18}, v{t+16}"),
               I(f"v_lshl_add_u32 v{t+16}, v{t+17}, 8, v{t+16}"),
               I(f"v_lshl_add_u32 v{t+16}, v{vFLO}, 1, v{t+16}"), I(f"v_lshlrev_b32 v{t+19}, 2, v0"),
               I(f"v_add_u32 v{t+20}, {M_KV}, v{t+19}"),
               I(f"v_cndmask_b32 v{t+8}, v{S1}, v{S1+1}, {sr(mB4,2)}"),
               ("ds", f"ds_write_b32 v{t+18}, v{t+8} offset:1024", "fw")]
        ms = []
        for i in range(4): ms.append(f"v_mfma_f32_16x16x32_bf16 {vr(S1)}, {vr(MO)}, {vr(PK+4*i)}, {'0' if i == 0 else vr(S1)}")
        L.insert(len(L) - 1, ("burst", ms))
        ms = []
        for i in range(4): ms.append(f"v_mfma_f32_32x32x16_bf16 {vr(KVA,16)}, {vr(PK+4*i)}, {vr(VF+4*i)}, {'0' if i == 0 else vr(KVA,16)}")
        L += [("mfmas", ms, adr), ("delay", 1)]
        L += [I(f"v_cndmask_b32 v{t+r}, v{KVA+r}, v{KVA+8+r}, {sr(mB4,2)}") for r in range(8)]
        L += [("ds", f"ds_write_b128 v{t+16}, {vr(t)}", "fw"), ("ds", f"ds_write_b128 v{t+16}, {vr(t+4)} offset:512", "fw")]
        L += [("bar", setup3_ops())]
        L += [("ds", f"ds_read2st64_b32 v[{t+2*i}:{t+2*i+1}], v{t+20} offset0:{4*i} offset1:{17+4*i}", "fr") for i in range(5)]
        L += [("delay", 1), ("waitlg", "fr")]
        L += [I(f"v_add_f32 v{t+2*i}, v{t+2*i}, v{t+2*i+1}") for i in range(5)]
        its = []
        for i in range(4):
            prep = [f"s_mul_i32 s{sT3}, s{sJ}, 4352", f"s_add_u32 s{sT3}, s{sT3}, {KVB}"] if i == 0 else []
            its.append((prep, f"buffer_atomic_add_f32 v{t+2*i}, v{t+19}, {sr(SWS)}, s{sT3} offen offset:{1024*i}", "at", True))
        its.append(([f"s_add_u32 s{sT3}, s{sT3}, 4096", f"s_cmp_eq_u32 s{sW}, 0", f"s_cselect_b32 s{sT3}, s{sT3}, {OOB}"],
                    f"buffer_atomic_add_f32 v{t+8}, v{t+19}, {sr(SWS)}, s{sT3} offen", "at", False))
        L += [("st", its), ("delay", OPT["adelay"])] + flag_store(kvflag_addr(), "at")
    else:
        if not fast and OPT["hb"]:
            L += [("burst", [pk("v_pk_mul_f32", A[tt]+2*q, A[tt]+2*q, f"v[{RL}:{RL+1}]", None, SEL[tt]) for tt in range(2) for q in range(8)])]
        for tt in range(2):
            d = VF + 8*tt
            if fast: L += [I(pk("v_pk_mul_f32", A[tt]+2*q, A[tt]+2*q, f"v[{RL}:{RL+1}]", None, SEL[tt])) for q in range(8)]
            elif not OPT["hb"]: L += [I(f"v_mul_f32 v{A[tt]+r}, v{RL+tt}, v{A[tt]+r}") for r in range(16)]
            for hf in range(2):
                L += [I(f"v_cvt_pk_bf16_f32 v{d+q}, v{A[tt]+2*q}, v{A[tt]+2*q+1}") for q in range(4*hf, 4*hf+4)]
                L += [I(f"v_pk_max_i16 v{d+q}, v{d+q}, 0") for q in range(4*hf, 4*hf+4)]
                if fast: L += [("st", [store(tt, d, HRT, tag)[0][1][hf]])]
            if not fast: L += store(tt, d, HRT, tag)
        kind = 0 if c == 0 else (2 if typ == 0 else 3)
        if c == 0:
            L += [I(f"v_mul_f32 v{RLL+tt}, s{sLOG}, v{RL+tt}") for tt in range(2)]
            L += [I(f"v_rcp_f32 v{EPSR+tt}, v{RL+tt}", 2) for tt in range(2)]
            L += setup3_ops()
            L += [I(f"v_mul_f32 v{EPSR+tt}, s{sEPS}, v{EPSR+tt}") for tt in range(2)]
        L += [("delay", OPT["hdelay"])] if not fast else [("late",)]
        L += flag_store(flag_addr(kind), tag)
    return L

class Sched:
    def __init__(self, g, typ):
        self.g = g; self.typ = typ
        self.q = []; self.side = []; self.wait_bar = False; self.delay = 0
        self.wq = []; self.sq = []; self.aq = []; self.bq = []
        self.cur = None
        self.bar = -1; self.free_stage = 0; self.tok = 0.0; self.extra = 0; self.pages = []; self.bnext = 0
    def adv(self, cy): self.tok = min(2.0, self.tok + cy / (OPT["pc2"] if 16 <= self.bar < 24 else OPT["period"]))
    def pick(self, force=False):
        if self.cur is not None: return self.cur
        if self.sq: return self.sq
        if self.wq and self.wq[0][0] <= self.bar and (self.tok >= 1 or force or self.wq[0][2][2][1] <= self.bar + 4): return self.wq
        if self.tok < 1 and not force: return None
        a_ok = self.aq and self.aq[0][0] < self.free_stage
        if not self.bq and self.bnext < 30 and self.pages and not self.wq:
            BPAGE[self.bnext] = self.pages.pop(0)
            self.bq = [(0, 0, it) for it in it_b(self.bnext)]; self.bnext += 1
        b_ok = bool(self.bq)
        if a_ok and b_ok:
            sa = self.aq[0][2][2][1]; sb = self.bq[0][2][2][1]
            if sa == 99: sa = 0
            return self.bq if sb <= sa + OPT["bl"] else self.aq
        if a_ok: return self.aq
        if b_ok: return self.bq
        return None
    def vm(self, force=False):
        q = self.pick(force)
        if q is None: return 0
        it = q.pop(0)[2] if q is not self.sq else q.pop(0)
        emit_item(self.g, it)
        self.cur = q if it[3] else None
        tg = it[2]
        isw1 = isinstance(tg, tuple) and tg[0] == "W" and ((self.typ == 0 and tg[1] >= 16) or (self.typ == 1 and not 8 <= tg[1] < 16))
        self.tok -= OPT["w1w"] / 10.0 if isw1 else 0.3 if tg == "at" else 1
        self.tok = max(self.tok, -OPT["debt"])
        return len(it[0]) + 2
    def emit1(self, op):
        g = self.g; k = op[0]
        if k == "i": g.e(op[1])
        elif k == "ds": g.ds(op[1], op[2])
        elif k == "vm": g.vmem(op[1], op[2] if len(op) > 2 else "misc")
        elif k == "mfma": g.e(op[1])
        elif k == "waitlg": g.wait(lg=op[1])
        elif k == "waitvm":
            if VERB: print("   typ", self.typ, "waitvm", op[1], "at step", self.step)
            while self.sq or self.cur is not None: self.vm(True)
            g.wait(vm=op[1])
        elif k in ("blk", "burst"):
            for x in op[1]:
                if isinstance(x, str): g.e(x)
                else: self.emit1(x)
        elif k == "st":
            if VERB: print("   typ", self.typ, "st", op[1][0][2], "at step", self.step)
            self.sq += op[1]
    def cost(self, op):
        k = op[0]
        if k in ("i", "blk"): return op[2]
        return {"ds": 1, "vm": 2, "waitlg": 1, "waitvm": 1, "st": 0}[k]
    def tick(self):
        if self.delay > 0: self.delay -= 1
    def fill(self, slots):
        slots = min(slots, 4) + self.extra
        while slots > 0:
            if self.side: q = self.side
            elif self.q and not self.wait_bar and self.delay == 0: q = self.q
            else: return
            op = q[0]
            if op[0] in ("mfma", "mfmas", "late", "burst"): return
            if op[0] == "bar": q.pop(0); self.wait_bar = True; self.side = list(op[1]); continue
            if op[0] == "delay": q.pop(0); self.delay = op[1]; return
            if op[0] == "rate": q.pop(0); self.extra = op[1]; continue
            if op[0] == "i" and self.cost(op) > slots: return
            q.pop(0); slots -= self.cost(op); self.emit1(op)
    def big(self):
        while self.q and not self.side and self.q[0][0] in ("mfma", "mfmas", "burst") and not self.wait_bar and self.delay == 0:
            op = self.q.pop(0)
            if op[0] == "burst":
                for n, x in enumerate(op[1]):
                    self.g.e(x)
                    if n % 16 == 15: self.adv(72); self.vm()
            elif op[0] == "mfma":
                self.g.e(op[1]); self.adv(32); self.vm()
            else:
                self.side = list(op[2]); self.delay = 1
                for m in op[1]:
                    self.g.e(m); self.adv(32); self.fill(6 - self.vm())
                while self.side: self.emit1(self.side.pop(0))
                self.delay = 0
                return
    def drain(self, until_late=False):
        while self.side: self.emit1(self.side.pop(0))
        if self.wait_bar and self.q:
            self.g.wait(lg="fw"); self.g.e("s_barrier")
        self.wait_bar = False; self.delay = 0
        while self.q:
            op = self.q[0]
            if op[0] == "late":
                if until_late: return
                self.q.pop(0); continue
            self.q.pop(0)
            if op[0] == "bar":
                for x in op[1]: self.emit1(x)
                self.g.wait(lg="fw"); self.g.e("s_barrier"); continue
            if op[0] == "delay": continue
            if op[0] == "rate": self.extra = op[1]; continue
            if op[0] == "mfmas":
                for m in op[1]: self.g.e(m)
                for x in op[2]: self.emit1(x)
                continue
            self.emit1(op)
            if op[0] == "st":
                while self.sq or (self.cur is not None and self.cur is not self.sq): self.vm(True)

npoll = [0]
def poll(g, first_tag, reload, check):
    if OPT["dbg"] & 1: return
    n = npoll[0]; npoll[0] += 1
    g.wait(vm=first_tag)
    g.e(f"s_mov_b32 s{sT2}, 0")
    check()
    g.e(f"s_cbranch_scc1 L_POK{n}")
    g.label(f"L_PL{n}")
    if OPT["slp"]: g.e("s_sleep %d" % OPT["slp"])
    g.e(reload)
    g.e("s_waitcnt vmcnt(0)")
    g.e(f"s_add_u32 s{sT2}, s{sT2}, 1")
    g.e(f"s_cmp_gt_u32 s{sT2}, {OPT['spin']}")
    g.e(f"s_cbranch_scc1 L_POK{n}")
    check()
    g.e(f"s_cbranch_scc0 L_PL{n}")
    g.label(f"L_POK{n}")
    g.e("s_nop 4")
    if STAMP == 1: g.e(f"v_writelane_b32 v255, s{sT2}, {52 + n % 5}")

CTL_LD = f"buffer_load_dword v{vCTL}, v{vCTLO}, {sr(SDBG)}, 0 offen sc1"
FLG_LD = f"buffer_load_dwordx2 v[{vFLG}:{vFLG+1}], v{vFLO}, {sr(SWS)}, s{sFL} offen sc1"
KFL_LD = f"buffer_load_dwordx4 {vr(vKFL)}, v{vL16}, {sr(SWS)}, s{sKF} offen sc1"
def flag_check(g, mask):
    def f():
        g.e(f"v_cmp_eq_u64 vcc, v[{vFLG}:{vFLG+1}], {sr(sNON,2)}")
        g.e(f"s_and_b32 vcc_lo, vcc_lo, {mask}")
        g.e(f"s_cmp_eq_u32 vcc_lo, {mask}")
    return f

def body(g, typ):
    e = g.e
    S = Sched(g, typ)
    S.wq = [(-1, 0, it) for it in g.wq0]
    S.cur = S.wq if g.cur_open else None
    for p in range(4, 8):
        S.wq += [(p - 4, 0, it) for it in it_x(p)] + [(-1, 0, it) for it in it_w(typ, p)]
    for gi in range(8, 24): S.wq += [(WAV[gi], 0, it) for it in it_w(typ, gi)]
    BPAGE.clear()
    if OPT["dbg"] & 8: S.bnext = 30
    prq = [(s2, ct) for s2 in range(8) for ct in range(2)] if OPT["pr"] else []
    prel = []
    if OPT["dbg"] & 64: S.wq = []
    for gi in range(24):
        c, p = gi >> 3, gi & 7
        corient = (typ == 0 and c < 2)
        A = ACCS[c & 1]
        for u in range(4):
            step = gi * 4 + u
            first = (p == 0 and u == 0)
            wf = vr(WF[step % 3])
            S.tick(); S.step = step
            if first and c > 0:
                e(f"v_cndmask_b32 v{vCSV}, v{CS}, v{CS+1}, {sr(mB4,2)}")
            S.big()
            if (u % 2 == 0 or p == 7) and not OPT["dbg"] & 16:
                e(f"v_mfma_f32_16x16x32_bf16 {vr(CS)}, {vr(MO)}, {wf}, {'0' if first else vr(CS)}"); S.adv(16)
            if c == 0:
                x0 = X(0, p, u)
                e(f"v_mfma_f32_4x4x4_16b_bf16 {vr(Q0)}, a[{x0}:{x0+1}], a[{x0}:{x0+1}], {'0' if first else vr(Q0)}")
                e(f"v_mfma_f32_4x4x4_16b_bf16 {vr(Q1)}, a[{x0+2}:{x0+3}], a[{x0+2}:{x0+3}], {'0' if first else vr(Q1)}")
                e(f"v_mfma_f32_16x16x32_bf16 {vr(S1)}, {vr(MO)}, {ar(x0)}, {'0' if first else vr(S1)}"); S.adv(40)
                read_w(g, step + 2)
            def M(t):
                cc = "0" if first else vr(A[t], 16)
                a, b = (ar(X(t, p, u)), wf) if corient else (wf, ar(X(t, p, u)))
                e(f"v_mfma_f32_32x32x16_bf16 {vr(A[t],16)}, {a}, {b}, {cc}"); S.adv(32)
            M(0)
            sl = 6
            if c == 0:
                if step + 2 < 32: read_x1(g, (step + 2) >> 2, (step + 2) & 3, 0); sl -= 1
                sl -= S.vm()
            elif step + 2 < 96:
                read_w(g, step + 2); sl -= 2
            if gi >= OPT["vm2"]: sl -= S.vm()
            while prel and ("PR", prel[0]) not in g.lg:
                S.pages.append(BPAGE[prel.pop(0)])
            if prq and (16 + 2 * prq[0][0] + prq[0][1]) >> 3 < S.free_stage:
                s2, ct = prq.pop(0)
                assert s2 in BPAGE and ("B", s2) not in [x[2][2] for x in S.bq]
                g.wait(vm=[("B", s2)])
                pg = BPAGE[s2]
                for k in range(2):
                    r = breg(s2, ct) + 2 * k
                    g.ds(f"ds_read_b64_tr_b16 a[{r}:{r+1}], v{vBT+2*(pg>>3)+ct} offset:{(pg & 7) * PAGE + k*1024}", ("PR", s2))
                sl -= 2
                if ct == 1: prel.append(s2)
            S.fill(sl)
            M(1)
            sl = 5
            if step + 2 < 32: read_x1(g, (step + 2) >> 2, (step + 2) & 3, 1); sl -= 1
            if p == 7 and u == 2:
                g.ds(f"ds_read_b32 v{vCSP}, v{vCSR}", "csp"); sl -= 1
            sl -= S.vm()
            if u == 1: sl -= 1
            if p == 6 and u == 3:
                e(f"v_cndmask_b32 v{vTMP}, v{CS}, v{CS+1}, {sr(mB4,2)}")
                g.ds(f"ds_write_b32 v{vCSW}, v{vTMP}", "fw"); sl -= 2
            if c == 2 and u == 3: S.free_stage = p + 1
            if u == 1:
                while any(x[2][2][1] <= gi + 1 for x in S.wq):
                    assert S.vm(True)
                g.st.mark2(g)
                g.wait(vm=[("W", gi + 1), ("X", gi + 1)], lg=["fw", ("Wf", step + 1), ("X", (step+1) >> 2, (step+1) & 3)])
                if not OPT["dbg"] & 4: e("s_barrier")
                g.st.mark2(g)
                S.bar = gi; S.wait_bar = False
                S.pages += [pg for (bb, pg) in BEV if bb == gi]
                if gi == 2: publish_ctl(g, typ)
                if gi == 5: g.vmem(CTL_LD, "ctl")
                if gi == 6:
                    assert not any(x[2][2][0] == "X" for x in S.wq)
                    if OPT["xr"]:
                        e(f"s_and_b32 s{sKEY}, s{sRB2}, 3")
                        e(f"s_lshl_b32 s{sKEY}, s{sKEY}, 1")
                        e(f"s_add_u32 s{sKEY}, s{sKEY}, s{sCB}")
                        e(f"s_and_b32 s{sKEY}, s{sKEY}, 7")
                    else: e(f"s_mov_b32 s{sKEY}, 0")
                    e(f"s_lshl_b32 s{sK14}, s{sKEY}, 14")
                    e(f"s_lshl_b32 s{sHAK}, s{sKEY}, 10")
                    e(f"s_or_b32 s{sPQ}, s{sPQ}, s{sHAK}")
                    e(f"s_or_b32 s{sHAK}, s{sHAK}, s{sHA}")
                if gi == 9:
                    def chk():
                        e(f"v_readlane_b32 s{sNON}, v{vCTL}, 16")
                        e(f"v_readlane_b32 s{sNON+1}, v{vCTL}, 17")
                        if typ == 0:
                            e(f"v_readlane_b32 vcc_lo, v{vCTL}, s{sJ}")
                            e(f"s_min_u32 vcc_lo, vcc_lo, s{sNON}")
                            e(f"s_cmp_lg_u32 vcc_lo, 0")
                        else:
                            e(f"s_cmp_lg_u32 s{sNON}, 0")
                    poll(g, "ctl", CTL_LD, chk)
                    e(f"v_mov_b32 v{vNON}, s{sNON}")
                    e(f"v_mov_b32 v{vNON+1}, s{sNON+1}")
                if gi == OPT["hpoll"] - OPT["hlead"]: g.vmem(FLG_LD, "flg")
                if gi == OPT["hpoll"]:
                    poll(g, "flg", FLG_LD, flag_check(g, 0xf))
                    S.aq += [(aslot_of(s, t) >> 3, 0, it_a(s, t)) for s in range(8) for t in range(2)]
            elif step + 1 < 96:
                g.wait(lg=[("Wf", step + 1), ("X", (step+1) >> 2, (step+1) & 3)])
            S.fill(sl + OPT["fs"] - 5)
        if p == 7:
            g.st.mark(g)
            if c < 2:
                n = len([op for op in S.q if op[0] == "i"])
                if n: print("  typ", typ, "chunk", c, "leftover valu", n)
                S.drain()
                g.wait(lg="csp")
                if not OPT["dbg"] & 2: S.q += epilogue(c, typ, False)
    if OPT["dbg"] & 1:
        stamp_flush(g); e("s_endpgm"); return
    n = len([op for op in S.q if op[0] == "i"])
    if n: print("  typ", typ, "chunk 2 leftover valu", n)
    k = len(S.q)
    while k > 0 and S.q[k-1][0] in ("blk", "waitvm", "delay") and len(S.q) - k < 4: k -= 1
    late = S.q[k:] if len(S.q) - k >= 3 else []
    if late: S.q = S.q[:k]; print("  typ", typ, "late chunk-1 flag")
    S.drain()
    while S.sq or S.cur is not None: assert S.vm(True)
    g.wait(lg="csp")
    e(f"v_cndmask_b32 v{vCSV}, v{CS}, v{CS+1}, {sr(mB4,2)}")
    ep = epilogue(2, typ, True)
    i = [k for k, op in enumerate(ep) if op[0] == "delay"][0]
    S.q = ep[:i]
    S.drain()
    if S.aq: print("  typ", typ, "late A loads", len(S.aq))
    print("  typ", typ, "B items left at T1", 2 * (30 - S.bnext) + len(S.bq), "prereads left", len(prq))
    assert not prq
    while S.aq: assert S.vm(True)
    S.q = late + ep[i:]
    S.drain(until_late=True)
    S.cur = None
    late2 = S.q; S.q = []
    g.st.mark(g)
    g.wait(lg_all=True)
    e("s_barrier")
    S.bar = 24; S.free_stage = 8
    S.pages += [BPAGE[x] for x in prel] + [pg for (bb, pg) in BEV if bb == 24]
    sv = OPT["period"]; OPT["period"] = OPT["p2"]
    phase2(g, S, late2)
    OPT["period"] = sv

def publish_ctl(g, typ):
    if typ != 0: return
    e = g.e
    e(f"s_cmp_eq_u32 s{sZ}, 1")
    e("s_cbranch_scc0 L_NOZF")
    e(f"s_lshl_b32 s{sT1}, s{sJ}, 2")
    e(f"v_mov_b32 v{vTMP}, 1")
    e("s_mov_b64 exec, 1")
    g.vmem(f"buffer_store_dword v{vTMP}, v{vZERO}, {sr(SDBG)}, s{sT1} offen sc1", counted=False)
    e("s_mov_b64 exec, -1")
    g.label("L_NOZF")

def phase2(g, S, late2):
    e = g.e
    NS = 30
    def read_b(s):
        pg = BPAGE[s]; rng = pg >> 3; off = (pg & 7) * PAGE
        b = BF[s % 3]
        return [lambda ct=ct, k=k: g.ds(f"ds_read_b64_tr_b16 v[{b+4*ct+2*k}:{b+4*ct+2*k+1}], v{vBT+2*rng+ct} offset:{off + k*1024}", ("Bf", s))
                for ct in range(2) for k in range(2)]
    def ensure_b(s):
        while S.bnext <= s or any(x[2][2][1] == s for x in S.bq):
            if S.cur is not None: assert S.vm(True); continue
            sv = S.aq; S.aq = []
            assert S.vm(True)
            S.aq = sv
    npr = 8 if OPT["pr"] else 0
    def ensure(q, s):
        while any(x[2][2][1] == s for x in q):
            if S.cur is None:
                it = q.pop(0)[2]; emit_item(g, it); S.cur = q if it[3] else None
            else:
                assert S.vm(True)
    def Cops(h):
        k = KVR[h]
        return [I(f"v_cvt_pk_bf16_f32 v{k+q}, v{k+2*q}, v{k+2*q+1}") for q in range(4)]
    def Nm(h, t): return f"v_mfma_f32_32x32x16_bf16 {vr(ND[t],16)}, {vr(KVR[h])}, {ar(areg(8 + h, t))}, 0"
    def Vops(h, t):
        d = ND[t]
        L = [I(f"v_add_f32 v{d+8}, s{sEPS}, v{d+8}"), I(f"v_rcp_f32 v{d+8}, v{d+8}", 2)]
        for q in range(4):
            L += [I(f"v_mul_f32 v{d+2*q}, v{d+2*q}, v{d+8}"), I(f"v_mul_f32 v{d+2*q+1}, v{d+2*q+1}, v{d+8}")]
        L += [I(f"v_cvt_pk_bf16_f32 v{OF[0][t]+q}, v{d+2*q}, v{d+2*q+1}") for q in range(4)]
        return L
    vq = []
    def valu(n):
        while vq and n > 0:
            op = vq.pop(0); n -= op[2]; e(op[1])
    def redaddr():
        t = T
        L = [f"v_and_b32 v{t}, 31, v1", f"v_lshrrev_b32 v{t+1}, 3, v{t}", f"v_lshlrev_b32 v{t+1}, 13, v{t+1}",
             f"v_and_b32 v{t+2}, 7, v1", f"v_lshl_add_u32 v{t+1}, v{t+2}, 8, v{t+1}", f"v_add_u32 v{t+1}, s{sBL}, v{t+1}",
             f"v_lshrrev_b32 v{t+3}, 5, v1"]
        for q in range(4):
            L += [f"v_add_u32 v{t+4}, {2*q}, v{t+3}", f"v_xor_b32 v{t+4}, v{t+4}, v{t+2}", f"v_lshl_add_u32 v{t+8+q}, v{t+4}, 4, v{t+1}"]
        L += [f"v_lshrrev_b32 v{t}, 6, v0", f"v_lshlrev_b32 v{t}, 13, v{t}", f"v_bfe_u32 v{t+1}, v0, 3, 3",
              f"v_lshl_add_u32 v{t}, v{t+1}, 8, v{t}", f"v_lshlrev_b32 v{t+2}, 1, v{t+2}", f"v_xor_b32 v{t+2}, v{t+2}, v{t+1}",
              f"v_lshl_add_u32 v{t+4}, v{t+2}, 4, v{t}", f"v_xor_b32 v{t+5}, 16, v{t+4}"]
        return [I(x) for x in L]
    if OPT["qld"] == 0: g.vmem(FLG_LD, "flg"); g.vmem(KFL_LD, "kfl")
    if not npr:
        ensure_b(0)
        g.wait(vm=[("B", 0)])
        for f in read_b(0): f()
    for s in range(NS):
        kind, idx = step_kind(s)
        if s == OPT["qld"] and s > 0:
            g.vmem(FLG_LD, "flg"); g.vmem(KFL_LD, "kfl")
        if s - 1 >= npr: S.pages.append(BPAGE[s - 1])
        if s == OPT["pub"]:
            g.st.mark(g)
            S.q = late2; S.drain()
            g.st.mark(g)
        if s == OPT["qchk"]:
            poll(g, "flg", FLG_LD, flag_check(g, 0xf0))
            def chk():
                e(f"v_cmp_eq_u64 vcc, v[{vKFL}:{vKFL+1}], {sr(sNON,2)}")
                e(f"v_cmp_eq_u64 {sr(mB0,2)}, v[{vKFL+2}:{vKFL+3}], {sr(sNON,2)}")
                e(f"s_and_b64 vcc, vcc, {sr(mB0,2)}")
                e("s_cmp_eq_u64 vcc, -1")
            poll(g, "kfl", KFL_LD, chk)
            g.st.mark(g)
            for h in range(8):
                for t in range(2):
                    S.aq.append((0, 0, ([f"s_xor_b32 s{sT3}, s{sKEY}, {h}", f"s_mul_i32 s{sT3}, s{sT3}, {KVH}", f"s_add_u32 s{sT3}, s{sT3}, s{sKV}"] if t == 0 else [],
                                 f"buffer_load_dwordx4 {vr(KVR[h] + 4*t)}, v{vXD+2 if t else vKVO}, {sr(SWS)}, s{sT3} offen offset:{32*t} sc1", ("KV", 8 + h), t == 0)))
                S.aq += [(0, 0, it_a(8 + h, t)) for t in range(2)]
                if h == OPT["h2smp"]: S.aq.append((0, 0, ([], FLG_LD, ("flg", 99), False)))
        if s == 8:
            ensure(S.aq, 8 + OPT["olead"])
            g.st.mark(g)
            g.wait(vm=[("KV", 8), ("A", 8)])
            for op in Cops(0): e(op[1])
            e(Nm(0, 0)); e(Nm(0, 1))
            g.wait(vm=[("KV", 9)])
            for op in Cops(1) + Vops(0, 0): e(op[1])
            vq += [op + ("v1",) for op in Vops(0, 1)]
            g.st.mark(g)
        if s == OPT["h2chk"]:
            ensure(S.aq, 99)
            while S.cur is not None: S.vm(True)
            poll(g, [("flg", 99)], FLG_LD, flag_check(g, 0xff00))
            g.st.mark(g)
            S.aq += [(0, 0, it_a(s2, t)) for s2 in range(16, 30) for t in range(2)]
            for _ in range(OPT["h2n"]): S.vm(True)
        rb = []
        if npr <= s + 1 < NS:
            ensure_b(s + 1)
            rb = read_b(s + 1)
        b = BF[s % 3]
        def Mm(ct, t):
            acc = vr(ACC2 + 32 * ct + 16 * t, 16)
            act = ar(areg(s, t)) if kind == "h" else vr(OF[0][t])
            bo = ar(breg(s, ct)) if s < npr else vr(b+4*ct)
            return f"v_mfma_f32_32x32x16_bf16 {acc}, {bo}, {act}, {'0' if s == 0 else acc}"
        frc = s >= 16 or (OPT["qchk"] <= s < 8)
        if kind == "h":
            ensure(S.aq, s)
            g.wait(vm=[("A", s), ("B", s + 1)], lg=[("Bf", s)])
            if s == 22: vq += redaddr()
            if s == 27:
                g.wait(vm="xr")
                for tt in range(2):
                    for q in range(4):
                        vq.append(I(f"v_lshlrev_b32 v{92+8*tt+2*q}, 16, v{84+4*tt+q}"))
                        vq.append(I(f"v_and_b32 v{92+8*tt+2*q+1}, 0xffff0000, v{84+4*tt+q}"))
            for mi, (ct, t) in enumerate(((0, 0), (1, 0), (0, 1), (1, 1))):
                e(Mm(ct, t)); S.adv(32)
                sl = 6
                if mi < 2 and rb: rb.pop(0)(); rb.pop(0)(); sl -= 2
                sl -= S.vm(frc)
                valu(min(4, sl))
        else:
            h = idx
            nxt = h + 1 < 8
            if h + 2 < 8: ensure(S.aq, s + 2)
            g.wait(vm=[("A", s + 1), ("B", s + 1)] if nxt else [("B", s + 1)], lg=[("Bf", s)])
            seq = ([("N", 0)] if nxt else []) + [("M", 0, 0), ("M", 1, 0)] + ([("N", 1)] if nxt else []) + [("M", 0, 1), ("M", 1, 1)]
            for pi, pp in enumerate(seq):
                if pp == ("N", 1) or (pp == ("M", 0, 1) and not nxt):
                    while vq and vq[0][3:] == ("v1",): e(vq.pop(0)[1])
                e(Nm(h + 1, pp[1]) if pp[0] == "N" else Mm(pp[1], pp[2])); S.adv(32)
                if pp == ("M", 1, 0) and nxt: vq += [op + ("v0",) for op in Vops(h + 1, 0)]
                if pp == ("M", 1, 0) and h + 2 < 8:
                    g.wait(vm=[("KV", s + 2)])
                    vq += [op + ("v0",) for op in Cops(h + 2)]
                if pp == ("M", 1, 1) and nxt:
                    while vq and vq[0][3:] == ("v0",) and len(vq) > 6: e(vq.pop(0)[1])
                sl = 6
                if pi < 2 and rb: rb.pop(0)(); rb.pop(0)(); sl -= 2
                if pi >= 6 - OPT["ovm"]: sl -= S.vm(True)
                valu(OPT["ov"])
            while vq and vq[0][3:] == ("v0",): e(vq.pop(0)[1])
            if nxt: vq += [op + ("v1",) for op in Vops(h + 1, 1)]
        if s == 20:
            g.vmem(f"buffer_load_dwordx4 {vr(84)}, v{vXO}, {sr(SX)}, s{sXR} offen", "xr")
            g.vmem(f"buffer_load_dwordx4 {vr(88)}, v{vXO}, {sr(SX)}, s{sXR+1} offen", "xr")
        if s in (15, 29): g.st.mark(g)
    while vq: e(vq.pop(0)[1])
    assert not S.aq and not S.bq and S.bnext == 30
    t = T
    for ct in range(2):
        for tt in range(2):
            for q in range(4):
                a = ACC2 + 32 * ct + 16 * tt + 4 * q
                g.ds(f"ds_write_b128 v{t+8+q}, {vr(a)} offset:{tt * 4 * PAGE + ct * 128}", "rw")
    g.wait(lg_all=True)
    e("s_barrier")
    R = ACC2
    for tt in range(2):
        for w in range(4):
            for k in range(2):
                d = R + tt * 32 + w * 8 + k * 4
                g.ds(f"ds_read_b128 {vr(d)}, v{t+4+k} offset:{tt * 4 * PAGE + w * 2048}", ("rr", tt))
    for tt in range(2):
        g.wait(lg=[("rr", tt)])
        d = R + tt * 32
        for q in range(4):
            e(f"v_pk_add_f32 v[{d+2*q}:{d+2*q+1}], v[{d+2*q}:{d+2*q+1}], v[{d+8+2*q}:{d+8+2*q+1}]")
            e(f"v_pk_add_f32 v[{d+16+2*q}:{d+16+2*q+1}], v[{d+16+2*q}:{d+16+2*q+1}], v[{d+24+2*q}:{d+24+2*q+1}]")
        for q in range(4):
            e(f"v_pk_add_f32 v[{d+2*q}:{d+2*q+1}], v[{d+2*q}:{d+2*q+1}], v[{92+8*tt+2*q}:{92+8*tt+2*q+1}]")
        for q in range(4):
            e(f"v_pk_add_f32 v[{d+2*q}:{d+2*q+1}], v[{d+2*q}:{d+2*q+1}], v[{d+16+2*q}:{d+16+2*q+1}]")
        for q in range(4):
            e(f"v_cvt_pk_bf16_f32 v{d+8+q}, v{d+2*q}, v{d+2*q+1}")
        g.vmem(f"buffer_store_dwordx4 {vr(d+8)}, v{vXO}, {sr(SOUT)}, s{sXR+tt} offen" + ["", " sc1", " nt", " sc0 sc1"][OPT["osc"]], "o")
    stamp_flush(g)
    e("s_endpgm")

def stamp_flush(g):
    e = g.e
    if STAMP:
        g.st.mark(g)
        e("s_waitcnt vmcnt(0)")
        g.st.mark(g)
        e(f"v_readlane_b32 s{sT0}, v255, 63")
        e(f"s_lshl_b32 s{sT0}, s{sT0}, 2")
        e(f"s_add_u32 s{sT0}, s{sT0}, s{sW}")
        e(f"s_lshl_b32 s{sT0}, s{sT0}, 8")
        e(f"s_add_u32 s{sT0}, s{sT0}, {STB}")
        e("v_lshlrev_b32 v254, 2, v1")
        e(f"buffer_store_dword v255, v254, {sr(SWS)}, s{sT0} offen")

def dpf(g):
    e = g.e
    e("v_lshlrev_b32 v252, 7, v1")
    def touch(wave, nbytes, sd, cond_typ=None):
        nl = nbytes // 128
        e(f"s_mul_i32 s{sT1}, s2, {nbytes}")
        e(f"s_cmp_eq_u32 s{sW}, {wave}")
        e(f"s_cselect_b32 s{sT1}, s{sT1}, {OOB}")
        m = (1 << nl) - 1
        e("s_mov_b32 exec_lo, 0x%x" % (m & 0xffffffff)); e("s_mov_b32 exec_hi, 0x%x" % (m >> 32))
        g.vmem(f"buffer_load_dword v253, v252, {sr(sd)}, s{sT1} offen", "pf")
    touch(0, 5504, SW2); touch(1, 2048, SWO)
    if OPT["dpf"] >= 2:
        touch(2, 6144, SWP); touch(3, 6144, SWS2)
    e("s_mov_b64 exec, -1")

def gen():
    g = Gen(); g.st = Stamps(); e = g.e
    prologue(g)
    g.st.mark(g)
    items = []
    for p in range(4): items += it_x(p) + it_w(0, p)
    pre = OPT["pre"]
    for it in items[:min(12, pre)]: emit_item(g, it)
    setup1(g)
    if OPT["dpf"] and OPT["dpos"] == 0: dpf(g)
    e(f"s_or_b32 s{sT1}, s{sRB}, s{sTYP}")
    e(f"s_or_b32 s{sT1}, s{sT1}, s{sW}")
    e(f"s_cmp_eq_u32 s{sT1}, 0")
    e(f"s_cselect_b32 s{sZ}, 1, 0")
    e("s_cbranch_scc0 L_NOZ")
    e(f"s_memrealtime {sr(sNON,2)}")
    e(f"v_lshlrev_b32 v{vL16}, 4, v1")
    for r in range(4): e(f"v_mov_b32 v{T+r}, 0")
    e(f"s_mul_i32 s{sT1}, s{sJ}, 4352")
    e(f"s_add_u32 s{sT1}, s{sT1}, {KVB}")
    for i in range(4):
        g.vmem(f"buffer_store_dwordx4 {vr(T)}, v{vL16}, {sr(SWS)}, s{sT1} offen offset:{1024*i} sc1", counted=False)
    e(f"s_add_u32 s{sT1}, s{sT1}, 4096")
    e("s_mov_b64 exec, 0xffff")
    g.vmem(f"buffer_store_dwordx4 {vr(T)}, v{vL16}, {sr(SWS)}, s{sT1} offen sc1", counted=False)
    e("s_mov_b64 exec, 1")
    e("s_waitcnt lgkmcnt(0)")
    e(f"s_or_b32 s{sNON}, s{sNON}, 1")
    e(f"v_mov_b32 v{T+4}, s{sNON}")
    e(f"v_mov_b32 v{T+5}, s{sNON+1}")
    e(f"s_cmp_eq_u32 s{sJ}, 0")
    e(f"s_cselect_b32 s{sT1}, 64, {OOB}")
    g.vmem(f"buffer_store_dwordx2 v[{T+4}:{T+5}], v{T}, {sr(SDBG)}, s{sT1} offen sc1", counted=False)
    e("s_mov_b64 exec, -1")
    e("s_nop 1")
    g.label("L_NOZ")
    for it in items[12:pre]: emit_item(g, it)
    if OPT["dpf"] and OPT["dpos"] == 1: dpf(g)
    g.cur_open = items[pre - 1][3]
    assert not g.cur_open
    g.wq0 = items[pre:]
    setup2(g)
    g.st.mark(g)
    g.wait(vm=[("W", 0), ("X", 0)])
    e("s_barrier")
    g.st.mark(g)
    read_x(g, 0, 0); read_w(g, 0); read_x(g, 0, 1); read_w(g, 1)
    g.wait(lg=[("Wf", 0)])
    e(f"s_cmp_eq_u32 s{sTYP}, 0")
    e("s_cbranch_scc0 L_TYPEB")
    st = (list(g.vm), list(g.lg), g.st.n)
    body(g, 0)
    g.label("L_TYPEB")
    g.vm, g.lg, g.st.n = list(st[0]), list(st[1]), st[2]; g.hist = []
    body(g, 1)
    g.label("L_END")
    e("s_endpgm")
    return g

def kd(name, vgpr, sgpr, acc):
    return f""".amdhsa_kernel {name}
  .amdhsa_next_free_vgpr {vgpr}
  .amdhsa_next_free_sgpr {sgpr}
  .amdhsa_accum_offset {acc}
  .amdhsa_group_segment_fixed_size 0
  .amdhsa_kernarg_size 72
  .amdhsa_user_sgpr_count 2
  .amdhsa_user_sgpr_kernarg_segment_ptr 1
  .amdhsa_system_sgpr_workgroup_id_x 1
.end_amdhsa_kernel
"""

def main(out):
    hdr = open("parallel_sum__linear_attn_block__dense_activation_relu__prompt.s.ref").read().split("; Override")[0]
    g = gen()
    s = hdr
    s += "; @launch grid=(256,1,1) block=(256,1,1) lds=163840\n"
    s += '.amdgcn_target "amdgcn-amd-amdhsa--gfx950"\n.text\n'
    s += f".globl {NAME}\n.p2align 8\n.type {NAME},@function\n{NAME}:\n" + g.text()
    s += '.section .rodata,"a"\n.p2align 6\n' + kd(NAME, 512, 102, 256)
    open(out, "w").write(s)
    print("nops", g.nops, "lines", len(g.out), "stamps", g.st.n)

if __name__ == "__main__":
    for a in sys.argv[2:]:
        if a == "stamp": STAMP = 1
        elif a == "stamp2": STAMP = 2
        elif a == "v": VERB = True
        else:
            k, v = a.split("="); OPT[k] = int(v)
    main(sys.argv[1])
```

```python
import sys, struct
sys.path.insert(0, "dev")
from asmgen import Gen

def f2u(x): return struct.unpack("<I", struct.pack("<f", x))[0]
NAME = "parallel_sum__linear_attn_block__dense_activation_relu__prompt_kernel"

HB, QB, KVB, FLB, KFB = 0, 0x800000, 0xA00000, 0xB00000, 0xB10000
HRT = 131072
KVH = 1088
WS_BYTES = 268435456
OOB = 0x40000000
PAGE = 8192
XPAGE = [0, 2, 4, 6, 18]
MISC = 16 * PAGE
M_CS, M_RM, M_RR, M_KV = MISC, MISC + 512, MISC + 1024, MISC + 2048
STAMP = 0
VERB = False
STB = 0x8000000
OPT = dict(rot=2, pre=16, spin=20000, fdelay=14, adelay=16, period=66, debt=1, w1w=15, qrate=4, krate=1, h2n=0, hpoll=19, hlead=2, cpf=2, dpf=1, fs=5, pub=7, qchk=8, olead=4, h2smp=4, ovm=4, ov=6, h2chk=11, slp=2, qld=4, p2=64, dbg=0, lin=0, vm2=8, pc2=50, osc=0, bl=1, xr=1, pr=1, hb=1, hdelay=8, dpos=1, wp=7, s2f=1, dk=10)

def vr(a, n=4): return f"v[{a}:{a+n-1}]"
def ar(a, n=4): return f"a[{a}:{a+n-1}]"
def sr(a, n=4): return f"s[{a}:{a+n-1}]"

SX, SWP, SWS2, SWS, SDBG, SW2, SWO, SOUT = 24, 28, 32, 36, 40, 44, 48, 52
sRB, sTYP, sJ, sW, sM, sN, sRB2, sCB = 56, 57, 58, 59, 60, 61, 62, 63
sXO, sPO, sSO = 64, 72, 80
sT0, sT1, sT2 = 88, 89, 90
sCOL = [4, 5, 6]
sXL, sBL, sT3 = 7, 8, 9
sRT = [10, 11]
sZ, sEPS, sLOG = 12, 13, 14
sK14 = 12
sHAK, sKEY = 64, 65
mB4, mH, mB0, mB1 = 16, 18, 20, 22
sNON = 92
sHST = [94, 95, 96]
sB2, sBO, sHA, sHA2, sPQ = 97, 98, 99, 100, 101
sKV, sFL, sKF, sXR = 91, 2, 3, 0

vXD, vWP, vWS, vBD = 2, 6, 8, 10
vXA = [12, 16]
vWA = 20
vCSW, vCSR, vL16, vSTO, vSTX, vSKIP = 26, 27, 28, 29, 30, 31
vRR, RL, vCSP, vTMP, vCSV, vCTLO = 32, 34, 36, 37, 38, 39
MO, S1, Q0, Q1, CS = 40, 44, 48, 52, 56
WF = [60, 64, 68]
AAUG, BAUG = [72, 76], 80
ACCS = [[84, 100], [116, 132]]
RROW = [148, 164]
PK, VF, T = 180, 196, 212
ONES = S1
RLL, EPSR = 52, 54
vFLO, vCTL, vZERO, vFLG, vNON = 244, 245, 246, 248, 250
vKFL = 48
vBT, vKVO, vXO = 12, 18, 19
ACC2, BF, ND, OF = 116, [56, 64, 72], [84, 100], [[196, 200], [204, 208]]
KVR = [180, 188, 212, 220, 228, 236, 40, 20]
def X(t, p, u): return 128 * t + 16 * p + 4 * u

class Stamps:
    def __init__(self): self.n = 0
    def mark2(self, g):
        if STAMP != 2: return
        g.e("s_memtime vcc"); g.e("s_waitcnt lgkmcnt(0)"); g.lg = []
        g.e("v_writelane_b32 v255, vcc_lo, %d" % self.n); self.n += 1
    def mark(self, g):
        if STAMP != 1: return
        g.e("s_memrealtime vcc"); g.e("s_waitcnt lgkmcnt(0)"); g.lg = []
        g.e("v_writelane_b32 v255, vcc_lo, %d" % self.n)
        g.e("s_memtime vcc"); g.e("s_waitcnt lgkmcnt(0)")
        g.e("v_writelane_b32 v255, vcc_lo, %d" % (self.n + 30)); self.n += 1

def srd(g, d, lo, nbytes):
    g.e(f"s_mov_b32 s{d}, s{lo}")
    g.e(f"s_and_b32 s{d+1}, s{lo+1}, 0xffff")
    g.e(f"s_mov_b32 s{d+2}, {nbytes}")
    g.e(f"s_mov_b32 s{d+3}, 0x00020000")

WORDER = [8, 9, 16, 17, 10, 11, 12, 13, 14, 15, 18, 19, 20, 21, 22, 23]
def page_plan():
    free = []
    wpage = {}; wav = {}
    for g in range(8): wpage[g] = 8 + g; wav[g] = -1
    ev = []
    xr = {3: 4, 4: 5, 0: 6, 1: 7, 2: 8}
    for sl, b in xr.items(): ev += [(b, XPAGE[sl]), (b, XPAGE[sl] + 1)]
    for g in range(8): ev.append((g + 1, wpage[g]))
    for g in WORDER:
        ev.sort(); b, pg = ev.pop(0)
        wpage[g] = pg; wav[g] = b
        ev.append((g + 1, pg))
    ev += [(24, 16), (24, 17)]
    ev.sort()
    return wpage, wav, ev
WPAGE, WAV, BEV = page_plan()
BPAGE = {}

def uses_primary(typ, c): return c == 0 or (typ == 0 and c == 1) or (typ == 1 and c == 2)
def step_kind(s):
    if s < 8: return ("h", s)
    if s < 16: return ("o", s - 8)
    return ("h", s - 8)
def aslot(k):
    p, r = k >> 3, k & 7
    return X(r >> 2, p, r & 3)
def aslot_of(s, t):
    if not OPT["pr"]: return 2 * s + t
    if s < 8: return 2 * s + t
    if s < 24: return 32 + 2 * (s - 8) + t
    return 2 * (s - 24) + t
def areg(s, t): return aslot(aslot_of(s, t))
def breg(s, ct): return aslot(16 + 2 * s + ct)

def it_x(p):
    L = []
    for i in range(4):
        prep = [f"s_add_u32 m0, s{sXL}, {XPAGE[p % 5] * PAGE}"] if i == 0 else []
        L.append((prep, f"buffer_load_dwordx4 v{vXD+i}, {sr(SX)}, s{sXO+p} offen offset:{1024*i} lds", ("X", p), i < 3))
    return L
def it_w(typ, gi):
    c, p = gi >> 3, gi & 7
    q = uses_primary(typ, c)
    s, v, tb = (SWP, vWP, sPO) if q else (SWS2, vWS, sSO)
    prep = [f"s_add_u32 m0, s{sBL}, {WPAGE[gi] * PAGE}", f"s_add_u32 s{sT0}, s{tb+p}, s{sCOL[c]}"]
    if typ == 1 and gi == 16:
        prep += [f"v_or_b32 v{vWP}, v{vWP}, v{vSKIP}", f"v_or_b32 v{vWP+1}, v{vWP+1}, v{vSKIP}"]
    return [(prep, f"buffer_load_dwordx4 v{v}, {sr(s)}, s{sT0} offen lds", ("W", gi), True),
            ([], f"buffer_load_dwordx4 v{v+1}, {sr(s)}, s{sT0} offen offset:1024 lds", ("W", gi), False)]
def it_b(s):
    k, idx = step_kind(s)
    sd, base = (SW2, sB2) if k == "h" else (SWO, sBO)
    if OPT["xr"] and idx < 16:
        prep = [f"s_add_u32 m0, s{sBL}, {BPAGE[s] * PAGE}", f"s_xor_b32 s{sT0}, s{sK14}, {idx * 16384}", f"s_add_u32 s{sT0}, s{sT0}, s{base}"]
    else:
        prep = [f"s_add_u32 m0, s{sBL}, {BPAGE[s] * PAGE}", f"s_add_u32 s{sT0}, s{base}, {idx * 16384}"]
    return [(prep, f"buffer_load_dwordx4 v{vBD}, {sr(sd)}, s{sT0} offen lds", ("B", s), True),
            ([], f"buffer_load_dwordx4 v{vBD+1}, {sr(sd)}, s{sT0} offen offset:1024 lds", ("B", s), False)]
def it_a(s, t):
    k, idx = step_kind(s)
    if k == "h" and idx < 16: prep = [f"s_xor_b32 s{sT3}, s{sHAK}, {idx * 1024 + t * HRT}"]
    elif k == "h": prep = [f"s_add_u32 s{sT3}, s{sHA2 if idx >= 20 else sHA}, {idx * 1024 + t * HRT}"]
    else: prep = [f"s_xor_b32 s{sT3}, s{sPQ}, {idx * 1024 + t * 32768}"]
    return (prep, f"buffer_load_dwordx4 {ar(areg(s, t))}, v{vL16}, {sr(SWS)}, s{sT3} offen sc1", ("A", s), False)
def emit_item(g, it):
    for x in it[0]: g.e(x)
    g.vmem(it[1], it[2])

def prologue(g):
    e = g.e
    e("s_cmp_ge_u32 s2, 256")
    e("s_cbranch_scc1 L_END")
    g.st.mark(g)
    e("s_load_dwordx16 s[4:19], s[0:1], 0")
    e("s_load_dwordx2 s[20:21], s[0:1], 64")
    if OPT["cpf"] == 1:
        e("s_getpc_b64 s[22:23]")
        e("v_lshlrev_b32 v252, 7, v0")
        g.vmem("global_load_dword v253, v252, s[22:23]", "pf")
    if OPT["cpf"] == 2:
        e("s_getpc_b64 s[22:23]")
        e("s_bfe_u32 s24, s2, 0x30003")
        e("s_lshl_b32 s24, s24, 12")
        e("v_lshrrev_b32 v252, 3, v0")
        e("v_lshl_add_u32 v252, v252, 7, s24")
        g.vmem("global_load_dword v253, v252, s[22:23]", "pf")
    e("v_and_b32 v1, 63, v0")
    e("v_lshrrev_b32 v2, 6, v0")
    if OPT["lin"]: e(f"s_lshr_b32 s{sT0}, s2, 5")
    else: e(f"s_and_b32 s{sT0}, s2, 7")
    e(f"v_readfirstlane_b32 s{sW}, v2")
    if OPT["lin"]: e(f"s_and_b32 s{sT1}, s2, 31")
    else: e(f"s_lshr_b32 s{sT1}, s2, 3")
    e(f"s_and_b32 s{sRB}, s{sT0}, 3")
    e(f"s_lshl_b32 s{sRB}, s{sRB}, 2")
    e(f"s_lshr_b32 s{sT2}, s{sT1}, 3")
    e(f"s_add_u32 s{sRB}, s{sRB}, s{sT2}")
    e(f"s_lshl_b32 s{sRB2}, s{sT0}, 2")
    e(f"s_add_u32 s{sRB2}, s{sRB2}, s{sT2}")
    e(f"s_and_b32 s{sCB}, s{sT1}, 7")
    e(f"s_and_b32 s{sTYP}, s{sCB}, 1")
    e(f"s_lshr_b32 s{sJ}, s{sT0}, 2")
    e(f"s_lshl_b32 s{sJ}, s{sJ}, 2")
    e(f"s_lshr_b32 s{sT0}, s{sCB}, 1")
    e(f"s_add_u32 s{sJ}, s{sJ}, s{sT0}")
    if OPT["rot"] == 1: e(f"s_add_u32 s91, s{sCB}, s{sT2}")
    elif OPT["rot"] == 2: e(f"s_lshl_b32 s91, s{sT2}, 1"); e(f"s_add_u32 s91, s91, s{sCB}")
    elif OPT["rot"] in (3, 4, 5):
        e(f"s_lshr_b32 s91, s{sRB}, 2")
        e("s_lshl_b32 s91, s91, 1")
        e(f"s_and_b32 s92, s{sJ}, 4")
        e("s_add_u32 s91, s91, s92")
        if OPT["rot"] == 4:
            e(f"s_add_u32 s92, s{sCB}, s{sT2}")
            e("s_and_b32 s92, s92, 1")
            e("s_add_u32 s91, s91, s92")
        if OPT["rot"] == 5:
            e(f"s_add_u32 s92, s{sCB}, s{sT2}")
            e("s_and_b32 s92, s92, 3")
            e("s_add_u32 s91, s91, s92")
    else: e("s_mov_b32 s91, 0")
    e("v_lshrrev_b32 v12, 3, v1")
    e("v_and_b32 v13, 7, v1")
    e("v_lshrrev_b32 v14, 1, v12")
    e("v_xor_b32 v15, v13, v14")
    e("v_lshlrev_b32 v15, 4, v15")
    e(f"v_lshl_add_u32 v{vXD}, v12, 10, v15")
    e(f"v_xor_b32 v{vXD+1}, 64, v{vXD}")
    e(f"v_add_u32 v{vXD+2}, {2*7168}, v{vXD}")
    e(f"v_add_u32 v{vXD+3}, {3*7168}, v{vXD+1}")
    e(f"v_add_u32 v{vXD+1}, 7168, v{vXD+1}")
    e("v_and_b32 v14, 1, v14")
    e("v_lshlrev_b32 v14, 2, v14")
    e("v_xor_b32 v15, v13, v14")
    e("v_lshlrev_b32 v15, 4, v15")
    e("s_movk_i32 s97, 2752")
    e("s_movk_i32 s96, 3072")
    e(f"s_cmp_eq_u32 s{sTYP}, 0")
    e("s_cselect_b32 s98, s96, s97")
    e("s_cselect_b32 s99, s97, s96")
    e(f"v_mad_u32_u24 v{vWP}, s98, v12, v15")
    e("s_lshl_b32 s100, s98, 3")
    e("s_sub_u32 s100, s100, 1024")
    e(f"v_add_u32 v{vWP+1}, s100, v{vWP}")
    e(f"s_lshl_b32 s92, s{sRB}, 7")
    e(f"s_lshl_b32 s{sT0}, s{sW}, 5")
    e(f"s_add_u32 s92, s92, s{sT0}")
    e("s_lshl_b32 s92, s92, 10")
    e(f"s_lshl_b32 s93, s{sW}, 4")
    def tab(p):
        e(f"s_add_u32 s{sT0}, s91, {p}")
        e(f"s_and_b32 s{sT0}, s{sT0}, 7")
        e(f"s_lshl_b32 s{sXO+p}, s{sT0}, 7")
        e(f"s_add_u32 s{sXO+p}, s{sXO+p}, s92")
        e(f"s_lshl_b32 s{sT0}, s{sT0}, 6")
        e(f"s_add_u32 s{sT0}, s{sT0}, s93")
        e(f"s_mul_i32 s{sPO+p}, s{sT0}, s98")
        e(f"s_mul_i32 s{sSO+p}, s{sT0}, s99")
    g.tab = tab
    for p in range(3): tab(p)
    e(f"s_lshl_b32 s95, s{sJ}, 7")
    e(f"s_add_u32 s95, s95, 1024")
    e(f"s_lshr_b32 s{sT0}, s{sJ}, 1")
    e(f"s_mul_i32 s{sT0}, s{sT0}, 704")
    e(f"s_and_b32 s{sT1}, s{sJ}, 1")
    e(f"s_lshl_b32 s{sT1}, s{sT1}, 7")
    e(f"s_add_u32 s{sT0}, s{sT0}, s{sT1}")
    e(f"s_lshl_b32 s{SWP+2}, s98, 9")
    e(f"s_lshl_b32 s{SWS2+2}, s99, 9")
    e(f"s_mov_b32 s{SWP+3}, 0x00020000")
    e(f"s_mov_b32 s{SWS2+3}, 0x00020000")
    e(f"s_mov_b32 s{SX+2}, {2048*1024}")
    e(f"s_mov_b32 s{SX+3}, 0x00020000")
    e(f"s_cmp_eq_u32 s{sTYP}, 0")
    e(f"s_cselect_b32 s95, s95, s{sT0}")
    e("s_waitcnt lgkmcnt(0)")
    e(f"s_cselect_b32 s{SWP}, s6, s12")
    e(f"s_cselect_b32 s{SWP+1}, s7, s13")
    e(f"s_cselect_b32 s{SWS2}, s12, s6")
    e(f"s_cselect_b32 s{SWS2+1}, s13, s7")
    e(f"s_mov_b32 s{SX}, s4")
    e(f"s_and_b32 s{SX+1}, s5, 0xffff")
    e(f"s_and_b32 s{SWP+1}, s{SWP+1}, 0xffff")
    e(f"s_mov_b32 s{SWO}, s8")
    e(f"s_and_b32 s{SWO+1}, s9, 0xffff")
    e(f"s_mov_b32 s{sCOL[0]}, s95")
    e(f"s_lshl_b32 s{sXL}, s{sW}, 12")
    e(f"s_lshl_b32 s{sBL}, s{sW}, 11")

def setup1(g):
    e = g.e
    e(f"s_and_b32 s{SWS2+1}, s{SWS2+1}, 0xffff")
    e(f"s_mov_b32 s{SWO+2}, {512*1024}")
    e(f"s_mov_b32 s{SWO+3}, 0x00020000")
    srd(g, SWS, 20, WS_BYTES)
    srd(g, SDBG, 18, 256)
    srd(g, SW2, 14, 1376 * 1024)
    srd(g, SOUT, 16, 2048 * 1024)
    e(f"s_lshr_b32 s{sM}, s{sW}, 1")
    e(f"s_and_b32 s{sN}, s{sW}, 1")
    for p in range(3, 8): g.tab(p)

def setup2(g):
    e = g.e
    t = T
    e(f"v_mad_u32_u24 v{vWS}, s99, v12, v15")
    e("s_lshl_b32 s100, s99, 3")
    e("s_sub_u32 s100, s100, 1024")
    e(f"v_add_u32 v{vWS+1}, s100, v{vWS}")
    e(f"v_lshl_add_u32 v{vBD}, v12, 10, v15")
    e(f"v_add_u32 v{vBD+1}, 7168, v{vBD}")
    e(f"s_and_b32 s{sT0}, s{sJ}, 1")
    e(f"s_cmp_eq_u32 s{sJ}, 6")
    e(f"s_cselect_b32 s{sT0}, 1, s{sT0}")
    e(f"s_and_b32 s101, s{sT0}, s{sTYP}")
    e(f"v_bfe_u32 v{vSKIP}, v15, 6, 1")
    e(f"v_and_b32 v{vSKIP}, s101, v{vSKIP}")
    e(f"v_lshlrev_b32 v{vSKIP}, 30, v{vSKIP}")
    e(f"v_and_b32 v{t}, 31, v1")
    e(f"v_lshrrev_b32 v{t+1}, 5, v1")
    e(f"v_bfe_u32 v{t+2}, v1, 1, 3")
    e(f"s_lshl_b32 s{sT1}, s{sM}, 6")
    e(f"s_lshl_b32 s{sT0}, s{sN}, 5")
    e(f"s_add_u32 s{sT1}, s{sT1}, s{sT0}")
    e(f"v_add_u32 v{t+3}, s{sT1}, v{t}")
    e(f"v_lshlrev_b32 v{t+4}, 7, v{t+3}")
    for u in range(4):
        e(f"s_xor_b32 s{sT0}, s{sM}, {u}")
        e(f"s_lshl_b32 s{sT0}, s{sT0}, 1")
        e(f"v_add_u32 v{t+5}, s{sT0}, v{t+1}")
        e(f"v_xor_b32 v{t+5}, v{t+5}, v{t+2}")
        e(f"v_lshl_add_u32 v{vXA[0]+u}, v{t+5}, 4, v{t+4}")
        e(f"v_xor_b32 v{vXA[1]+u}, 0x1000, v{vXA[0]+u}")
    e(f"v_lshlrev_b32 v{vSTO}, 2, v{t+3}")
    e(f"v_add_u32 v{vSTO}, {M_RM}, v{vSTO}")
    e(f"v_xor_b32 v{vSTX}, 0x80, v{vSTO}")
    e(f"v_bfe_u32 v{t+5}, v1, 2, 2")
    e(f"v_and_b32 v{t+6}, 3, v1")
    e(f"v_bfe_u32 v{t+7}, v1, 4, 1")
    e(f"v_lshrrev_b32 v{t+8}, 1, v{t+6}")
    e(f"v_lshl_add_u32 v{t+8}, v{t+7}, 1, v{t+8}")
    e(f"v_lshrrev_b32 v{t+9}, 1, v{t+5}")
    e(f"v_lshlrev_b32 v{t+9}, 2, v{t+9}")
    e(f"v_xor_b32 v{t+8}, v{t+8}, v{t+9}")
    e(f"v_lshlrev_b32 v{t+8}, 4, v{t+8}")
    e(f"v_and_b32 v{t+9}, 1, v{t+6}")
    e(f"v_lshl_add_u32 v{t+8}, v{t+9}, 3, v{t+8}")
    e(f"v_lshl_add_u32 v{t+8}, v{t+5}, 7, v{t+8}")
    e(f"v_lshl_add_u32 v247, v{t+1}, 9, v{t+8}")
    e(f"v_lshl_add_u32 v{t+9}, v{t+1}, 10, v{t+8}")
    e(f"s_lshl_b32 s{sT0}, s{sN}, 6")
    e(f"v_xor_b32 v{t+9}, s{sT0}, v{t+9}")
    e(f"s_lshl_b32 s{sT0}, s{sM}, 11")
    e(f"v_add_u32 v{vWA}, s{sT0}, v{t+9}")
    e(f"v_subrev_u32 v{vWA+1}, s{sT0}, v{t+9}")
    e(f"v_add_u32 v{vWA+1}, 2048, v{vWA+1}")
    for r in (1, 2):
        e(f"v_add_u32 v{vWA+2*r}, {65536*r}, v{vWA}")
        e(f"v_add_u32 v{vWA+2*r+1}, {65536*r}, v{vWA+1}")
    e(f"v_lshlrev_b32 v{vL16}, 4, v1")
    e(f"v_cmp_eq_u32 {sr(mB4,2)}, 1, v{t+7}")
    e(f"v_cmp_eq_u32 {sr(mH,2)}, 1, v{t+1}")
    e(f"v_and_b32 v{t+9}, 1, v1")
    e(f"v_cmp_eq_u32 {sr(mB0,2)}, 1, v{t+9}")
    e(f"v_and_b32 v{t+10}, 2, v1")
    e(f"v_cmp_eq_u32 {sr(mB1,2)}, 2, v{t+10}")
    e(f"v_cmp_eq_u32 vcc, v{t+9}, v{t+7}")
    e(f"v_mov_b32 v{t+10}, 0x3f803f80")
    for r in range(4): e(f"v_cndmask_b32 v{MO+r}, 0, v{t+10}, vcc")
    for r in range(1, 4):
        e(f"v_mov_b32 v{AAUG[0]+r}, 0"); e(f"v_mov_b32 v{AAUG[1]+r}, 0"); e(f"v_mov_b32 v{BAUG+r}, 0")
    e(f"v_mov_b32 v{vZERO}, 0")
    e(f"s_mov_b32 s{sLOG}, 0x3fb8aa3b")
    e(f"s_mov_b32 s{sLOG+1}, 0x3fb8aa3b")
    e(f"s_mov_b32 s{sEPS}, 0x%08x" % f2u(1e-6))
    e(f"s_lshl_b32 s{sT0}, s{sN}, 1")
    e(f"s_add_u32 s{sT0}, s{sT0}, s{sM}")
    e(f"s_lshl_b32 s{sT0}, s{sT0}, 7")
    e(f"s_add_u32 s{sT0}, s{sT0}, {M_CS}")
    e(f"v_lshl_add_u32 v{vCSW}, v{t}, 2, s{sT0}")
    e(f"v_xor_b32 v{vCSR}, 0x80, v{vCSW}")
    e(f"v_lshlrev_b32 v{t+9}, 4, v{t+1}")
    e(f"s_lshl_b32 s{sT0}, s{sT1}, 2")
    e(f"s_add_u32 s{sT0}, s{sT0}, {M_RR}")
    e(f"v_add_u32 v{vRR}, s{sT0}, v{t+9}")
    e(f"v_xor_b32 v{vRR+1}, 0x80, v{vRR}")
    e(f"s_lshl_b32 s{sT0}, s{sRB}, 2")
    e(f"s_lshl_b32 s{sT2}, s{sM}, 1")
    e(f"s_add_u32 s{sT0}, s{sT0}, s{sT2}")
    e(f"s_add_u32 s{sRT[0]}, s{sT0}, s{sN}")
    e(f"s_xor_b32 s{sRT[1]}, s{sRT[0]}, 1")
    e(f"v_and_b32 v{t+9}, 15, v1")
    e(f"v_lshlrev_b32 v{vFLO}, 3, v{t+9}")
    e(f"v_lshlrev_b32 v{vCTLO}, 2, v1")
    e(f"s_lshr_b32 s{sT0}, s{sJ}, 1")
    e(f"s_mul_i32 s{sT0}, s{sT0}, 704")
    e(f"s_and_b32 s{sT1}, s{sJ}, 1")
    e(f"s_lshl_b32 s{sT2}, s{sT1}, 7")
    e(f"s_add_u32 s{sT2}, s{sT2}, s{sT0}")
    e(f"s_add_u32 s{sCOL[2]}, s{sT2}, 256")
    e(f"s_lshl_b32 s{sT1}, s{sT1}, 6")
    e(f"s_sub_u32 s{sT0}, s{sT0}, s{sT1}")
    e(f"s_add_u32 s{sT0}, s{sT0}, 576")
    e(f"s_lshl_b32 s{sCOL[1]}, s{sJ}, 7")
    e(f"s_add_u32 s{sT2}, s{sCOL[1]}, 2048")
    e(f"s_cmp_eq_u32 s{sTYP}, 0")
    e(f"s_cselect_b32 s{sCOL[1]}, s{sT2}, s{sCOL[1]}")
    e(f"s_cselect_b32 s{sCOL[2]}, s{sCOL[2]}, s{sT0}")
    e(f"s_lshl_b32 s{sT0}, s{sN}, 11")
    e(f"s_lshl_b32 s{sHST[1]}, s{sJ}, 12")
    e(f"s_add_u32 s{sHST[1]}, s{sHST[1]}, s{sT0}")
    e(f"s_add_u32 s{sHST[1]}, s{sHST[1]}, {QB}")
    e(f"s_lshr_b32 s{sT1}, s{sJ}, 1")
    e(f"s_mul_i32 s{sT1}, s{sT1}, 10240")
    e(f"s_add_u32 s{sT0}, s{sT0}, s{sT1}")
    for c in (0, 2):
        e(f"s_lshl_b32 s{sHST[c]}, s{sCOL[c]}, 5")
        e(f"s_add_u32 s{sHST[c]}, s{sHST[c]}, s{sT0}")
    e(f"s_and_b32 s{sT0}, s101, s{sN}")
    e(f"s_cmp_eq_u32 s{sT0}, 1")
    e(f"s_cselect_b32 s{sHST[2]}, {OOB}, s{sHST[2]}")
    e(f"s_lshl_b32 s{sT0}, s{sCB}, 7")
    e(f"s_mul_i32 s{sB2}, s{sW}, {22 * 16 * 1024}")
    e(f"s_add_u32 s{sB2}, s{sB2}, s{sT0}")
    e(f"s_lshl_b32 s{sBO}, s{sW}, 17")
    e(f"s_add_u32 s{sBO}, s{sBO}, s{sT0}")
    e(f"s_lshl_b32 s{sXR}, s{sRB2}, 16")
    e(f"s_add_u32 s{sXR}, s{sXR}, s{sT0}")
    e(f"s_add_u32 s{sXR+1}, s{sXR}, 32768")
    e(f"s_lshl_b32 s{sHA}, s{sRB2}, 3")
    e(f"s_add_u32 s{sHA}, s{sHA}, s{sW}")
    e(f"s_lshl_b32 s{sHA}, s{sHA}, 15")
    e(f"s_cmp_eq_u32 s{sW}, 3")
    e(f"s_cselect_b32 s{sHA2}, {OOB}, s{sHA}")
    e(f"s_lshl_b32 s{sPQ}, s{sRB2}, 6")
    e(f"s_lshl_b32 s{sT0}, s{sW}, 3")
    e(f"s_add_u32 s{sPQ}, s{sPQ}, s{sT0}")
    e(f"s_lshl_b32 s{sPQ}, s{sPQ}, 10")
    e(f"s_add_u32 s{sPQ}, s{sPQ}, {QB}")
    e(f"s_mul_i32 s{sKV}, s{sW}, {8 * KVH}")
    e(f"s_add_u32 s{sKV}, s{sKV}, {KVB}")
    if STAMP: e("v_writelane_b32 v255, s2, 63")
    e(f"s_lshl_b32 s{sFL}, s{sRB2}, 2")
    e(f"s_add_u32 s{sFL}, s{sFL}, s{sW}")
    e(f"s_lshl_b32 s{sFL}, s{sFL}, 7")
    e(f"s_add_u32 s{sFL}, s{sFL}, {FLB}")
    e(f"s_lshl_b32 s{sKF}, s{sW}, 10")
    e(f"s_add_u32 s{sKF}, s{sKF}, {KFB}")

def I(t, c=1): return ("i", t, c)
def setup3_ops():
    L = [I(f"v_add_u32 v{vBT}, s{sBL}, v247"), I(f"v_xor_b32 v{vBT+1}, 64, v{vBT}")]
    for r in (1, 2):
        L += [I(f"v_add_u32 v{vBT+2*r}, {65536*r}, v{vBT}"), I(f"v_add_u32 v{vBT+2*r+1}, {65536*r}, v{vBT+1}")]
    L += [I(f"v_lshrrev_b32 v{vXD}, 5, v1"),
          I(f"v_lshlrev_b32 v{vXD+1}, 8, v{vXD}"),
          I(f"v_lshl_add_u32 v{vXD+1}, v{vFLO}, 1, v{vXD+1}"),
          I(f"v_lshlrev_b32 v{vXD}, 4, v{vXD}"),
          I(f"v_add_u32 v{vXD}, 1024, v{vXD}"),
          I(f"v_cndmask_b32 v{vKVO}, v{vXD+1}, v{vXD}, {sr(mB4,2)}"),
          I(f"v_add_u32 v{vXD+1}, 480, v{vXD+1}"),
          I(f"v_cndmask_b32 v{vXD+2}, v{vXD+1}, v{vXD}, {sr(mB4,2)}"),
          I(f"v_lshrrev_b32 v{vXD}, 3, v0"),
          I(f"v_and_b32 v{vXD+1}, 7, v0"),
          I(f"v_lshlrev_b32 v{vXD+1}, 4, v{vXD+1}"),
          I(f"v_lshl_add_u32 v{vXO}, v{vXD}, 10, v{vXD+1}")]
    return L

def read_x1(g, p, u, t):
    off = XPAGE[p % 5] * PAGE
    if off < 65536:
        g.ds(f"ds_read_b128 {ar(X(t, p, u))}, v{vXA[t] + u} offset:{off}", ("X", p, u))
    else:
        g.e(f"v_add_u32 v{vTMP}, {off}, v{vXA[t] + u}")
        g.ds(f"ds_read_b128 {ar(X(t, p, u))}, v{vTMP}", ("X", p, u))
def read_x(g, p, u):
    for t in range(2): read_x1(g, p, u, t)
def read_w(g, step):
    gi, u = step >> 2, step & 3
    b = WF[step % 3]
    pg = WPAGE[gi]
    off = (pg & 7) * PAGE + (u & ~1) * 2048
    a = vWA + 2 * (pg >> 3) + (u & 1)
    g.ds(f"ds_read_b64_tr_b16 v[{b}:{b+1}], v{a} offset:{off}", ("Wf", step))
    g.ds(f"ds_read_b64_tr_b16 v[{b+2}:{b+3}], v{a} offset:{off + 512}", ("Wf", step))

def flag_store(addr_ops, tag):
    return [("blk", addr_ops, 6), ("waitvm", tag),
            ("blk", ["s_mov_b64 exec, 1",
                     ("vm", f"buffer_store_dwordx2 v[{vNON}:{vNON+1}], v{vZERO}, {sr(SWS)}, s{sT1} offen sc1"),
                     "s_mov_b64 exec, -1"], 4)]
def flag_addr(kind):
    return [f"s_lshl_b32 s{sT1}, s{sRB}, 1", f"s_add_u32 s{sT1}, s{sT1}, s{sM}", f"s_lshl_b32 s{sT1}, s{sT1}, 2",
            f"s_lshr_b32 s{sT2}, s{sJ}, 1", f"s_add_u32 s{sT1}, s{sT1}, s{sT2}", f"s_lshl_b32 s{sT1}, s{sT1}, 4",
            f"s_and_b32 s{sT2}, s{sJ}, 1", f"s_lshl_b32 s{sT2}, s{sT2}, 1", f"s_add_u32 s{sT1}, s{sT1}, s{sT2}",
            f"s_add_u32 s{sT1}, s{sT1}, s{sN}", f"s_add_u32 s{sT1}, s{sT1}, {kind * 4}", f"s_lshl_b32 s{sT1}, s{sT1}, 3",
            f"s_add_u32 s{sT1}, s{sT1}, {FLB}"]
def kvflag_addr():
    return [f"s_lshl_b32 s{sT1}, s{sRB}, 2", f"s_add_u32 s{sT1}, s{sT1}, s{sW}", f"s_lshl_b32 s{sT1}, s{sT1}, 3",
            f"s_lshl_b32 s{sT2}, s{sJ}, 9", f"s_add_u32 s{sT1}, s{sT1}, s{sT2}", f"s_add_u32 s{sT1}, s{sT1}, {KFB}"]
def bfr(d, s): return [I(f"v_cvt_pk_bf16_f32 v{d}, v{s}, v{s}"), I(f"v_and_b32 v{d}, 0xffff0000, v{d}")]
SEL = ["op_sel:[0,0] op_sel_hi:[1,0]", "op_sel:[0,1] op_sel_hi:[1,1]"]
SEL3 = ["op_sel:[0,0,0] op_sel_hi:[1,0,1]", "op_sel:[0,1,0] op_sel_hi:[1,1,1]"]

def epilogue(c, typ, fast):
    L = []
    A = ACCS[c & 1]
    corient = (typ == 0 and c < 2)
    t = T; cs = vCSV
    bau = [I(f"v_add_f32 v{cs}, v{cs}, v{vCSP}"),
           I(f"v_cvt_pk_bf16_f32 v{t}, -v{cs}, -v{cs}"),
           I(f"v_and_b32 v{t}, 0xffff0000, v{t}"),
           I(f"v_sub_f32 v{t}, -v{cs}, v{t}"),
           I(f"v_cvt_pk_bf16_f32 v{t}, -v{cs}, v{t}"),
           I(f"v_cndmask_b32 v{BAUG}, v{t}, 0, {sr(mH,2)}")]
    if c == 0:
        L += [I(f"v_cndmask_b32 v{t+1}, v{S1}, v{S1+1}, {sr(mB4,2)}")]
        L += [I(f"v_add_f32 v{Q0+r}, v{Q0+r}, v{Q1+r}") for r in range(4)]
        L += [I(f"v_cndmask_b32 v{t+2}, v{Q0}, v{Q0+1}, {sr(mB0,2)}"),
              I(f"v_cndmask_b32 v{t+3}, v{Q0+2}, v{Q0+3}, {sr(mB0,2)}"),
              I(f"v_cndmask_b32 v{t+2}, v{t+2}, v{t+3}, {sr(mB1,2)}"),
              I(f"v_mov_b32 v{t+3}, v{t+2}"),
              I(f"v_mul_f32 v{t+1}, 0x3b000000, v{t+1}"),
              I(f"v_cvt_pk_bf16_f32 v{AAUG[0]}, v{t+1}, v{t+1}"),
              I(f"v_permlane32_swap_b32 v{t+2}, v{t+3}"),
              I(f"v_add_f32 v{t+2}, v{t+2}, v{t+3}"),
              I(f"v_mul_f32 v{t+2}, 0x3b000000, v{t+2}"),
              I(f"v_fma_f32 v{t+2}, -v{t+1}, v{t+1}, v{t+2}"),
              I(f"v_max_f32 v{t+2}, 0, v{t+2}")]
        L += bfr(t+2, t+2)
        L += [I(f"v_add_f32 v{t+2}, 0x%08x, v{t+2}" % f2u(1e-5))]
        L += bfr(t+2, t+2)
        L += [I(f"v_sqrt_f32 v{t+2}, v{t+2}", 2), ("ds", f"ds_write_b32 v{vSTO}, v{AAUG[0]}", "fw")]
        L += bfr(t+2, t+2)
        L += [I(f"v_rcp_f32 v{RL}, v{t+2}", 2), bau[0]]
        L += [("ds", f"ds_write_b32 v{vSTO}, v{RL} offset:512", "fw"), ("bar", bau[1:])]
        L += [("ds", f"ds_read_b32 v{AAUG[1]}, v{vSTX}", "fr"), ("ds", f"ds_read_b32 v{RL+1}, v{vSTX} offset:512", "fr")]
        if typ == 0:
            for tt in range(2):
                for q in range(4):
                    L += [("ds", f"ds_read_b128 {vr(RROW[tt] + 4*q)}, v{vRR+tt} offset:{32*q}", "fr")]
        L += [("delay", 1), ("waitlg", "fr")]
    else:
        L += bau
    for tt in range(2):
        a, b = (vr(AAUG[tt]), vr(BAUG)) if corient else (vr(BAUG), vr(AAUG[tt]))
        L += [("mfma", f"v_mfma_f32_32x32x16_bf16 {vr(A[tt],16)}, {a}, {b}, {vr(A[tt],16)}")]
    L += [("delay", 1)]
    def pk(op, d, a, b, c3=None, mod=""):
        s = f"{op} v[{d}:{d+1}], v[{a}:{a+1}], {b}"
        if c3 is not None: s += f", v[{c3}:{c3+1}]"
        return s + (" " + mod if mod else "")
    def cvt(tt, d): return [I(f"v_cvt_pk_bf16_f32 v{d+q}, v{A[tt]+2*q}, v{A[tt]+2*q+1}") for q in range(8)]
    def store(tt, d, stride, tag):
        return [("st", [([f"s_mul_i32 s{sT3}, s{sRT[tt]}, {stride}", f"s_add_u32 s{sT3}, s{sT3}, s{sHST[c]}"],
                         f"buffer_store_dwordx4 {vr(d)}, v{vL16}, {sr(SWS)}, s{sT3} offen sc1", tag, True),
                        ([], f"buffer_store_dwordx4 {vr(d+4)}, v{vL16}, {sr(SWS)}, s{sT3} offen offset:1024 sc1", tag, False)])]
    tag = "st%d" % c
    if c == 1 and typ == 1:
        L += [("burst", [pk("v_pk_mul_f32", t+16*tt+2*q, A[tt]+2*q, f"v[{RLL}:{RLL+1}]", None, SEL[tt]) for tt in range(2) for q in range(8)])]
        L += [("rate", OPT["qrate"])]
        for tt in range(2):
            for r in range(16):
                L += [I(f"v_exp_f32_e64 v{t+16*tt+r}, v{t+16*tt+r} clamp", 2), I(f"v_max_f32 v{A[tt]+r}, v{EPSR+tt}, v{A[tt]+r}")]
        L += [("burst", [pk("v_pk_fma_f32", A[tt]+2*q, A[tt]+2*q, f"v[{RL}:{RL+1}]", t+16*tt+2*q, SEL3[tt]) for tt in range(2) for q in range(8)])]
        for tt in range(2): L += cvt(tt, VF + 8*tt) + store(tt, VF + 8*tt, 32768, tag)
        L += [("rate", 0), ("delay", OPT["fdelay"])] + flag_store(flag_addr(1), tag)
    elif c == 0 and typ == 0:
        B = [pk("v_pk_mul_f32", A[tt]+2*q, A[tt]+2*q, f"v[{RROW[tt]+2*q}:{RROW[tt]+2*q+1}]") for tt in range(2) for q in range(8)]
        B += [pk("v_pk_mul_f32", t+16*tt+2*q, A[tt]+2*q, sr(sLOG, 2)) for tt in range(2) for q in range(8)]
        L += [("burst", B), ("rate", OPT["krate"])]
        for tt in range(2):
            for r in range(16):
                L += [I(f"v_exp_f32_e64 v{t+16*tt+r}, v{t+16*tt+r} clamp", 2), I(f"v_max_f32 v{A[tt]+r}, s{sEPS}, v{A[tt]+r}")]
        L += [("burst", [pk("v_pk_add_f32", A[tt]+2*q, A[tt]+2*q, f"v[{t+16*tt+2*q}:{t+16*tt+2*q+1}]") for tt in range(2) for q in range(8)])]
        for tt in range(2): L += cvt(tt, PK + 8*tt)
        L += [("rate", 0)]
    elif c == 1 and typ == 0:
        B = [pk("v_pk_mul_f32", A[tt]+2*q, A[tt]+2*q, f"v[{RROW[tt]+2*q}:{RROW[tt]+2*q+1}]") for tt in range(2) for q in range(8)]
        B += [x[1] for tt in range(2) for x in cvt(tt, VF + 8*tt)]
        L += [("burst", B)]
        KVA = A[0]
        adr = [I(f"v_bfe_u32 v{t+16}, v1, 4, 1"), I(f"v_mul_u32_u24 v{t+16}, {KVH}, v{t+16}"),
               ("blk", [f"s_mul_i32 s{sT1}, s{sM}, 4352", f"s_mul_i32 s{sT2}, s{sN}, 2176", f"s_add_u32 s{sT1}, s{sT1}, s{sT2}",
                        f"s_add_u32 s{sT1}, s{sT1}, {M_KV}", f"v_add_u32 v{t+16}, s{sT1}, v{t+16}"], 5),
               I(f"v_lshrrev_b32 v{t+17}, 5, v1"),
               I(f"v_lshrrev_b32 v{t+18}, 1, v{vFLO}"), I(f"v_add_u32 v{t+18}, v{t+18}, v{t+16}"),
               I(f"v_lshl_add_u32 v{t+16}, v{t+17}, 8, v{t+16}"),
               I(f"v_lshl_add_u32 v{t+16}, v{vFLO}, 1, v{t+16}"), I(f"v_lshlrev_b32 v{t+19}, 2, v0"),
               I(f"v_add_u32 v{t+20}, {M_KV}, v{t+19}"),
               I(f"v_cndmask_b32 v{t+8}, v{S1}, v{S1+1}, {sr(mB4,2)}"),
               ("ds", f"ds_write_b32 v{t+18}, v{t+8} offset:1024", "fw")]
        ms = []
        for i in range(4): ms.append(f"v_mfma_f32_16x16x32_bf16 {vr(S1)}, {vr(MO)}, {vr(PK+4*i)}, {'0' if i == 0 else vr(S1)}")
        L.insert(len(L) - 1, ("burst", ms))
        ms = []
        for i in range(4): ms.append(f"v_mfma_f32_32x32x16_bf16 {vr(KVA,16)}, {vr(PK+4*i)}, {vr(VF+4*i)}, {'0' if i == 0 else vr(KVA,16)}")
        L += [("mfmas", ms, adr), ("delay", 1)]
        L += [I(f"v_cndmask_b32 v{t+r}, v{KVA+r}, v{KVA+8+r}, {sr(mB4,2)}") for r in range(8)]
        L += [("ds", f"ds_write_b128 v{t+16}, {vr(t)}", "fw"), ("ds", f"ds_write_b128 v{t+16}, {vr(t+4)} offset:512", "fw")]
        L += [("bar", setup3_ops())]
        L += [("ds", f"ds_read2st64_b32 v[{t+2*i}:{t+2*i+1}], v{t+20} offset0:{4*i} offset1:{17+4*i}", "fr") for i in range(5)]
        L += [("delay", 1), ("waitlg", "fr")]
        L += [I(f"v_add_f32 v{t+2*i}, v{t+2*i}, v{t+2*i+1}") for i in range(5)]
        its = []
        for i in range(4):
            prep = [f"s_mul_i32 s{sT3}, s{sJ}, 4352", f"s_add_u32 s{sT3}, s{sT3}, {KVB}"] if i == 0 else []
            its.append((prep, f"buffer_atomic_add_f32 v{t+2*i}, v{t+19}, {sr(SWS)}, s{sT3} offen offset:{1024*i}", "at", True))
        its.append(([f"s_add_u32 s{sT3}, s{sT3}, 4096", f"s_cmp_eq_u32 s{sW}, 0", f"s_cselect_b32 s{sT3}, s{sT3}, {OOB}"],
                    f"buffer_atomic_add_f32 v{t+8}, v{t+19}, {sr(SWS)}, s{sT3} offen", "at", False))
        L += [("st", its), ("delay", OPT["adelay"])] + flag_store(kvflag_addr(), "at")
    else:
        if not fast and OPT["hb"]:
            L += [("burst", [pk("v_pk_mul_f32", A[tt]+2*q, A[tt]+2*q, f"v[{RL}:{RL+1}]", None, SEL[tt]) for tt in range(2) for q in range(8)])]
        for tt in range(2):
            d = VF + 8*tt
            if fast: L += [I(pk("v_pk_mul_f32", A[tt]+2*q, A[tt]+2*q, f"v[{RL}:{RL+1}]", None, SEL[tt])) for q in range(8)]
            elif not OPT["hb"]: L += [I(f"v_mul_f32 v{A[tt]+r}, v{RL+tt}, v{A[tt]+r}") for r in range(16)]
            for hf in range(2):
                L += [I(f"v_cvt_pk_bf16_f32 v{d+q}, v{A[tt]+2*q}, v{A[tt]+2*q+1}") for q in range(4*hf, 4*hf+4)]
                L += [I(f"v_pk_max_i16 v{d+q}, v{d+q}, 0") for q in range(4*hf, 4*hf+4)]
                if fast: L += [("st", [store(tt, d, HRT, tag)[0][1][hf]])]
            if not fast: L += store(tt, d, HRT, tag)
        kind = 0 if c == 0 else (2 if typ == 0 else 3)
        if c == 0:
            L += [I(f"v_mul_f32 v{RLL+tt}, s{sLOG}, v{RL+tt}") for tt in range(2)]
            L += [I(f"v_rcp_f32 v{EPSR+tt}, v{RL+tt}", 2) for tt in range(2)]
            L += setup3_ops()
            L += [I(f"v_mul_f32 v{EPSR+tt}, s{sEPS}, v{EPSR+tt}") for tt in range(2)]
        L += [("delay", OPT["hdelay"])] if not fast else [("late",)]
        L += flag_store(flag_addr(kind), tag)
    return L

class Sched:
    def __init__(self, g, typ):
        self.g = g; self.typ = typ
        self.q = []; self.side = []; self.wait_bar = False; self.delay = 0
        self.wq = []; self.sq = []; self.aq = []; self.bq = []
        self.cur = None
        self.bar = -1; self.free_stage = 0; self.tok = 0.0; self.extra = 0; self.pages = []; self.bnext = 0
    def adv(self, cy): self.tok = min(2.0, self.tok + cy / (OPT["pc2"] if 16 <= self.bar < 24 else OPT["period"]))
    def pick(self, force=False):
        if self.cur is not None: return self.cur
        if self.sq: return self.sq
        if self.wq and self.wq[0][0] <= self.bar and (self.tok >= 1 or force or self.wq[0][2][2][1] <= self.bar + 4): return self.wq
        if self.tok < 1 and not force: return None
        a_ok = self.aq and self.aq[0][0] < self.free_stage
        if not self.bq and self.bnext < 30 and self.pages and not self.wq:
            BPAGE[self.bnext] = self.pages.pop(0)
            self.bq = [(0, 0, it) for it in it_b(self.bnext)]; self.bnext += 1
        b_ok = bool(self.bq)
        if a_ok and b_ok:
            sa = self.aq[0][2][2][1]; sb = self.bq[0][2][2][1]
            if sa == 99: sa = 0
            return self.bq if sb <= sa + OPT["bl"] else self.aq
        if a_ok: return self.aq
        if b_ok: return self.bq
        return None
    def vm(self, force=False):
        q = self.pick(force)
        if q is None: return 0
        it = q.pop(0)[2] if q is not self.sq else q.pop(0)
        emit_item(self.g, it)
        self.cur = q if it[3] else None
        tg = it[2]
        isw1 = isinstance(tg, tuple) and tg[0] == "W" and ((self.typ == 0 and tg[1] >= 16) or (self.typ == 1 and not 8 <= tg[1] < 16))
        self.tok -= OPT["w1w"] / 10.0 if isw1 else 0.3 if tg == "at" else 1
        self.tok = max(self.tok, -OPT["debt"])
        return len(it[0]) + 2
    def emit1(self, op):
        g = self.g; k = op[0]
        if k == "i": g.e(op[1])
        elif k == "ds": g.ds(op[1], op[2])
        elif k == "vm": g.vmem(op[1], op[2] if len(op) > 2 else "misc")
        elif k == "mfma": g.e(op[1])
        elif k == "waitlg": g.wait(lg=op[1])
        elif k == "waitvm":
            if VERB: print("   typ", self.typ, "waitvm", op[1], "at step", self.step)
            while self.sq or self.cur is not None: self.vm(True)
            g.wait(vm=op[1])
        elif k in ("blk", "burst"):
            for x in op[1]:
                if isinstance(x, str): g.e(x)
                else: self.emit1(x)
        elif k == "st":
            if VERB: print("   typ", self.typ, "st", op[1][0][2], "at step", self.step)
            self.sq += op[1]
    def cost(self, op):
        k = op[0]
        if k in ("i", "blk"): return op[2]
        return {"ds": 1, "vm": 2, "waitlg": 1, "waitvm": 1, "st": 0}[k]
    def tick(self):
        if self.delay > 0: self.delay -= 1
    def fill(self, slots):
        slots = min(slots, 4) + self.extra
        while slots > 0:
            if self.side: q = self.side
            elif self.q and not self.wait_bar and self.delay == 0: q = self.q
            else: return
            op = q[0]
            if op[0] in ("mfma", "mfmas", "late", "burst"): return
            if op[0] == "bar": q.pop(0); self.wait_bar = True; self.side = list(op[1]); continue
            if op[0] == "delay": q.pop(0); self.delay = op[1]; return
            if op[0] == "rate": q.pop(0); self.extra = op[1]; continue
            if op[0] == "i" and self.cost(op) > slots: return
            q.pop(0); slots -= self.cost(op); self.emit1(op)
    def big(self):
        while self.q and not self.side and self.q[0][0] in ("mfma", "mfmas", "burst") and not self.wait_bar and self.delay == 0:
            op = self.q.pop(0)
            if op[0] == "burst":
                for n, x in enumerate(op[1]):
                    self.g.e(x)
                    if n % 16 == 15: self.adv(72); self.vm()
            elif op[0] == "mfma":
                self.g.e(op[1]); self.adv(32); self.vm()
            else:
                self.side = list(op[2]); self.delay = 1
                for m in op[1]:
                    self.g.e(m); self.adv(32); self.fill(6 - self.vm())
                while self.side: self.emit1(self.side.pop(0))
                self.delay = 0
                return
    def drain(self, until_late=False):
        while self.side: self.emit1(self.side.pop(0))
        if self.wait_bar and self.q:
            self.g.wait(lg="fw"); self.g.e("s_barrier")
        self.wait_bar = False; self.delay = 0
        while self.q:
            op = self.q[0]
            if op[0] == "late":
                if until_late: return
                self.q.pop(0); continue
            self.q.pop(0)
            if op[0] == "bar":
                for x in op[1]: self.emit1(x)
                self.g.wait(lg="fw"); self.g.e("s_barrier"); continue
            if op[0] == "delay": continue
            if op[0] == "rate": self.extra = op[1]; continue
            if op[0] == "mfmas":
                for m in op[1]: self.g.e(m)
                for x in op[2]: self.emit1(x)
                continue
            self.emit1(op)
            if op[0] == "st":
                while self.sq or (self.cur is not None and self.cur is not self.sq): self.vm(True)

npoll = [0]
def poll(g, first_tag, reload, check):
    if OPT["dbg"] & 1: return
    n = npoll[0]; npoll[0] += 1
    g.wait(vm=first_tag)
    g.e(f"s_mov_b32 s{sT2}, 0")
    check()
    g.e(f"s_cbranch_scc1 L_POK{n}")
    g.label(f"L_PL{n}")
    if OPT["slp"]: g.e("s_sleep %d" % OPT["slp"])
    g.e(reload)
    g.e("s_waitcnt vmcnt(0)")
    g.e(f"s_add_u32 s{sT2}, s{sT2}, 1")
    g.e(f"s_cmp_gt_u32 s{sT2}, {OPT['spin']}")
    g.e(f"s_cbranch_scc1 L_POK{n}")
    check()
    g.e(f"s_cbranch_scc0 L_PL{n}")
    g.label(f"L_POK{n}")
    g.e("s_nop 4")
    if STAMP == 1: g.e(f"v_writelane_b32 v255, s{sT2}, {52 + n % 5}")

CTL_LD = f"buffer_load_dword v{vCTL}, v{vCTLO}, {sr(SDBG)}, 0 offen sc1"
FLG_LD = f"buffer_load_dwordx2 v[{vFLG}:{vFLG+1}], v{vFLO}, {sr(SWS)}, s{sFL} offen sc1"
KFL_LD = f"buffer_load_dwordx4 {vr(vKFL)}, v{vL16}, {sr(SWS)}, s{sKF} offen sc1"
def flag_check(g, mask):
    def f():
        g.e(f"v_cmp_eq_u64 vcc, v[{vFLG}:{vFLG+1}], {sr(sNON,2)}")
        g.e(f"s_and_b32 vcc_lo, vcc_lo, {mask}")
        g.e(f"s_cmp_eq_u32 vcc_lo, {mask}")
    return f

def body(g, typ):
    e = g.e
    S = Sched(g, typ)
    S.wq = [(-1, 0, it) for it in g.wq0]
    S.cur = S.wq if g.cur_open else None
    for p in range(4, 8):
        S.wq += [(p - 4, 0, it) for it in it_x(p)] + [(-1, 0, it) for it in it_w(typ, p)]
    for k, gi in enumerate(WORDER):
        if OPT["dpf"] and OPT["dpos"] == 2 and k == OPT["dk"]: S.wq += [(-1, 0, it) for it in it_touch()]
        S.wq += [(max(WAV[gi], OPT['wp'] if k >= 4 else -1), 0, it) for it in it_w(typ, gi)]
    BPAGE.clear()
    if OPT["dbg"] & 8: S.bnext = 30
    prq = [(s2, ct) for s2 in range(8) for ct in range(2)] if OPT["pr"] else []
    prel = []
    if OPT["dbg"] & 64: S.wq = []
    for gi in range(24):
        c, p = gi >> 3, gi & 7
        corient = (typ == 0 and c < 2)
        A = ACCS[c & 1]
        for u in range(4):
            step = gi * 4 + u
            first = (p == 0 and u == 0)
            wf = vr(WF[step % 3])
            S.tick(); S.step = step
            if first and c > 0:
                e(f"v_cndmask_b32 v{vCSV}, v{CS}, v{CS+1}, {sr(mB4,2)}")
            S.big()
            if (u % 2 == 0 or p == 7) and not OPT["dbg"] & 16:
                e(f"v_mfma_f32_16x16x32_bf16 {vr(CS)}, {vr(MO)}, {wf}, {'0' if first else vr(CS)}"); S.adv(16)
            if c == 0:
                x0 = X(0, p, u)
                e(f"v_mfma_f32_4x4x4_16b_bf16 {vr(Q0)}, a[{x0}:{x0+1}], a[{x0}:{x0+1}], {'0' if first else vr(Q0)}")
                e(f"v_mfma_f32_4x4x4_16b_bf16 {vr(Q1)}, a[{x0+2}:{x0+3}], a[{x0+2}:{x0+3}], {'0' if first else vr(Q1)}")
                e(f"v_mfma_f32_16x16x32_bf16 {vr(S1)}, {vr(MO)}, {ar(x0)}, {'0' if first else vr(S1)}"); S.adv(40)
                read_w(g, step + 2)
            def M(t):
                cc = "0" if first else vr(A[t], 16)
                a, b = (ar(X(t, p, u)), wf) if corient else (wf, ar(X(t, p, u)))
                e(f"v_mfma_f32_32x32x16_bf16 {vr(A[t],16)}, {a}, {b}, {cc}"); S.adv(32)
            M(0)
            sl = 6
            if c == 0:
                if step + 2 < 32: read_x1(g, (step + 2) >> 2, (step + 2) & 3, 0); sl -= 1
                sl -= S.vm()
            elif step + 2 < 96:
                read_w(g, step + 2); sl -= 2
            if gi >= OPT["vm2"]: sl -= S.vm()
            while prel and ("PR", prel[0]) not in g.lg:
                S.pages.append(BPAGE[prel.pop(0)])
            if prq and (16 + 2 * prq[0][0] + prq[0][1]) >> 3 < S.free_stage:
                s2, ct = prq.pop(0)
                assert s2 in BPAGE and ("B", s2) not in [x[2][2] for x in S.bq]
                g.wait(vm=[("B", s2)])
                pg = BPAGE[s2]
                for k in range(2):
                    r = breg(s2, ct) + 2 * k
                    g.ds(f"ds_read_b64_tr_b16 a[{r}:{r+1}], v{vBT+2*(pg>>3)+ct} offset:{(pg & 7) * PAGE + k*1024}", ("PR", s2))
                sl -= 2
                if ct == 1: prel.append(s2)
            S.fill(sl)
            M(1)
            sl = 5
            if step + 2 < 32: read_x1(g, (step + 2) >> 2, (step + 2) & 3, 1); sl -= 1
            if p == 7 and u == 2:
                g.ds(f"ds_read_b32 v{vCSP}, v{vCSR}", "csp"); sl -= 1
            sl -= S.vm()
            if u == 1: sl -= 1
            if p == 6 and u == 3:
                e(f"v_cndmask_b32 v{vTMP}, v{CS}, v{CS+1}, {sr(mB4,2)}")
                g.ds(f"ds_write_b32 v{vCSW}, v{vTMP}", "fw"); sl -= 2
            if c == 2 and u == 3: S.free_stage = p + 1
            if u == 1:
                while any(x[2][2][1] <= gi + 1 for x in S.wq):
                    assert S.vm(True)
                g.st.mark2(g)
                g.wait(vm=[("W", gi + 1), ("X", gi + 1)], lg=["fw", ("Wf", step + 1), ("X", (step+1) >> 2, (step+1) & 3)])
                if not OPT["dbg"] & 4: e("s_barrier")
                g.st.mark2(g)
                S.bar = gi; S.wait_bar = False
                S.pages += [pg for (bb, pg) in BEV if bb == gi]
                if gi == 2: publish_ctl(g, typ)
                if gi == 5: g.vmem(CTL_LD, "ctl")
                if gi == 6:
                    assert not any(x[2][2][0] == "X" for x in S.wq)
                    if OPT["xr"]:
                        e(f"s_and_b32 s{sKEY}, s{sRB2}, 3")
                        e(f"s_lshl_b32 s{sKEY}, s{sKEY}, 1")
                        e(f"s_add_u32 s{sKEY}, s{sKEY}, s{sCB}")
                        e(f"s_and_b32 s{sKEY}, s{sKEY}, 7")
                    else: e(f"s_mov_b32 s{sKEY}, 0")
                    e(f"s_lshl_b32 s{sK14}, s{sKEY}, 14")
                    e(f"s_lshl_b32 s{sHAK}, s{sKEY}, 10")
                    e(f"s_or_b32 s{sPQ}, s{sPQ}, s{sHAK}")
                    e(f"s_or_b32 s{sHAK}, s{sHAK}, s{sHA}")
                if gi == 9:
                    def chk():
                        e(f"v_readlane_b32 s{sNON}, v{vCTL}, 16")
                        e(f"v_readlane_b32 s{sNON+1}, v{vCTL}, 17")
                        if typ == 0:
                            e(f"v_readlane_b32 vcc_lo, v{vCTL}, s{sJ}")
                            e(f"s_min_u32 vcc_lo, vcc_lo, s{sNON}")
                            e(f"s_cmp_lg_u32 vcc_lo, 0")
                        else:
                            e(f"s_cmp_lg_u32 s{sNON}, 0")
                    poll(g, "ctl", CTL_LD, chk)
                    e(f"v_mov_b32 v{vNON}, s{sNON}")
                    e(f"v_mov_b32 v{vNON+1}, s{sNON+1}")
                if gi == OPT["hpoll"] - OPT["hlead"]: g.vmem(FLG_LD, "flg")
                if gi == OPT["hpoll"]:
                    poll(g, "flg", FLG_LD, flag_check(g, 0xf))
                    S.aq += [(aslot_of(s, t) >> 3, 0, it_a(s, t)) for s in range(8) for t in range(2)]
            elif step + 1 < 96:
                g.wait(lg=[("Wf", step + 1), ("X", (step+1) >> 2, (step+1) & 3)])
            S.fill(sl + OPT["fs"] - 5)
        if p == 7:
            g.st.mark(g)
            if c < 2:
                n = len([op for op in S.q if op[0] == "i"])
                if n: print("  typ", typ, "chunk", c, "leftover valu", n)
                S.drain()
                g.wait(lg="csp")
                if not OPT["dbg"] & 2: S.q += epilogue(c, typ, False)
    if OPT["dbg"] & 1:
        stamp_flush(g); e("s_endpgm"); return
    n = len([op for op in S.q if op[0] == "i"])
    if n: print("  typ", typ, "chunk 2 leftover valu", n)
    k = len(S.q)
    while k > 0 and S.q[k-1][0] in ("blk", "waitvm", "delay") and len(S.q) - k < 4: k -= 1
    late = S.q[k:] if len(S.q) - k >= 3 else []
    if late: S.q = S.q[:k]; print("  typ", typ, "late chunk-1 flag")
    S.drain()
    while S.sq or S.cur is not None: assert S.vm(True)
    g.wait(lg="csp")
    e(f"v_cndmask_b32 v{vCSV}, v{CS}, v{CS+1}, {sr(mB4,2)}")
    ep = epilogue(2, typ, True)
    i = [k for k, op in enumerate(ep) if op[0] == "delay"][0]
    S.q = ep[:i]
    S.drain()
    if S.aq: print("  typ", typ, "late A loads", len(S.aq))
    print("  typ", typ, "B items left at T1", 2 * (30 - S.bnext) + len(S.bq), "prereads left", len(prq))
    assert not prq
    while S.aq: assert S.vm(True)
    S.q = late; S.drain()
    if OPT["qld"] < 0: g.vmem(FLG_LD, "flg"); g.vmem(KFL_LD, "kfl")
    S.q = ep[i:]
    S.drain(until_late=True)
    S.cur = None
    late2 = S.q; S.q = []
    g.st.mark(g)
    g.wait(lg_all=True)
    e("s_barrier")
    S.bar = 24; S.free_stage = 8
    S.pages += [BPAGE[x] for x in prel] + [pg for (bb, pg) in BEV if bb == 24]
    sv = OPT["period"]; OPT["period"] = OPT["p2"]
    phase2(g, S, late2)
    OPT["period"] = sv

def publish_ctl(g, typ):
    if typ != 0: return
    e = g.e
    e(f"s_cmp_eq_u32 s{sZ}, 1")
    e("s_cbranch_scc0 L_NOZF")
    e(f"s_lshl_b32 s{sT1}, s{sJ}, 2")
    e(f"v_mov_b32 v{vTMP}, 1")
    e("s_mov_b64 exec, 1")
    g.vmem(f"buffer_store_dword v{vTMP}, v{vZERO}, {sr(SDBG)}, s{sT1} offen sc1", counted=False)
    e("s_mov_b64 exec, -1")
    g.label("L_NOZF")

def phase2(g, S, late2):
    e = g.e
    NS = 30
    def read_b(s):
        pg = BPAGE[s]; rng = pg >> 3; off = (pg & 7) * PAGE
        b = BF[s % 3]
        return [lambda ct=ct, k=k: g.ds(f"ds_read_b64_tr_b16 v[{b+4*ct+2*k}:{b+4*ct+2*k+1}], v{vBT+2*rng+ct} offset:{off + k*1024}", ("Bf", s))
                for ct in range(2) for k in range(2)]
    def ensure_b(s):
        while S.bnext <= s or any(x[2][2][1] == s for x in S.bq):
            if S.cur is not None: assert S.vm(True); continue
            sv = S.aq; S.aq = []
            assert S.vm(True)
            S.aq = sv
    npr = 8 if OPT["pr"] else 0
    def ensure(q, s):
        while any(x[2][2][1] == s for x in q):
            if S.cur is None:
                it = q.pop(0)[2]; emit_item(g, it); S.cur = q if it[3] else None
            else:
                assert S.vm(True)
    def Cops(h):
        k = KVR[h]
        return [I(f"v_cvt_pk_bf16_f32 v{k+q}, v{k+2*q}, v{k+2*q+1}") for q in range(4)]
    def Nm(h, t): return f"v_mfma_f32_32x32x16_bf16 {vr(ND[t],16)}, {vr(KVR[h])}, {ar(areg(8 + h, t))}, 0"
    def Vops(h, t):
        d = ND[t]
        L = [I(f"v_add_f32 v{d+8}, s{sEPS}, v{d+8}"), I(f"v_rcp_f32 v{d+8}, v{d+8}", 2)]
        for q in range(4):
            L += [I(f"v_mul_f32 v{d+2*q}, v{d+2*q}, v{d+8}"), I(f"v_mul_f32 v{d+2*q+1}, v{d+2*q+1}, v{d+8}")]
        L += [I(f"v_cvt_pk_bf16_f32 v{OF[0][t]+q}, v{d+2*q}, v{d+2*q+1}") for q in range(4)]
        return L
    vq = []
    def valu(n):
        while vq and n > 0:
            op = vq.pop(0); n -= op[2]; e(op[1])
    def redaddr():
        t = T
        L = [f"v_and_b32 v{t}, 31, v1", f"v_lshrrev_b32 v{t+1}, 3, v{t}", f"v_lshlrev_b32 v{t+1}, 13, v{t+1}",
             f"v_and_b32 v{t+2}, 7, v1", f"v_lshl_add_u32 v{t+1}, v{t+2}, 8, v{t+1}", f"v_add_u32 v{t+1}, s{sBL}, v{t+1}",
             f"v_lshrrev_b32 v{t+3}, 5, v1"]
        for q in range(4):
            L += [f"v_add_u32 v{t+4}, {2*q}, v{t+3}", f"v_xor_b32 v{t+4}, v{t+4}, v{t+2}", f"v_lshl_add_u32 v{t+8+q}, v{t+4}, 4, v{t+1}"]
        L += [f"v_lshrrev_b32 v{t}, 6, v0", f"v_lshlrev_b32 v{t}, 13, v{t}", f"v_bfe_u32 v{t+1}, v0, 3, 3",
              f"v_lshl_add_u32 v{t}, v{t+1}, 8, v{t}", f"v_lshlrev_b32 v{t+2}, 1, v{t+2}", f"v_xor_b32 v{t+2}, v{t+2}, v{t+1}",
              f"v_lshl_add_u32 v{t+4}, v{t+2}, 4, v{t}", f"v_xor_b32 v{t+5}, 16, v{t+4}"]
        return [I(x) for x in L]
    if OPT["qld"] == 0: g.vmem(FLG_LD, "flg"); g.vmem(KFL_LD, "kfl")
    if not npr:
        ensure_b(0)
        g.wait(vm=[("B", 0)])
        for f in read_b(0): f()
    for s in range(NS):
        kind, idx = step_kind(s)
        if s == OPT["qld"] and s > 0:
            g.vmem(FLG_LD, "flg"); g.vmem(KFL_LD, "kfl")
        if s - 1 >= npr: S.pages.append(BPAGE[s - 1])
        if s == OPT["pub"]:
            g.st.mark(g)
            S.q = late2; S.drain()
            g.st.mark(g)
        if s == OPT["qchk"]:
            poll(g, "flg", FLG_LD, flag_check(g, 0xf0))
            def chk():
                e(f"v_cmp_eq_u64 vcc, v[{vKFL}:{vKFL+1}], {sr(sNON,2)}")
                e(f"v_cmp_eq_u64 {sr(mB0,2)}, v[{vKFL+2}:{vKFL+3}], {sr(sNON,2)}")
                e(f"s_and_b64 vcc, vcc, {sr(mB0,2)}")
                e("s_cmp_eq_u64 vcc, -1")
            poll(g, "kfl", KFL_LD, chk)
            g.st.mark(g)
            for h in range(8):
                for t in range(2):
                    S.aq.append((0, 0, ([f"s_xor_b32 s{sT3}, s{sKEY}, {h}", f"s_mul_i32 s{sT3}, s{sT3}, {KVH}", f"s_add_u32 s{sT3}, s{sT3}, s{sKV}"] if t == 0 else [],
                                 f"buffer_load_dwordx4 {vr(KVR[h] + 4*t)}, v{vXD+2 if t else vKVO}, {sr(SWS)}, s{sT3} offen offset:{32*t} sc1", ("KV", 8 + h), t == 0)))
                S.aq += [(0, 0, it_a(8 + h, t)) for t in range(2)]
                if h == OPT["h2smp"]: S.aq.append((0, 0, ([], FLG_LD, ("flg", 99), False)))
        if s == 8:
            ensure(S.aq, 8 + OPT["olead"])
            g.st.mark(g)
            g.wait(vm=[("KV", 8), ("A", 8)])
            for op in Cops(0): e(op[1])
            e(Nm(0, 0)); e(Nm(0, 1))
            g.wait(vm=[("KV", 9)])
            for op in Cops(1) + Vops(0, 0): e(op[1])
            vq += [op + ("v1",) for op in Vops(0, 1)]
            g.st.mark(g)
        if s == OPT["h2chk"]:
            ensure(S.aq, 99)
            while S.cur is not None: S.vm(True)
            poll(g, [("flg", 99)], FLG_LD, flag_check(g, 0xff00))
            g.st.mark(g)
            S.aq += [(0, 0, it_a(s2, t)) for s2 in range(16, 30) for t in range(2)]
            for _ in range(OPT["h2n"]): S.vm(True)
        rb = []
        if npr <= s + 1 < NS:
            ensure_b(s + 1)
            rb = read_b(s + 1)
        b = BF[s % 3]
        def Mm(ct, t):
            acc = vr(ACC2 + 32 * ct + 16 * t, 16)
            act = ar(areg(s, t)) if kind == "h" else vr(OF[0][t])
            bo = ar(breg(s, ct)) if s < npr else vr(b+4*ct)
            return f"v_mfma_f32_32x32x16_bf16 {acc}, {bo}, {act}, {'0' if s == 0 else acc}"
        frc = s >= 16 or (OPT["qchk"] <= s < 8)
        if kind == "h":
            ensure(S.aq, s)
            g.wait(vm=[("A", s), ("B", s + 1)], lg=[("Bf", s)])
            if s == 22: vq += redaddr()
            if s == 27:
                g.wait(vm="xr")
                for tt in range(2):
                    for q in range(4):
                        vq.append(I(f"v_lshlrev_b32 v{92+8*tt+2*q}, 16, v{84+4*tt+q}"))
                        vq.append(I(f"v_and_b32 v{92+8*tt+2*q+1}, 0xffff0000, v{84+4*tt+q}"))
            for mi, (ct, t) in enumerate(((0, 0), (1, 0), (0, 1), (1, 1))):
                e(Mm(ct, t)); S.adv(32)
                sl = 6
                if mi < 2 and rb: rb.pop(0)(); rb.pop(0)(); sl -= 2
                sl -= S.vm(frc)
                valu(min(4, sl))
        else:
            h = idx
            nxt = h + 1 < 8
            if h + 2 < 8: ensure(S.aq, s + 2)
            g.wait(vm=[("A", s + 1), ("B", s + 1)] if nxt else [("B", s + 1)], lg=[("Bf", s)])
            seq = ([("N", 0)] if nxt else []) + [("M", 0, 0), ("M", 1, 0)] + ([("N", 1)] if nxt else []) + [("M", 0, 1), ("M", 1, 1)]
            for pi, pp in enumerate(seq):
                if pp == ("N", 1) or (pp == ("M", 0, 1) and not nxt):
                    while vq and vq[0][3:] == ("v1",): e(vq.pop(0)[1])
                e(Nm(h + 1, pp[1]) if pp[0] == "N" else Mm(pp[1], pp[2])); S.adv(32)
                if pp == ("M", 1, 0) and nxt: vq += [op + ("v0",) for op in Vops(h + 1, 0)]
                if pp == ("M", 1, 0) and h + 2 < 8:
                    g.wait(vm=[("KV", s + 2)])
                    vq += [op + ("v0",) for op in Cops(h + 2)]
                if pp == ("M", 1, 1) and nxt:
                    while vq and vq[0][3:] == ("v0",) and len(vq) > 6: e(vq.pop(0)[1])
                sl = 6
                if pi < 2 and rb: rb.pop(0)(); rb.pop(0)(); sl -= 2
                if pi >= 6 - OPT["ovm"]: sl -= S.vm(True)
                valu(OPT["ov"])
            while vq and vq[0][3:] == ("v0",): e(vq.pop(0)[1])
            if nxt: vq += [op + ("v1",) for op in Vops(h + 1, 1)]
        if s == 20:
            g.vmem(f"buffer_load_dwordx4 {vr(84)}, v{vXO}, {sr(SX)}, s{sXR} offen", "xr")
            g.vmem(f"buffer_load_dwordx4 {vr(88)}, v{vXO}, {sr(SX)}, s{sXR+1} offen", "xr")
        if s in (15, 29): g.st.mark(g)
    while vq: e(vq.pop(0)[1])
    assert not S.aq and not S.bq and S.bnext == 30
    t = T
    for ct in range(2):
        for tt in range(2):
            for q in range(4):
                a = ACC2 + 32 * ct + 16 * tt + 4 * q
                g.ds(f"ds_write_b128 v{t+8+q}, {vr(a)} offset:{tt * 4 * PAGE + ct * 128}", "rw")
    g.wait(lg_all=True)
    e("s_barrier")
    R = ACC2
    for tt in range(2):
        for w in range(4):
            for k in range(2):
                d = R + tt * 32 + w * 8 + k * 4
                g.ds(f"ds_read_b128 {vr(d)}, v{t+4+k} offset:{tt * 4 * PAGE + w * 2048}", ("rr", tt))
    for tt in range(2):
        g.wait(lg=[("rr", tt)])
        d = R + tt * 32
        for q in range(4):
            e(f"v_pk_add_f32 v[{d+2*q}:{d+2*q+1}], v[{d+2*q}:{d+2*q+1}], v[{d+8+2*q}:{d+8+2*q+1}]")
            e(f"v_pk_add_f32 v[{d+16+2*q}:{d+16+2*q+1}], v[{d+16+2*q}:{d+16+2*q+1}], v[{d+24+2*q}:{d+24+2*q+1}]")
        for q in range(4):
            e(f"v_pk_add_f32 v[{d+2*q}:{d+2*q+1}], v[{d+2*q}:{d+2*q+1}], v[{92+8*tt+2*q}:{92+8*tt+2*q+1}]")
        for q in range(4):
            e(f"v_pk_add_f32 v[{d+2*q}:{d+2*q+1}], v[{d+2*q}:{d+2*q+1}], v[{d+16+2*q}:{d+16+2*q+1}]")
        for q in range(4):
            e(f"v_cvt_pk_bf16_f32 v{d+8+q}, v{d+2*q}, v{d+2*q+1}")
        g.vmem(f"buffer_store_dwordx4 {vr(d+8)}, v{vXO}, {sr(SOUT)}, s{sXR+tt} offen" + ["", " sc1", " nt", " sc0 sc1"][OPT["osc"]], "o")
    stamp_flush(g)
    e("s_endpgm")

def stamp_flush(g):
    e = g.e
    if STAMP:
        g.st.mark(g)
        e("s_waitcnt vmcnt(0)")
        g.st.mark(g)
        e(f"v_readlane_b32 s{sT0}, v255, 63")
        e(f"s_lshl_b32 s{sT0}, s{sT0}, 2")
        e(f"s_add_u32 s{sT0}, s{sT0}, s{sW}")
        e(f"s_lshl_b32 s{sT0}, s{sT0}, 8")
        e(f"s_add_u32 s{sT0}, s{sT0}, {STB}")
        e("v_lshlrev_b32 v254, 2, v1")
        e(f"buffer_store_dword v255, v254, {sr(SWS)}, s{sT0} offen")

def dpf(g):
    e = g.e
    e("v_lshlrev_b32 v252, 7, v1")
    if OPT["s2f"]:
        e(f"s_lshl_b32 s{sT2}, s{sRB2}, 3")
        e(f"s_add_u32 s{sT2}, s{sT2}, s{sCB}")
    def touch(wave, nbytes, sd, cond_typ=None):
        nl = nbytes // 128
        e(f"s_mul_i32 s{sT1}, s{sT2 if OPT['s2f'] else 2}, {nbytes}")
        e(f"s_cmp_eq_u32 s{sW}, {wave}")
        e(f"s_cselect_b32 s{sT1}, s{sT1}, {OOB}")
        m = (1 << nl) - 1
        e("s_mov_b32 exec_lo, 0x%x" % (m & 0xffffffff)); e("s_mov_b32 exec_hi, 0x%x" % (m >> 32))
        g.vmem(f"buffer_load_dword v253, v252, {sr(sd)}, s{sT1} offen", "pf")
    touch(0, 5504, SW2); touch(1, 2048, SWO)
    if OPT["dpf"] >= 2:
        touch(2, 6144, SWP); touch(3, 6144, SWS2)
    e("s_mov_b64 exec, -1")

def it_touch():
    L = []
    for wave, nbytes, sd in ((0, 5504, SW2), (1, 2048, SWO)):
        m = (1 << (nbytes // 128)) - 1
        prep = [f"s_lshl_b32 s{sT3}, s{sRB2}, 3", f"s_add_u32 s{sT3}, s{sT3}, s{sCB}", f"s_mul_i32 s{sT3}, s{sT3}, {nbytes}",
                f"s_cmp_eq_u32 s{sW}, {wave}", f"s_cselect_b32 s{sT3}, s{sT3}, {OOB}", "v_lshlrev_b32 v252, 7, v1",
                "s_mov_b32 exec_lo, 0x%x" % (m & 0xffffffff), "s_mov_b32 exec_hi, 0x%x" % (m >> 32)]
        L.append((prep, f"buffer_load_dword v253, v252, {sr(sd)}, s{sT3} offen\ns_mov_b64 exec, -1", ("pf", 50), False))
    return L

def gen():
    g = Gen(); g.st = Stamps(); e = g.e
    prologue(g)
    g.st.mark(g)
    items = []
    for p in range(4): items += it_x(p) + it_w(0, p)
    pre = OPT["pre"]
    for it in items[:min(12, pre)]: emit_item(g, it)
    setup1(g)
    if OPT["dpf"] and OPT["dpos"] == 0: dpf(g)
    e(f"s_or_b32 s{sT1}, s{sRB}, s{sTYP}")
    e(f"s_or_b32 s{sT1}, s{sT1}, s{sW}")
    e(f"s_cmp_eq_u32 s{sT1}, 0")
    e(f"s_cselect_b32 s{sZ}, 1, 0")
    e("s_cbranch_scc0 L_NOZ")
    e(f"s_memrealtime {sr(sNON,2)}")
    e(f"v_lshlrev_b32 v{vL16}, 4, v1")
    for r in range(4): e(f"v_mov_b32 v{T+r}, 0")
    e(f"s_mul_i32 s{sT1}, s{sJ}, 4352")
    e(f"s_add_u32 s{sT1}, s{sT1}, {KVB}")
    for i in range(4):
        g.vmem(f"buffer_store_dwordx4 {vr(T)}, v{vL16}, {sr(SWS)}, s{sT1} offen offset:{1024*i} sc1", counted=False)
    e(f"s_add_u32 s{sT1}, s{sT1}, 4096")
    e("s_mov_b64 exec, 0xffff")
    g.vmem(f"buffer_store_dwordx4 {vr(T)}, v{vL16}, {sr(SWS)}, s{sT1} offen sc1", counted=False)
    e("s_mov_b64 exec, 1")
    e("s_waitcnt lgkmcnt(0)")
    e(f"s_or_b32 s{sNON}, s{sNON}, 1")
    e(f"v_mov_b32 v{T+4}, s{sNON}")
    e(f"v_mov_b32 v{T+5}, s{sNON+1}")
    e(f"s_cmp_eq_u32 s{sJ}, 0")
    e(f"s_cselect_b32 s{sT1}, 64, {OOB}")
    g.vmem(f"buffer_store_dwordx2 v[{T+4}:{T+5}], v{T}, {sr(SDBG)}, s{sT1} offen sc1", counted=False)
    e("s_mov_b64 exec, -1")
    e("s_nop 1")
    g.label("L_NOZ")
    if OPT["s2f"]:
        setup2(g)
    for it in items[12:pre]: emit_item(g, it)
    if OPT["dpf"] and OPT["dpos"] == 1: dpf(g)
    g.cur_open = items[pre - 1][3]
    assert not g.cur_open
    g.wq0 = items[pre:]
    if not OPT["s2f"]: setup2(g)
    g.st.mark(g)
    g.wait(vm=[("W", 0), ("X", 0)])
    e("s_barrier")
    g.st.mark(g)
    read_x(g, 0, 0); read_w(g, 0); read_x(g, 0, 1); read_w(g, 1)
    g.wait(lg=[("Wf", 0)])
    e(f"s_cmp_eq_u32 s{sTYP}, 0")
    e("s_cbranch_scc0 L_TYPEB")
    st = (list(g.vm), list(g.lg), g.st.n)
    body(g, 0)
    g.label("L_TYPEB")
    g.vm, g.lg, g.st.n = list(st[0]), list(st[1]), st[2]; g.hist = []
    body(g, 1)
    g.label("L_END")
    e("s_endpgm")
    return g

def kd(name, vgpr, sgpr, acc):
    return f""".amdhsa_kernel {name}
  .amdhsa_next_free_vgpr {vgpr}
  .amdhsa_next_free_sgpr {sgpr}
  .amdhsa_accum_offset {acc}
  .amdhsa_group_segment_fixed_size 0
  .amdhsa_kernarg_size 72
  .amdhsa_user_sgpr_count 2
  .amdhsa_user_sgpr_kernarg_segment_ptr 1
  .amdhsa_system_sgpr_workgroup_id_x 1
.end_amdhsa_kernel
"""

def main(out):
    hdr = open("parallel_sum__linear_attn_block__dense_activation_relu__prompt.s.ref").read().split("; Override")[0]
    g = gen()
    s = hdr
    s += "; @launch grid=(256,1,1) block=(256,1,1) lds=163840\n"
    s += '.amdgcn_target "amdgcn-amd-amdhsa--gfx950"\n.text\n'
    s += f".globl {NAME}\n.p2align 8\n.type {NAME},@function\n{NAME}:\n" + g.text()
    s += '.section .rodata,"a"\n.p2align 6\n' + kd(NAME, 512, 102, 256)
    open(out, "w").write(s)
    print("nops", g.nops, "lines", len(g.out), "stamps", g.st.n)

if __name__ == "__main__":
    for a in sys.argv[2:]:
        if a == "stamp": STAMP = 1
        elif a == "stamp2": STAMP = 2
        elif a == "v": VERB = True
        else:
            k, v = a.split("="); OPT[k] = int(v)
    main(sys.argv[1])
```

```python
import sys, struct
sys.path.insert(0, "dev")
from asmgen import Gen

def f2u(x): return struct.unpack("<I", struct.pack("<f", x))[0]
NAME = "parallel_sum__linear_attn_block__dense_activation_relu__prompt_kernel"

HB, QB, KVB, FLB, KFB = 0, 0x800000, 0xA00000, 0xB00000, 0xB10000
HRT = 131072
KVH = 1088
WS_BYTES = 268435456
OOB = 0x40000000
PAGE = 8192
XPAGE = [0, 2, 4, 6, 18]
MISC = 16 * PAGE
M_CS, M_RM, M_RR, M_KV = MISC, MISC + 512, MISC + 1024, MISC + 2048
STAMP = 0
VERB = False
STB = 0x8000000
OPT = dict(rot=2, pre=16, spin=20000, fdelay=14, adelay=16, period=66, debt=1, w1w=15, qrate=4, krate=1, h2n=0, hpoll=19, hlead=2, cpf=2, dpf=1, fs=5, pub=7, qchk=8, olead=4, h2smp=4, ovm=4, ov=6, h2chk=11, slp=2, qld=4, p2=64, dbg=0, lin=0, vm2=8, pc2=50, osc=0, bl=1, xr=1, pr=1, hb=1, hdelay=8, dpos=1, wp=7, s2f=1, dk=7, tp=0)

def vr(a, n=4): return f"v[{a}:{a+n-1}]"
def ar(a, n=4): return f"a[{a}:{a+n-1}]"
def sr(a, n=4): return f"s[{a}:{a+n-1}]"

SX, SWP, SWS2, SWS, SDBG, SW2, SWO, SOUT = 24, 28, 32, 36, 40, 44, 48, 52
sRB, sTYP, sJ, sW, sM, sN, sRB2, sCB = 56, 57, 58, 59, 60, 61, 62, 63
sXO, sPO, sSO = 64, 72, 80
sT0, sT1, sT2 = 88, 89, 90
sCOL = [4, 5, 6]
sXL, sBL, sT3 = 7, 8, 9
sRT = [10, 11]
sZ, sEPS, sLOG = 12, 13, 14
sK14 = 12
sHAK, sKEY = 64, 65
mB4, mH, mB0, mB1 = 16, 18, 20, 22
sNON = 92
sHST = [94, 95, 96]
sB2, sBO, sHA, sHA2, sPQ = 97, 98, 99, 100, 101
sKV, sFL, sKF, sXR = 91, 2, 3, 0

vXD, vWP, vWS, vBD = 2, 6, 8, 10
vXA = [12, 16]
vWA = 20
vCSW, vCSR, vL16, vSTO, vSTX, vSKIP = 26, 27, 28, 29, 30, 31
vRR, RL, vCSP, vTMP, vCSV, vCTLO = 32, 34, 36, 37, 38, 39
MO, S1, Q0, Q1, CS = 40, 44, 48, 52, 56
WF = [60, 64, 68]
AAUG, BAUG = [72, 76], 80
ACCS = [[84, 100], [116, 132]]
RROW = [148, 164]
PK, VF, T = 180, 196, 212
ONES = S1
RLL, EPSR = 52, 54
vFLO, vCTL, vZERO, vFLG, vNON = 244, 245, 246, 248, 250
vKFL = 48
vBT, vKVO, vXO = 12, 18, 19
ACC2, BF, ND, OF = 116, [56, 64, 72], [84, 100], [[196, 200], [204, 208]]
KVR = [180, 188, 212, 220, 228, 236, 40, 20]
def X(t, p, u): return 128 * t + 16 * p + 4 * u

class Stamps:
    def __init__(self): self.n = 0
    def mark2(self, g):
        if STAMP != 2: return
        g.e("s_memtime vcc"); g.e("s_waitcnt lgkmcnt(0)"); g.lg = []
        g.e("v_writelane_b32 v255, vcc_lo, %d" % self.n); self.n += 1
    def mark(self, g):
        if STAMP != 1: return
        g.e("s_memrealtime vcc"); g.e("s_waitcnt lgkmcnt(0)"); g.lg = []
        g.e("v_writelane_b32 v255, vcc_lo, %d" % self.n)
        g.e("s_memtime vcc"); g.e("s_waitcnt lgkmcnt(0)")
        g.e("v_writelane_b32 v255, vcc_lo, %d" % (self.n + 30)); self.n += 1

def srd(g, d, lo, nbytes):
    g.e(f"s_mov_b32 s{d}, s{lo}")
    g.e(f"s_and_b32 s{d+1}, s{lo+1}, 0xffff")
    g.e(f"s_mov_b32 s{d+2}, {nbytes}")
    g.e(f"s_mov_b32 s{d+3}, 0x00020000")

WORDER = [8, 9, 16, 17, 10, 11, 12, 13, 14, 15, 18, 19, 20, 21, 22, 23]
def page_plan():
    free = []
    wpage = {}; wav = {}
    for g in range(8): wpage[g] = 8 + g; wav[g] = -1
    ev = []
    xr = {3: 4, 4: 5, 0: 6, 1: 7, 2: 8}
    for sl, b in xr.items(): ev += [(b, XPAGE[sl]), (b, XPAGE[sl] + 1)]
    for g in range(8): ev.append((g + 1, wpage[g]))
    for g in WORDER:
        ev.sort(); b, pg = ev.pop(0)
        wpage[g] = pg; wav[g] = b
        ev.append((g + 1, pg))
    ev += [(24, 16), (24, 17)]
    ev.sort()
    return wpage, wav, ev
WPAGE, WAV, BEV = page_plan()
BPAGE = {}

def uses_primary(typ, c): return c == 0 or (typ == 0 and c == 1) or (typ == 1 and c == 2)
def step_kind(s):
    if s < 8: return ("h", s)
    if s < 16: return ("o", s - 8)
    return ("h", s - 8)
def aslot(k):
    p, r = k >> 3, k & 7
    return X(r >> 2, p, r & 3)
def aslot_of(s, t):
    if not OPT["pr"]: return 2 * s + t
    if s < 8: return 2 * s + t
    if s < 24: return 32 + 2 * (s - 8) + t
    return 2 * (s - 24) + t
def areg(s, t): return aslot(aslot_of(s, t))
def breg(s, ct): return aslot(16 + 2 * s + ct)

def it_x(p):
    L = []
    for i in range(4):
        prep = [f"s_add_u32 m0, s{sXL}, {XPAGE[p % 5] * PAGE}"] if i == 0 else []
        L.append((prep, f"buffer_load_dwordx4 v{vXD+i}, {sr(SX)}, s{sXO+p} offen offset:{1024*i} lds", ("X", p), i < 3))
    return L
def it_w(typ, gi):
    c, p = gi >> 3, gi & 7
    q = uses_primary(typ, c)
    s, v, tb = (SWP, vWP, sPO) if q else (SWS2, vWS, sSO)
    prep = [f"s_add_u32 m0, s{sBL}, {WPAGE[gi] * PAGE}", f"s_add_u32 s{sT0}, s{tb+p}, s{sCOL[c]}"]
    if typ == 1 and gi == 16:
        prep += [f"v_or_b32 v{vWP}, v{vWP}, v{vSKIP}", f"v_or_b32 v{vWP+1}, v{vWP+1}, v{vSKIP}"]
    return [(prep, f"buffer_load_dwordx4 v{v}, {sr(s)}, s{sT0} offen lds", ("W", gi), True),
            ([], f"buffer_load_dwordx4 v{v+1}, {sr(s)}, s{sT0} offen offset:1024 lds", ("W", gi), False)]
def it_b(s):
    k, idx = step_kind(s)
    sd, base = (SW2, sB2) if k == "h" else (SWO, sBO)
    if OPT["xr"] and idx < 16:
        prep = [f"s_add_u32 m0, s{sBL}, {BPAGE[s] * PAGE}", f"s_xor_b32 s{sT0}, s{sK14}, {idx * 16384}", f"s_add_u32 s{sT0}, s{sT0}, s{base}"]
    else:
        prep = [f"s_add_u32 m0, s{sBL}, {BPAGE[s] * PAGE}", f"s_add_u32 s{sT0}, s{base}, {idx * 16384}"]
    return [(prep, f"buffer_load_dwordx4 v{vBD}, {sr(sd)}, s{sT0} offen lds", ("B", s), True),
            ([], f"buffer_load_dwordx4 v{vBD+1}, {sr(sd)}, s{sT0} offen offset:1024 lds", ("B", s), False)]
def it_a(s, t):
    k, idx = step_kind(s)
    if k == "h" and idx < 16: prep = [f"s_xor_b32 s{sT3}, s{sHAK}, {idx * 1024 + t * HRT}"]
    elif k == "h": prep = [f"s_add_u32 s{sT3}, s{sHA2 if idx >= 20 else sHA}, {idx * 1024 + t * HRT}"]
    else: prep = [f"s_xor_b32 s{sT3}, s{sPQ}, {idx * 1024 + t * 32768}"]
    return (prep, f"buffer_load_dwordx4 {ar(areg(s, t))}, v{vL16}, {sr(SWS)}, s{sT3} offen sc1", ("A", s), False)
def emit_item(g, it):
    for x in it[0]: g.e(x)
    g.vmem(it[1], it[2])

def prologue(g):
    e = g.e
    e("s_cmp_ge_u32 s2, 256")
    e("s_cbranch_scc1 L_END")
    g.st.mark(g)
    e("s_load_dwordx16 s[4:19], s[0:1], 0")
    e("s_load_dwordx2 s[20:21], s[0:1], 64")
    if OPT["cpf"] == 1:
        e("s_getpc_b64 s[22:23]")
        e("v_lshlrev_b32 v252, 7, v0")
        g.vmem("global_load_dword v253, v252, s[22:23]", "pf")
    if OPT["cpf"] == 2:
        e("s_getpc_b64 s[22:23]")
        e("s_bfe_u32 s24, s2, 0x30003")
        e("s_lshl_b32 s24, s24, 12")
        e("v_lshrrev_b32 v252, 3, v0")
        e("v_lshl_add_u32 v252, v252, 7, s24")
        g.vmem("global_load_dword v253, v252, s[22:23]", "pf")
    e("v_and_b32 v1, 63, v0")
    e("v_lshrrev_b32 v2, 6, v0")
    if OPT["lin"]: e(f"s_lshr_b32 s{sT0}, s2, 5")
    else: e(f"s_and_b32 s{sT0}, s2, 7")
    e(f"v_readfirstlane_b32 s{sW}, v2")
    if OPT["lin"]: e(f"s_and_b32 s{sT1}, s2, 31")
    else: e(f"s_lshr_b32 s{sT1}, s2, 3")
    e(f"s_and_b32 s{sRB}, s{sT0}, 3")
    e(f"s_lshl_b32 s{sRB}, s{sRB}, 2")
    e(f"s_lshr_b32 s{sT2}, s{sT1}, 3")
    e(f"s_add_u32 s{sRB}, s{sRB}, s{sT2}")
    e(f"s_lshl_b32 s{sRB2}, s{sT0}, 2")
    e(f"s_add_u32 s{sRB2}, s{sRB2}, s{sT2}")
    e(f"s_and_b32 s{sCB}, s{sT1}, 7")
    e(f"s_and_b32 s{sTYP}, s{sCB}, 1")
    e(f"s_lshr_b32 s{sJ}, s{sT0}, 2")
    e(f"s_lshl_b32 s{sJ}, s{sJ}, 2")
    e(f"s_lshr_b32 s{sT0}, s{sCB}, 1")
    e(f"s_add_u32 s{sJ}, s{sJ}, s{sT0}")
    if OPT["rot"] == 1: e(f"s_add_u32 s91, s{sCB}, s{sT2}")
    elif OPT["rot"] == 2: e(f"s_lshl_b32 s91, s{sT2}, 1"); e(f"s_add_u32 s91, s91, s{sCB}")
    elif OPT["rot"] in (3, 4, 5):
        e(f"s_lshr_b32 s91, s{sRB}, 2")
        e("s_lshl_b32 s91, s91, 1")
        e(f"s_and_b32 s92, s{sJ}, 4")
        e("s_add_u32 s91, s91, s92")
        if OPT["rot"] == 4:
            e(f"s_add_u32 s92, s{sCB}, s{sT2}")
            e("s_and_b32 s92, s92, 1")
            e("s_add_u32 s91, s91, s92")
        if OPT["rot"] == 5:
            e(f"s_add_u32 s92, s{sCB}, s{sT2}")
            e("s_and_b32 s92, s92, 3")
            e("s_add_u32 s91, s91, s92")
    else: e("s_mov_b32 s91, 0")
    e("v_lshrrev_b32 v12, 3, v1")
    e("v_and_b32 v13, 7, v1")
    e("v_lshrrev_b32 v14, 1, v12")
    e("v_xor_b32 v15, v13, v14")
    e("v_lshlrev_b32 v15, 4, v15")
    e(f"v_lshl_add_u32 v{vXD}, v12, 10, v15")
    e(f"v_xor_b32 v{vXD+1}, 64, v{vXD}")
    e(f"v_add_u32 v{vXD+2}, {2*7168}, v{vXD}")
    e(f"v_add_u32 v{vXD+3}, {3*7168}, v{vXD+1}")
    e(f"v_add_u32 v{vXD+1}, 7168, v{vXD+1}")
    e("v_and_b32 v14, 1, v14")
    e("v_lshlrev_b32 v14, 2, v14")
    e("v_xor_b32 v15, v13, v14")
    e("v_lshlrev_b32 v15, 4, v15")
    e("s_movk_i32 s97, 2752")
    e("s_movk_i32 s96, 3072")
    e(f"s_cmp_eq_u32 s{sTYP}, 0")
    e("s_cselect_b32 s98, s96, s97")
    e("s_cselect_b32 s99, s97, s96")
    e(f"v_mad_u32_u24 v{vWP}, s98, v12, v15")
    e("s_lshl_b32 s100, s98, 3")
    e("s_sub_u32 s100, s100, 1024")
    e(f"v_add_u32 v{vWP+1}, s100, v{vWP}")
    e(f"s_lshl_b32 s92, s{sRB}, 7")
    e(f"s_lshl_b32 s{sT0}, s{sW}, 5")
    e(f"s_add_u32 s92, s92, s{sT0}")
    e("s_lshl_b32 s92, s92, 10")
    e(f"s_lshl_b32 s93, s{sW}, 4")
    def tab(p):
        e(f"s_add_u32 s{sT0}, s91, {p}")
        e(f"s_and_b32 s{sT0}, s{sT0}, 7")
        e(f"s_lshl_b32 s{sXO+p}, s{sT0}, 7")
        e(f"s_add_u32 s{sXO+p}, s{sXO+p}, s92")
        e(f"s_lshl_b32 s{sT0}, s{sT0}, 6")
        e(f"s_add_u32 s{sT0}, s{sT0}, s93")
        e(f"s_mul_i32 s{sPO+p}, s{sT0}, s98")
        e(f"s_mul_i32 s{sSO+p}, s{sT0}, s99")
    g.tab = tab
    for p in range(3): tab(p)
    e(f"s_lshl_b32 s95, s{sJ}, 7")
    e(f"s_add_u32 s95, s95, 1024")
    e(f"s_lshr_b32 s{sT0}, s{sJ}, 1")
    e(f"s_mul_i32 s{sT0}, s{sT0}, 704")
    e(f"s_and_b32 s{sT1}, s{sJ}, 1")
    e(f"s_lshl_b32 s{sT1}, s{sT1}, 7")
    e(f"s_add_u32 s{sT0}, s{sT0}, s{sT1}")
    e(f"s_lshl_b32 s{SWP+2}, s98, 9")
    e(f"s_lshl_b32 s{SWS2+2}, s99, 9")
    e(f"s_mov_b32 s{SWP+3}, 0x00020000")
    e(f"s_mov_b32 s{SWS2+3}, 0x00020000")
    e(f"s_mov_b32 s{SX+2}, {2048*1024}")
    e(f"s_mov_b32 s{SX+3}, 0x00020000")
    e(f"s_cmp_eq_u32 s{sTYP}, 0")
    e(f"s_cselect_b32 s95, s95, s{sT0}")
    e("s_waitcnt lgkmcnt(0)")
    e(f"s_cselect_b32 s{SWP}, s6, s12")
    e(f"s_cselect_b32 s{SWP+1}, s7, s13")
    e(f"s_cselect_b32 s{SWS2}, s12, s6")
    e(f"s_cselect_b32 s{SWS2+1}, s13, s7")
    e(f"s_mov_b32 s{SX}, s4")
    e(f"s_and_b32 s{SX+1}, s5, 0xffff")
    e(f"s_and_b32 s{SWP+1}, s{SWP+1}, 0xffff")
    e(f"s_mov_b32 s{SWO}, s8")
    e(f"s_and_b32 s{SWO+1}, s9, 0xffff")
    e(f"s_mov_b32 s{sCOL[0]}, s95")
    e(f"s_lshl_b32 s{sXL}, s{sW}, 12")
    e(f"s_lshl_b32 s{sBL}, s{sW}, 11")

def setup1(g):
    e = g.e
    e(f"s_and_b32 s{SWS2+1}, s{SWS2+1}, 0xffff")
    e(f"s_mov_b32 s{SWO+2}, {512*1024}")
    e(f"s_mov_b32 s{SWO+3}, 0x00020000")
    srd(g, SWS, 20, WS_BYTES)
    srd(g, SDBG, 18, 256)
    srd(g, SW2, 14, 1376 * 1024)
    srd(g, SOUT, 16, 2048 * 1024)
    e(f"s_lshr_b32 s{sM}, s{sW}, 1")
    e(f"s_and_b32 s{sN}, s{sW}, 1")
    for p in range(3, 8): g.tab(p)

def setup2(g):
    e = g.e
    t = T
    e(f"v_mad_u32_u24 v{vWS}, s99, v12, v15")
    e("s_lshl_b32 s100, s99, 3")
    e("s_sub_u32 s100, s100, 1024")
    e(f"v_add_u32 v{vWS+1}, s100, v{vWS}")
    e(f"v_lshl_add_u32 v{vBD}, v12, 10, v15")
    e(f"v_add_u32 v{vBD+1}, 7168, v{vBD}")
    e(f"s_and_b32 s{sT0}, s{sJ}, 1")
    e(f"s_cmp_eq_u32 s{sJ}, 6")
    e(f"s_cselect_b32 s{sT0}, 1, s{sT0}")
    e(f"s_and_b32 s101, s{sT0}, s{sTYP}")
    e(f"v_bfe_u32 v{vSKIP}, v15, 6, 1")
    e(f"v_and_b32 v{vSKIP}, s101, v{vSKIP}")
    e(f"v_lshlrev_b32 v{vSKIP}, 30, v{vSKIP}")
    e(f"v_and_b32 v{t}, 31, v1")
    e(f"v_lshrrev_b32 v{t+1}, 5, v1")
    e(f"v_bfe_u32 v{t+2}, v1, 1, 3")
    e(f"s_lshl_b32 s{sT1}, s{sM}, 6")
    e(f"s_lshl_b32 s{sT0}, s{sN}, 5")
    e(f"s_add_u32 s{sT1}, s{sT1}, s{sT0}")
    e(f"v_add_u32 v{t+3}, s{sT1}, v{t}")
    e(f"v_lshlrev_b32 v{t+4}, 7, v{t+3}")
    for u in range(4):
        e(f"s_xor_b32 s{sT0}, s{sM}, {u}")
        e(f"s_lshl_b32 s{sT0}, s{sT0}, 1")
        e(f"v_add_u32 v{t+5}, s{sT0}, v{t+1}")
        e(f"v_xor_b32 v{t+5}, v{t+5}, v{t+2}")
        e(f"v_lshl_add_u32 v{vXA[0]+u}, v{t+5}, 4, v{t+4}")
        e(f"v_xor_b32 v{vXA[1]+u}, 0x1000, v{vXA[0]+u}")
    e(f"v_lshlrev_b32 v{vSTO}, 2, v{t+3}")
    e(f"v_add_u32 v{vSTO}, {M_RM}, v{vSTO}")
    e(f"v_xor_b32 v{vSTX}, 0x80, v{vSTO}")
    e(f"v_bfe_u32 v{t+5}, v1, 2, 2")
    e(f"v_and_b32 v{t+6}, 3, v1")
    e(f"v_bfe_u32 v{t+7}, v1, 4, 1")
    e(f"v_lshrrev_b32 v{t+8}, 1, v{t+6}")
    e(f"v_lshl_add_u32 v{t+8}, v{t+7}, 1, v{t+8}")
    e(f"v_lshrrev_b32 v{t+9}, 1, v{t+5}")
    e(f"v_lshlrev_b32 v{t+9}, 2, v{t+9}")
    e(f"v_xor_b32 v{t+8}, v{t+8}, v{t+9}")
    e(f"v_lshlrev_b32 v{t+8}, 4, v{t+8}")
    e(f"v_and_b32 v{t+9}, 1, v{t+6}")
    e(f"v_lshl_add_u32 v{t+8}, v{t+9}, 3, v{t+8}")
    e(f"v_lshl_add_u32 v{t+8}, v{t+5}, 7, v{t+8}")
    e(f"v_lshl_add_u32 v247, v{t+1}, 9, v{t+8}")
    e(f"v_lshl_add_u32 v{t+9}, v{t+1}, 10, v{t+8}")
    e(f"s_lshl_b32 s{sT0}, s{sN}, 6")
    e(f"v_xor_b32 v{t+9}, s{sT0}, v{t+9}")
    e(f"s_lshl_b32 s{sT0}, s{sM}, 11")
    e(f"v_add_u32 v{vWA}, s{sT0}, v{t+9}")
    e(f"v_subrev_u32 v{vWA+1}, s{sT0}, v{t+9}")
    e(f"v_add_u32 v{vWA+1}, 2048, v{vWA+1}")
    for r in (1, 2):
        e(f"v_add_u32 v{vWA+2*r}, {65536*r}, v{vWA}")
        e(f"v_add_u32 v{vWA+2*r+1}, {65536*r}, v{vWA+1}")
    e(f"v_lshlrev_b32 v{vL16}, 4, v1")
    e(f"v_cmp_eq_u32 {sr(mB4,2)}, 1, v{t+7}")
    e(f"v_cmp_eq_u32 {sr(mH,2)}, 1, v{t+1}")
    e(f"v_and_b32 v{t+9}, 1, v1")
    e(f"v_cmp_eq_u32 {sr(mB0,2)}, 1, v{t+9}")
    e(f"v_and_b32 v{t+10}, 2, v1")
    e(f"v_cmp_eq_u32 {sr(mB1,2)}, 2, v{t+10}")
    e(f"v_cmp_eq_u32 vcc, v{t+9}, v{t+7}")
    e(f"v_mov_b32 v{t+10}, 0x3f803f80")
    for r in range(4): e(f"v_cndmask_b32 v{MO+r}, 0, v{t+10}, vcc")
    for r in range(1, 4):
        e(f"v_mov_b32 v{AAUG[0]+r}, 0"); e(f"v_mov_b32 v{AAUG[1]+r}, 0"); e(f"v_mov_b32 v{BAUG+r}, 0")
    e(f"v_mov_b32 v{vZERO}, 0")
    e(f"s_mov_b32 s{sLOG}, 0x3fb8aa3b")
    e(f"s_mov_b32 s{sLOG+1}, 0x3fb8aa3b")
    e(f"s_mov_b32 s{sEPS}, 0x%08x" % f2u(1e-6))
    e(f"s_lshl_b32 s{sT0}, s{sN}, 1")
    e(f"s_add_u32 s{sT0}, s{sT0}, s{sM}")
    e(f"s_lshl_b32 s{sT0}, s{sT0}, 7")
    e(f"s_add_u32 s{sT0}, s{sT0}, {M_CS}")
    e(f"v_lshl_add_u32 v{vCSW}, v{t}, 2, s{sT0}")
    e(f"v_xor_b32 v{vCSR}, 0x80, v{vCSW}")
    e(f"v_lshlrev_b32 v{t+9}, 4, v{t+1}")
    e(f"s_lshl_b32 s{sT0}, s{sT1}, 2")
    e(f"s_add_u32 s{sT0}, s{sT0}, {M_RR}")
    e(f"v_add_u32 v{vRR}, s{sT0}, v{t+9}")
    e(f"v_xor_b32 v{vRR+1}, 0x80, v{vRR}")
    e(f"s_lshl_b32 s{sT0}, s{sRB}, 2")
    e(f"s_lshl_b32 s{sT2}, s{sM}, 1")
    e(f"s_add_u32 s{sT0}, s{sT0}, s{sT2}")
    e(f"s_add_u32 s{sRT[0]}, s{sT0}, s{sN}")
    e(f"s_xor_b32 s{sRT[1]}, s{sRT[0]}, 1")
    e(f"v_and_b32 v{t+9}, 15, v1")
    e(f"v_lshlrev_b32 v{vFLO}, 3, v{t+9}")
    e(f"v_lshlrev_b32 v{vCTLO}, 2, v1")
    e(f"s_lshr_b32 s{sT0}, s{sJ}, 1")
    e(f"s_mul_i32 s{sT0}, s{sT0}, 704")
    e(f"s_and_b32 s{sT1}, s{sJ}, 1")
    e(f"s_lshl_b32 s{sT2}, s{sT1}, 7")
    e(f"s_add_u32 s{sT2}, s{sT2}, s{sT0}")
    e(f"s_add_u32 s{sCOL[2]}, s{sT2}, 256")
    e(f"s_lshl_b32 s{sT1}, s{sT1}, 6")
    e(f"s_sub_u32 s{sT0}, s{sT0}, s{sT1}")
    e(f"s_add_u32 s{sT0}, s{sT0}, 576")
    e(f"s_lshl_b32 s{sCOL[1]}, s{sJ}, 7")
    e(f"s_add_u32 s{sT2}, s{sCOL[1]}, 2048")
    e(f"s_cmp_eq_u32 s{sTYP}, 0")
    e(f"s_cselect_b32 s{sCOL[1]}, s{sT2}, s{sCOL[1]}")
    e(f"s_cselect_b32 s{sCOL[2]}, s{sCOL[2]}, s{sT0}")
    e(f"s_lshl_b32 s{sT0}, s{sN}, 11")
    e(f"s_lshl_b32 s{sHST[1]}, s{sJ}, 12")
    e(f"s_add_u32 s{sHST[1]}, s{sHST[1]}, s{sT0}")
    e(f"s_add_u32 s{sHST[1]}, s{sHST[1]}, {QB}")
    e(f"s_lshr_b32 s{sT1}, s{sJ}, 1")
    e(f"s_mul_i32 s{sT1}, s{sT1}, 10240")
    e(f"s_add_u32 s{sT0}, s{sT0}, s{sT1}")
    for c in (0, 2):
        e(f"s_lshl_b32 s{sHST[c]}, s{sCOL[c]}, 5")
        e(f"s_add_u32 s{sHST[c]}, s{sHST[c]}, s{sT0}")
    e(f"s_and_b32 s{sT0}, s101, s{sN}")
    e(f"s_cmp_eq_u32 s{sT0}, 1")
    e(f"s_cselect_b32 s{sHST[2]}, {OOB}, s{sHST[2]}")
    e(f"s_lshl_b32 s{sT0}, s{sCB}, 7")
    e(f"s_mul_i32 s{sB2}, s{sW}, {22 * 16 * 1024}")
    e(f"s_add_u32 s{sB2}, s{sB2}, s{sT0}")
    e(f"s_lshl_b32 s{sBO}, s{sW}, 17")
    e(f"s_add_u32 s{sBO}, s{sBO}, s{sT0}")
    e(f"s_lshl_b32 s{sXR}, s{sRB2}, 16")
    e(f"s_add_u32 s{sXR}, s{sXR}, s{sT0}")
    e(f"s_add_u32 s{sXR+1}, s{sXR}, 32768")
    e(f"s_lshl_b32 s{sHA}, s{sRB2}, 3")
    e(f"s_add_u32 s{sHA}, s{sHA}, s{sW}")
    e(f"s_lshl_b32 s{sHA}, s{sHA}, 15")
    e(f"s_cmp_eq_u32 s{sW}, 3")
    e(f"s_cselect_b32 s{sHA2}, {OOB}, s{sHA}")
    e(f"s_lshl_b32 s{sPQ}, s{sRB2}, 6")
    e(f"s_lshl_b32 s{sT0}, s{sW}, 3")
    e(f"s_add_u32 s{sPQ}, s{sPQ}, s{sT0}")
    e(f"s_lshl_b32 s{sPQ}, s{sPQ}, 10")
    e(f"s_add_u32 s{sPQ}, s{sPQ}, {QB}")
    e(f"s_mul_i32 s{sKV}, s{sW}, {8 * KVH}")
    e(f"s_add_u32 s{sKV}, s{sKV}, {KVB}")
    if STAMP: e("v_writelane_b32 v255, s2, 63")
    e(f"s_lshl_b32 s{sFL}, s{sRB2}, 2")
    e(f"s_add_u32 s{sFL}, s{sFL}, s{sW}")
    e(f"s_lshl_b32 s{sFL}, s{sFL}, 7")
    e(f"s_add_u32 s{sFL}, s{sFL}, {FLB}")
    e(f"s_lshl_b32 s{sKF}, s{sW}, 10")
    e(f"s_add_u32 s{sKF}, s{sKF}, {KFB}")

def I(t, c=1): return ("i", t, c)
def setup3_ops():
    L = [I(f"v_add_u32 v{vBT}, s{sBL}, v247"), I(f"v_xor_b32 v{vBT+1}, 64, v{vBT}")]
    for r in (1, 2):
        L += [I(f"v_add_u32 v{vBT+2*r}, {65536*r}, v{vBT}"), I(f"v_add_u32 v{vBT+2*r+1}, {65536*r}, v{vBT+1}")]
    L += [I(f"v_lshrrev_b32 v{vXD}, 5, v1"),
          I(f"v_lshlrev_b32 v{vXD+1}, 8, v{vXD}"),
          I(f"v_lshl_add_u32 v{vXD+1}, v{vFLO}, 1, v{vXD+1}"),
          I(f"v_lshlrev_b32 v{vXD}, 4, v{vXD}"),
          I(f"v_add_u32 v{vXD}, 1024, v{vXD}"),
          I(f"v_cndmask_b32 v{vKVO}, v{vXD+1}, v{vXD}, {sr(mB4,2)}"),
          I(f"v_add_u32 v{vXD+1}, 480, v{vXD+1}"),
          I(f"v_cndmask_b32 v{vXD+2}, v{vXD+1}, v{vXD}, {sr(mB4,2)}"),
          I(f"v_lshrrev_b32 v{vXD}, 3, v0"),
          I(f"v_and_b32 v{vXD+1}, 7, v0"),
          I(f"v_lshlrev_b32 v{vXD+1}, 4, v{vXD+1}"),
          I(f"v_lshl_add_u32 v{vXO}, v{vXD}, 10, v{vXD+1}")]
    return L

def read_x1(g, p, u, t):
    off = XPAGE[p % 5] * PAGE
    if off < 65536:
        g.ds(f"ds_read_b128 {ar(X(t, p, u))}, v{vXA[t] + u} offset:{off}", ("X", p, u))
    else:
        g.e(f"v_add_u32 v{vTMP}, {off}, v{vXA[t] + u}")
        g.ds(f"ds_read_b128 {ar(X(t, p, u))}, v{vTMP}", ("X", p, u))
def read_x(g, p, u):
    for t in range(2): read_x1(g, p, u, t)
def read_w(g, step):
    gi, u = step >> 2, step & 3
    b = WF[step % 3]
    pg = WPAGE[gi]
    off = (pg & 7) * PAGE + (u & ~1) * 2048
    a = vWA + 2 * (pg >> 3) + (u & 1)
    g.ds(f"ds_read_b64_tr_b16 v[{b}:{b+1}], v{a} offset:{off}", ("Wf", step))
    g.ds(f"ds_read_b64_tr_b16 v[{b+2}:{b+3}], v{a} offset:{off + 512}", ("Wf", step))

def flag_store(addr_ops, tag):
    return [("blk", addr_ops, 6), ("waitvm", tag),
            ("blk", ["s_mov_b64 exec, 1",
                     ("vm", f"buffer_store_dwordx2 v[{vNON}:{vNON+1}], v{vZERO}, {sr(SWS)}, s{sT1} offen sc1"),
                     "s_mov_b64 exec, -1"], 4)]
def flag_addr(kind):
    return [f"s_lshl_b32 s{sT1}, s{sRB}, 1", f"s_add_u32 s{sT1}, s{sT1}, s{sM}", f"s_lshl_b32 s{sT1}, s{sT1}, 2",
            f"s_lshr_b32 s{sT2}, s{sJ}, 1", f"s_add_u32 s{sT1}, s{sT1}, s{sT2}", f"s_lshl_b32 s{sT1}, s{sT1}, 4",
            f"s_and_b32 s{sT2}, s{sJ}, 1", f"s_lshl_b32 s{sT2}, s{sT2}, 1", f"s_add_u32 s{sT1}, s{sT1}, s{sT2}",
            f"s_add_u32 s{sT1}, s{sT1}, s{sN}", f"s_add_u32 s{sT1}, s{sT1}, {kind * 4}", f"s_lshl_b32 s{sT1}, s{sT1}, 3",
            f"s_add_u32 s{sT1}, s{sT1}, {FLB}"]
def kvflag_addr():
    return [f"s_lshl_b32 s{sT1}, s{sRB}, 2", f"s_add_u32 s{sT1}, s{sT1}, s{sW}", f"s_lshl_b32 s{sT1}, s{sT1}, 3",
            f"s_lshl_b32 s{sT2}, s{sJ}, 9", f"s_add_u32 s{sT1}, s{sT1}, s{sT2}", f"s_add_u32 s{sT1}, s{sT1}, {KFB}"]
def bfr(d, s): return [I(f"v_cvt_pk_bf16_f32 v{d}, v{s}, v{s}"), I(f"v_and_b32 v{d}, 0xffff0000, v{d}")]
SEL = ["op_sel:[0,0] op_sel_hi:[1,0]", "op_sel:[0,1] op_sel_hi:[1,1]"]
SEL3 = ["op_sel:[0,0,0] op_sel_hi:[1,0,1]", "op_sel:[0,1,0] op_sel_hi:[1,1,1]"]

def epilogue(c, typ, fast):
    L = []
    A = ACCS[c & 1]
    corient = (typ == 0 and c < 2)
    t = T; cs = vCSV
    bau = [I(f"v_add_f32 v{cs}, v{cs}, v{vCSP}"),
           I(f"v_cvt_pk_bf16_f32 v{t}, -v{cs}, -v{cs}"),
           I(f"v_and_b32 v{t}, 0xffff0000, v{t}"),
           I(f"v_sub_f32 v{t}, -v{cs}, v{t}"),
           I(f"v_cvt_pk_bf16_f32 v{t}, -v{cs}, v{t}"),
           I(f"v_cndmask_b32 v{BAUG}, v{t}, 0, {sr(mH,2)}")]
    if c == 0:
        L += [I(f"v_cndmask_b32 v{t+1}, v{S1}, v{S1+1}, {sr(mB4,2)}")]
        L += [I(f"v_add_f32 v{Q0+r}, v{Q0+r}, v{Q1+r}") for r in range(4)]
        L += [I(f"v_cndmask_b32 v{t+2}, v{Q0}, v{Q0+1}, {sr(mB0,2)}"),
              I(f"v_cndmask_b32 v{t+3}, v{Q0+2}, v{Q0+3}, {sr(mB0,2)}"),
              I(f"v_cndmask_b32 v{t+2}, v{t+2}, v{t+3}, {sr(mB1,2)}"),
              I(f"v_mov_b32 v{t+3}, v{t+2}"),
              I(f"v_mul_f32 v{t+1}, 0x3b000000, v{t+1}"),
              I(f"v_cvt_pk_bf16_f32 v{AAUG[0]}, v{t+1}, v{t+1}"),
              I(f"v_permlane32_swap_b32 v{t+2}, v{t+3}"),
              I(f"v_add_f32 v{t+2}, v{t+2}, v{t+3}"),
              I(f"v_mul_f32 v{t+2}, 0x3b000000, v{t+2}"),
              I(f"v_fma_f32 v{t+2}, -v{t+1}, v{t+1}, v{t+2}"),
              I(f"v_max_f32 v{t+2}, 0, v{t+2}")]
        L += bfr(t+2, t+2)
        L += [I(f"v_add_f32 v{t+2}, 0x%08x, v{t+2}" % f2u(1e-5))]
        L += bfr(t+2, t+2)
        L += [I(f"v_sqrt_f32 v{t+2}, v{t+2}", 2), ("ds", f"ds_write_b32 v{vSTO}, v{AAUG[0]}", "fw")]
        L += bfr(t+2, t+2)
        L += [I(f"v_rcp_f32 v{RL}, v{t+2}", 2), bau[0]]
        L += [("ds", f"ds_write_b32 v{vSTO}, v{RL} offset:512", "fw"), ("bar", bau[1:])]
        L += [("ds", f"ds_read_b32 v{AAUG[1]}, v{vSTX}", "fr"), ("ds", f"ds_read_b32 v{RL+1}, v{vSTX} offset:512", "fr")]
        if typ == 0:
            for tt in range(2):
                for q in range(4):
                    L += [("ds", f"ds_read_b128 {vr(RROW[tt] + 4*q)}, v{vRR+tt} offset:{32*q}", "fr")]
        L += [("delay", 1), ("waitlg", "fr")]
    else:
        L += bau
    for tt in range(2):
        a, b = (vr(AAUG[tt]), vr(BAUG)) if corient else (vr(BAUG), vr(AAUG[tt]))
        L += [("mfma", f"v_mfma_f32_32x32x16_bf16 {vr(A[tt],16)}, {a}, {b}, {vr(A[tt],16)}")]
    L += [("delay", 1)]
    def pk(op, d, a, b, c3=None, mod=""):
        s = f"{op} v[{d}:{d+1}], v[{a}:{a+1}], {b}"
        if c3 is not None: s += f", v[{c3}:{c3+1}]"
        return s + (" " + mod if mod else "")
    def cvt(tt, d): return [I(f"v_cvt_pk_bf16_f32 v{d+q}, v{A[tt]+2*q}, v{A[tt]+2*q+1}") for q in range(8)]
    def store(tt, d, stride, tag):
        return [("st", [([f"s_mul_i32 s{sT3}, s{sRT[tt]}, {stride}", f"s_add_u32 s{sT3}, s{sT3}, s{sHST[c]}"],
                         f"buffer_store_dwordx4 {vr(d)}, v{vL16}, {sr(SWS)}, s{sT3} offen sc1", tag, True),
                        ([], f"buffer_store_dwordx4 {vr(d+4)}, v{vL16}, {sr(SWS)}, s{sT3} offen offset:1024 sc1", tag, False)])]
    tag = "st%d" % c
    if c == 1 and typ == 1:
        L += [("burst", [pk("v_pk_mul_f32", t+16*tt+2*q, A[tt]+2*q, f"v[{RLL}:{RLL+1}]", None, SEL[tt]) for tt in range(2) for q in range(8)])]
        L += [("rate", OPT["qrate"])]
        for tt in range(2):
            for r in range(16):
                L += [I(f"v_exp_f32_e64 v{t+16*tt+r}, v{t+16*tt+r} clamp", 2), I(f"v_max_f32 v{A[tt]+r}, v{EPSR+tt}, v{A[tt]+r}")]
        L += [("burst", [pk("v_pk_fma_f32", A[tt]+2*q, A[tt]+2*q, f"v[{RL}:{RL+1}]", t+16*tt+2*q, SEL3[tt]) for tt in range(2) for q in range(8)])]
        for tt in range(2): L += cvt(tt, VF + 8*tt) + store(tt, VF + 8*tt, 32768, tag)
        L += [("rate", 0), ("delay", OPT["fdelay"])] + flag_store(flag_addr(1), tag)
    elif c == 0 and typ == 0:
        B = [pk("v_pk_mul_f32", A[tt]+2*q, A[tt]+2*q, f"v[{RROW[tt]+2*q}:{RROW[tt]+2*q+1}]") for tt in range(2) for q in range(8)]
        B += [pk("v_pk_mul_f32", t+16*tt+2*q, A[tt]+2*q, sr(sLOG, 2)) for tt in range(2) for q in range(8)]
        L += [("burst", B), ("rate", OPT["krate"])]
        for tt in range(2):
            for r in range(16):
                L += [I(f"v_exp_f32_e64 v{t+16*tt+r}, v{t+16*tt+r} clamp", 2), I(f"v_max_f32 v{A[tt]+r}, s{sEPS}, v{A[tt]+r}")]
        L += [("burst", [pk("v_pk_add_f32", A[tt]+2*q, A[tt]+2*q, f"v[{t+16*tt+2*q}:{t+16*tt+2*q+1}]") for tt in range(2) for q in range(8)])]
        for tt in range(2): L += cvt(tt, PK + 8*tt)
        L += [("rate", 0)]
    elif c == 1 and typ == 0:
        B = [pk("v_pk_mul_f32", A[tt]+2*q, A[tt]+2*q, f"v[{RROW[tt]+2*q}:{RROW[tt]+2*q+1}]") for tt in range(2) for q in range(8)]
        B += [x[1] for tt in range(2) for x in cvt(tt, VF + 8*tt)]
        L += [("burst", B)]
        KVA = A[0]
        adr = [I(f"v_bfe_u32 v{t+16}, v1, 4, 1"), I(f"v_mul_u32_u24 v{t+16}, {KVH}, v{t+16}"),
               ("blk", [f"s_mul_i32 s{sT1}, s{sM}, 4352", f"s_mul_i32 s{sT2}, s{sN}, 2176", f"s_add_u32 s{sT1}, s{sT1}, s{sT2}",
                        f"s_add_u32 s{sT1}, s{sT1}, {M_KV}", f"v_add_u32 v{t+16}, s{sT1}, v{t+16}"], 5),
               I(f"v_lshrrev_b32 v{t+17}, 5, v1"),
               I(f"v_lshrrev_b32 v{t+18}, 1, v{vFLO}"), I(f"v_add_u32 v{t+18}, v{t+18}, v{t+16}"),
               I(f"v_lshl_add_u32 v{t+16}, v{t+17}, 8, v{t+16}"),
               I(f"v_lshl_add_u32 v{t+16}, v{vFLO}, 1, v{t+16}"), I(f"v_lshlrev_b32 v{t+19}, 2, v0"),
               I(f"v_add_u32 v{t+20}, {M_KV}, v{t+19}"),
               I(f"v_cndmask_b32 v{t+8}, v{S1}, v{S1+1}, {sr(mB4,2)}"),
               ("ds", f"ds_write_b32 v{t+18}, v{t+8} offset:1024", "fw")]
        ms = []
        for i in range(4): ms.append(f"v_mfma_f32_16x16x32_bf16 {vr(S1)}, {vr(MO)}, {vr(PK+4*i)}, {'0' if i == 0 else vr(S1)}")
        L.insert(len(L) - 1, ("burst", ms))
        ms = []
        for i in range(4): ms.append(f"v_mfma_f32_32x32x16_bf16 {vr(KVA,16)}, {vr(PK+4*i)}, {vr(VF+4*i)}, {'0' if i == 0 else vr(KVA,16)}")
        L += [("mfmas", ms, adr), ("delay", 1)]
        L += [I(f"v_cndmask_b32 v{t+r}, v{KVA+r}, v{KVA+8+r}, {sr(mB4,2)}") for r in range(8)]
        L += [("ds", f"ds_write_b128 v{t+16}, {vr(t)}", "fw"), ("ds", f"ds_write_b128 v{t+16}, {vr(t+4)} offset:512", "fw")]
        L += [("bar", setup3_ops())]
        L += [("ds", f"ds_read2st64_b32 v[{t+2*i}:{t+2*i+1}], v{t+20} offset0:{4*i} offset1:{17+4*i}", "fr") for i in range(5)]
        L += [("delay", 1), ("waitlg", "fr")]
        L += [I(f"v_add_f32 v{t+2*i}, v{t+2*i}, v{t+2*i+1}") for i in range(5)]
        its = []
        for i in range(4):
            prep = [f"s_mul_i32 s{sT3}, s{sJ}, 4352", f"s_add_u32 s{sT3}, s{sT3}, {KVB}"] if i == 0 else []
            its.append((prep, f"buffer_atomic_add_f32 v{t+2*i}, v{t+19}, {sr(SWS)}, s{sT3} offen offset:{1024*i}", "at", True))
        its.append(([f"s_add_u32 s{sT3}, s{sT3}, 4096", f"s_cmp_eq_u32 s{sW}, 0", f"s_cselect_b32 s{sT3}, s{sT3}, {OOB}"],
                    f"buffer_atomic_add_f32 v{t+8}, v{t+19}, {sr(SWS)}, s{sT3} offen", "at", False))
        L += [("st", its), ("delay", OPT["adelay"])] + flag_store(kvflag_addr(), "at")
    else:
        if not fast and OPT["hb"]:
            L += [("burst", [pk("v_pk_mul_f32", A[tt]+2*q, A[tt]+2*q, f"v[{RL}:{RL+1}]", None, SEL[tt]) for tt in range(2) for q in range(8)])]
        for tt in range(2):
            d = VF + 8*tt
            if fast: L += [I(pk("v_pk_mul_f32", A[tt]+2*q, A[tt]+2*q, f"v[{RL}:{RL+1}]", None, SEL[tt])) for q in range(8)]
            elif not OPT["hb"]: L += [I(f"v_mul_f32 v{A[tt]+r}, v{RL+tt}, v{A[tt]+r}") for r in range(16)]
            for hf in range(2):
                L += [I(f"v_cvt_pk_bf16_f32 v{d+q}, v{A[tt]+2*q}, v{A[tt]+2*q+1}") for q in range(4*hf, 4*hf+4)]
                L += [I(f"v_pk_max_i16 v{d+q}, v{d+q}, 0") for q in range(4*hf, 4*hf+4)]
                if fast: L += [("st", [store(tt, d, HRT, tag)[0][1][hf]])]
            if not fast: L += store(tt, d, HRT, tag)
        kind = 0 if c == 0 else (2 if typ == 0 else 3)
        if c == 0:
            L += [I(f"v_mul_f32 v{RLL+tt}, s{sLOG}, v{RL+tt}") for tt in range(2)]
            L += [I(f"v_rcp_f32 v{EPSR+tt}, v{RL+tt}", 2) for tt in range(2)]
            L += setup3_ops()
            L += [I(f"v_mul_f32 v{EPSR+tt}, s{sEPS}, v{EPSR+tt}") for tt in range(2)]
        L += [("delay", OPT["hdelay"])] if not fast else [("late",)]
        L += flag_store(flag_addr(kind), tag)
    return L

class Sched:
    def __init__(self, g, typ):
        self.g = g; self.typ = typ
        self.q = []; self.side = []; self.wait_bar = False; self.delay = 0
        self.wq = []; self.sq = []; self.aq = []; self.bq = []
        self.cur = None
        self.bar = -1; self.free_stage = 0; self.tok = 0.0; self.extra = 0; self.pages = []; self.bnext = 0
    def adv(self, cy): self.tok = min(2.0, self.tok + cy / (OPT["pc2"] if 16 <= self.bar < 24 else OPT["period"]))
    def pick(self, force=False):
        if self.cur is not None: return self.cur
        if self.sq: return self.sq
        if self.wq and self.wq[0][0] <= self.bar and (self.tok >= 1 or force or self.wq[0][2][2][1] <= self.bar + 4): return self.wq
        if self.tok < 1 and not force: return None
        a_ok = self.aq and self.aq[0][0] < self.free_stage
        if not self.bq and self.bnext < 30 and self.pages and not self.wq:
            BPAGE[self.bnext] = self.pages.pop(0)
            self.bq = [(0, 0, it) for it in it_b(self.bnext)]; self.bnext += 1
        b_ok = bool(self.bq)
        if a_ok and b_ok:
            sa = self.aq[0][2][2][1]; sb = self.bq[0][2][2][1]
            if sa == 99: sa = 0
            return self.bq if sb <= sa + OPT["bl"] else self.aq
        if a_ok: return self.aq
        if b_ok: return self.bq
        return None
    def vm(self, force=False):
        q = self.pick(force)
        if q is None: return 0
        it = q.pop(0)[2] if q is not self.sq else q.pop(0)
        emit_item(self.g, it)
        self.cur = q if it[3] else None
        tg = it[2]
        isw1 = isinstance(tg, tuple) and tg[0] == "W" and ((self.typ == 0 and tg[1] >= 16) or (self.typ == 1 and not 8 <= tg[1] < 16))
        self.tok -= OPT["w1w"] / 10.0 if isw1 else 0.3 if tg == "at" else 1
        self.tok = max(self.tok, -OPT["debt"])
        return len(it[0]) + 2
    def emit1(self, op):
        g = self.g; k = op[0]
        if k == "i": g.e(op[1])
        elif k == "ds": g.ds(op[1], op[2])
        elif k == "vm": g.vmem(op[1], op[2] if len(op) > 2 else "misc")
        elif k == "mfma": g.e(op[1])
        elif k == "waitlg": g.wait(lg=op[1])
        elif k == "waitvm":
            if VERB: print("   typ", self.typ, "waitvm", op[1], "at step", self.step)
            while self.sq or self.cur is not None: self.vm(True)
            g.wait(vm=op[1])
        elif k in ("blk", "burst"):
            for x in op[1]:
                if isinstance(x, str): g.e(x)
                else: self.emit1(x)
        elif k == "st":
            if VERB: print("   typ", self.typ, "st", op[1][0][2], "at step", self.step)
            self.sq += op[1]
    def cost(self, op):
        k = op[0]
        if k in ("i", "blk"): return op[2]
        return {"ds": 1, "vm": 2, "waitlg": 1, "waitvm": 1, "st": 0}[k]
    def tick(self):
        if self.delay > 0: self.delay -= 1
    def fill(self, slots):
        slots = min(slots, 4) + self.extra
        while slots > 0:
            if self.side: q = self.side
            elif self.q and not self.wait_bar and self.delay == 0: q = self.q
            else: return
            op = q[0]
            if op[0] in ("mfma", "mfmas", "late", "burst"): return
            if op[0] == "bar": q.pop(0); self.wait_bar = True; self.side = list(op[1]); continue
            if op[0] == "delay": q.pop(0); self.delay = op[1]; return
            if op[0] == "rate": q.pop(0); self.extra = op[1]; continue
            if op[0] == "i" and self.cost(op) > slots: return
            q.pop(0); slots -= self.cost(op); self.emit1(op)
    def big(self):
        while self.q and not self.side and self.q[0][0] in ("mfma", "mfmas", "burst") and not self.wait_bar and self.delay == 0:
            op = self.q.pop(0)
            if op[0] == "burst":
                for n, x in enumerate(op[1]):
                    self.g.e(x)
                    if n % 16 == 15: self.adv(72); self.vm()
            elif op[0] == "mfma":
                self.g.e(op[1]); self.adv(32); self.vm()
            else:
                self.side = list(op[2]); self.delay = 1
                for m in op[1]:
                    self.g.e(m); self.adv(32); self.fill(6 - self.vm())
                while self.side: self.emit1(self.side.pop(0))
                self.delay = 0
                return
    def drain(self, until_late=False):
        while self.side: self.emit1(self.side.pop(0))
        if self.wait_bar and self.q:
            self.g.wait(lg="fw"); self.g.e("s_barrier")
        self.wait_bar = False; self.delay = 0
        while self.q:
            op = self.q[0]
            if op[0] == "late":
                if until_late: return
                self.q.pop(0); continue
            self.q.pop(0)
            if op[0] == "bar":
                for x in op[1]: self.emit1(x)
                self.g.wait(lg="fw"); self.g.e("s_barrier"); continue
            if op[0] == "delay": continue
            if op[0] == "rate": self.extra = op[1]; continue
            if op[0] == "mfmas":
                for m in op[1]: self.g.e(m)
                for x in op[2]: self.emit1(x)
                continue
            self.emit1(op)
            if op[0] == "st":
                while self.sq or (self.cur is not None and self.cur is not self.sq): self.vm(True)

npoll = [0]
def poll(g, first_tag, reload, check):
    if OPT["dbg"] & 1: return
    n = npoll[0]; npoll[0] += 1
    g.wait(vm=first_tag)
    g.e(f"s_mov_b32 s{sT2}, 0")
    check()
    g.e(f"s_cbranch_scc1 L_POK{n}")
    g.label(f"L_PL{n}")
    if OPT["slp"]: g.e("s_sleep %d" % OPT["slp"])
    g.e(reload)
    g.e("s_waitcnt vmcnt(0)")
    g.e(f"s_add_u32 s{sT2}, s{sT2}, 1")
    g.e(f"s_cmp_gt_u32 s{sT2}, {OPT['spin']}")
    g.e(f"s_cbranch_scc1 L_POK{n}")
    check()
    g.e(f"s_cbranch_scc0 L_PL{n}")
    g.label(f"L_POK{n}")
    g.e("s_nop 4")
    if STAMP == 1: g.e(f"v_writelane_b32 v255, s{sT2}, {52 + n % 5}")

CTL_LD = f"buffer_load_dword v{vCTL}, v{vCTLO}, {sr(SDBG)}, 0 offen sc1"
FLG_LD = f"buffer_load_dwordx2 v[{vFLG}:{vFLG+1}], v{vFLO}, {sr(SWS)}, s{sFL} offen sc1"
KFL_LD = f"buffer_load_dwordx4 {vr(vKFL)}, v{vL16}, {sr(SWS)}, s{sKF} offen sc1"
def flag_check(g, mask):
    def f():
        g.e(f"v_cmp_eq_u64 vcc, v[{vFLG}:{vFLG+1}], {sr(sNON,2)}")
        g.e(f"s_and_b32 vcc_lo, vcc_lo, {mask}")
        g.e(f"s_cmp_eq_u32 vcc_lo, {mask}")
    return f

def body(g, typ):
    e = g.e
    S = Sched(g, typ)
    S.wq = [(-1, 0, it) for it in g.wq0]
    S.cur = S.wq if g.cur_open else None
    for p in range(4, 8):
        S.wq += [(p - 4, 0, it) for it in it_x(p)] + [(-1, 0, it) for it in it_w(typ, p)]
    for k, gi in enumerate(WORDER):
        if OPT["dpf"] and OPT["dpos"] == 2 and k == OPT["dk"]: S.wq += [(-1, 0, it) for it in it_touch()]
        S.wq += [(max(WAV[gi], OPT['wp'] if k >= 4 else -1), 0, it) for it in it_w(typ, gi)]
    BPAGE.clear()
    if OPT["dbg"] & 8: S.bnext = 30
    prq = [(s2, ct) for s2 in range(8) for ct in range(2)] if OPT["pr"] else []
    prel = []
    if OPT["dbg"] & 64: S.wq = []
    for gi in range(24):
        c, p = gi >> 3, gi & 7
        corient = (typ == 0 and c < 2)
        A = ACCS[c & 1]
        for u in range(4):
            step = gi * 4 + u
            first = (p == 0 and u == 0)
            wf = vr(WF[step % 3])
            S.tick(); S.step = step
            if first and c > 0:
                e(f"v_cndmask_b32 v{vCSV}, v{CS}, v{CS+1}, {sr(mB4,2)}")
            S.big()
            if (u % 2 == 0 or p == 7) and not OPT["dbg"] & 16:
                e(f"v_mfma_f32_16x16x32_bf16 {vr(CS)}, {vr(MO)}, {wf}, {'0' if first else vr(CS)}"); S.adv(16)
            if c == 0:
                x0 = X(0, p, u)
                e(f"v_mfma_f32_4x4x4_16b_bf16 {vr(Q0)}, a[{x0}:{x0+1}], a[{x0}:{x0+1}], {'0' if first else vr(Q0)}")
                e(f"v_mfma_f32_4x4x4_16b_bf16 {vr(Q1)}, a[{x0+2}:{x0+3}], a[{x0+2}:{x0+3}], {'0' if first else vr(Q1)}")
                e(f"v_mfma_f32_16x16x32_bf16 {vr(S1)}, {vr(MO)}, {ar(x0)}, {'0' if first else vr(S1)}"); S.adv(40)
                read_w(g, step + 2)
            def M(t):
                cc = "0" if first else vr(A[t], 16)
                a, b = (ar(X(t, p, u)), wf) if corient else (wf, ar(X(t, p, u)))
                e(f"v_mfma_f32_32x32x16_bf16 {vr(A[t],16)}, {a}, {b}, {cc}"); S.adv(32)
            M(0)
            sl = 6
            if c == 0:
                if step + 2 < 32: read_x1(g, (step + 2) >> 2, (step + 2) & 3, 0); sl -= 1
                sl -= S.vm()
            elif step + 2 < 96:
                read_w(g, step + 2); sl -= 2
            if gi >= OPT["vm2"]: sl -= S.vm()
            while prel and ("PR", prel[0]) not in g.lg:
                S.pages.append(BPAGE[prel.pop(0)])
            if prq and (16 + 2 * prq[0][0] + prq[0][1]) >> 3 < S.free_stage:
                s2, ct = prq.pop(0)
                assert s2 in BPAGE and ("B", s2) not in [x[2][2] for x in S.bq]
                g.wait(vm=[("B", s2)])
                pg = BPAGE[s2]
                for k in range(2):
                    r = breg(s2, ct) + 2 * k
                    g.ds(f"ds_read_b64_tr_b16 a[{r}:{r+1}], v{vBT+2*(pg>>3)+ct} offset:{(pg & 7) * PAGE + k*1024}", ("PR", s2))
                sl -= 2
                if ct == 1: prel.append(s2)
            S.fill(sl)
            M(1)
            sl = 5
            if step + 2 < 32: read_x1(g, (step + 2) >> 2, (step + 2) & 3, 1); sl -= 1
            if p == 7 and u == 2:
                g.ds(f"ds_read_b32 v{vCSP}, v{vCSR}", "csp"); sl -= 1
            sl -= S.vm()
            if u == 1: sl -= 1
            if p == 6 and u == 3:
                e(f"v_cndmask_b32 v{vTMP}, v{CS}, v{CS+1}, {sr(mB4,2)}")
                g.ds(f"ds_write_b32 v{vCSW}, v{vTMP}", "fw"); sl -= 2
            if c == 2 and u == 3: S.free_stage = p + 1
            if u == 1:
                while any(x[2][2][1] <= gi + 1 for x in S.wq):
                    assert S.vm(True)
                g.st.mark2(g)
                g.wait(vm=[("W", gi + 1), ("X", gi + 1)], lg=["fw", ("Wf", step + 1), ("X", (step+1) >> 2, (step+1) & 3)])
                if not OPT["dbg"] & 4: e("s_barrier")
                g.st.mark2(g)
                S.bar = gi; S.wait_bar = False
                S.pages += [pg for (bb, pg) in BEV if bb == gi]
                if gi == 2: publish_ctl(g, typ)
                if gi == 5: g.vmem(CTL_LD, "ctl")
                if gi == 6:
                    assert not any(x[2][2][0] == "X" for x in S.wq)
                    if OPT["xr"]:
                        e(f"s_and_b32 s{sKEY}, s{sRB2}, 3")
                        e(f"s_lshl_b32 s{sKEY}, s{sKEY}, 1")
                        e(f"s_add_u32 s{sKEY}, s{sKEY}, s{sCB}")
                        e(f"s_and_b32 s{sKEY}, s{sKEY}, 7")
                    else: e(f"s_mov_b32 s{sKEY}, 0")
                    e(f"s_lshl_b32 s{sK14}, s{sKEY}, 14")
                    e(f"s_lshl_b32 s{sHAK}, s{sKEY}, 10")
                    e(f"s_or_b32 s{sPQ}, s{sPQ}, s{sHAK}")
                    e(f"s_or_b32 s{sHAK}, s{sHAK}, s{sHA}")
                if gi == 9:
                    def chk():
                        e(f"v_readlane_b32 s{sNON}, v{vCTL}, 16")
                        e(f"v_readlane_b32 s{sNON+1}, v{vCTL}, 17")
                        if typ == 0:
                            e(f"v_readlane_b32 vcc_lo, v{vCTL}, s{sJ}")
                            e(f"s_min_u32 vcc_lo, vcc_lo, s{sNON}")
                            e(f"s_cmp_lg_u32 vcc_lo, 0")
                        else:
                            e(f"s_cmp_lg_u32 s{sNON}, 0")
                    poll(g, "ctl", CTL_LD, chk)
                    e(f"v_mov_b32 v{vNON}, s{sNON}")
                    e(f"v_mov_b32 v{vNON+1}, s{sNON+1}")
                if gi == OPT["hpoll"] - OPT["hlead"]: g.vmem(FLG_LD, "flg")
                if gi == OPT["hpoll"]:
                    poll(g, "flg", FLG_LD, flag_check(g, 0xf))
                    S.aq += [(aslot_of(s, t) >> 3, 0, it_a(s, t)) for s in range(8) for t in range(2)]
            elif step + 1 < 96:
                g.wait(lg=[("Wf", step + 1), ("X", (step+1) >> 2, (step+1) & 3)])
            S.fill(sl + OPT["fs"] - 5)
        if p == 7:
            g.st.mark(g)
            if c < 2:
                n = len([op for op in S.q if op[0] == "i"])
                if n: print("  typ", typ, "chunk", c, "leftover valu", n)
                S.drain()
                g.wait(lg="csp")
                if not OPT["dbg"] & 2: S.q += epilogue(c, typ, False)
    if OPT["dbg"] & 1:
        stamp_flush(g); e("s_endpgm"); return
    n = len([op for op in S.q if op[0] == "i"])
    if n: print("  typ", typ, "chunk 2 leftover valu", n)
    k = len(S.q)
    while k > 0 and S.q[k-1][0] in ("blk", "waitvm", "delay") and len(S.q) - k < 4: k -= 1
    late = S.q[k:] if len(S.q) - k >= 3 else []
    if late: S.q = S.q[:k]; print("  typ", typ, "late chunk-1 flag")
    S.drain()
    while S.sq or S.cur is not None: assert S.vm(True)
    g.wait(lg="csp")
    e(f"v_cndmask_b32 v{vCSV}, v{CS}, v{CS+1}, {sr(mB4,2)}")
    ep = epilogue(2, typ, True)
    i = [k for k, op in enumerate(ep) if op[0] == "delay"][0]
    S.q = ep[:i]
    S.drain()
    if S.aq: print("  typ", typ, "late A loads", len(S.aq))
    print("  typ", typ, "B items left at T1", 2 * (30 - S.bnext) + len(S.bq), "prereads left", len(prq))
    assert not prq
    while S.aq: assert S.vm(True)
    S.q = late; S.drain()
    if OPT["qld"] < 0: g.vmem(FLG_LD, "flg"); g.vmem(KFL_LD, "kfl")
    S.q = ep[i:]
    S.drain(until_late=True)
    S.cur = None
    late2 = S.q; S.q = []
    g.st.mark(g)
    g.wait(lg_all=True)
    e("s_barrier")
    S.bar = 24; S.free_stage = 8
    S.pages += [BPAGE[x] for x in prel] + [pg for (bb, pg) in BEV if bb == 24]
    sv = OPT["period"]; OPT["period"] = OPT["p2"]
    phase2(g, S, late2)
    OPT["period"] = sv

def publish_ctl(g, typ):
    if typ != 0: return
    e = g.e
    e(f"s_cmp_eq_u32 s{sZ}, 1")
    e("s_cbranch_scc0 L_NOZF")
    e(f"s_lshl_b32 s{sT1}, s{sJ}, 2")
    e(f"v_mov_b32 v{vTMP}, 1")
    e("s_mov_b64 exec, 1")
    g.vmem(f"buffer_store_dword v{vTMP}, v{vZERO}, {sr(SDBG)}, s{sT1} offen sc1", counted=False)
    e("s_mov_b64 exec, -1")
    g.label("L_NOZF")

def phase2(g, S, late2):
    e = g.e
    NS = 30
    def read_b(s):
        pg = BPAGE[s]; rng = pg >> 3; off = (pg & 7) * PAGE
        b = BF[s % 3]
        return [lambda ct=ct, k=k: g.ds(f"ds_read_b64_tr_b16 v[{b+4*ct+2*k}:{b+4*ct+2*k+1}], v{vBT+2*rng+ct} offset:{off + k*1024}", ("Bf", s))
                for ct in range(2) for k in range(2)]
    def ensure_b(s):
        while S.bnext <= s or any(x[2][2][1] == s for x in S.bq):
            if S.cur is not None: assert S.vm(True); continue
            sv = S.aq; S.aq = []
            assert S.vm(True)
            S.aq = sv
    npr = 8 if OPT["pr"] else 0
    def ensure(q, s):
        while any(x[2][2][1] == s for x in q):
            if S.cur is None:
                it = q.pop(0)[2]; emit_item(g, it); S.cur = q if it[3] else None
            else:
                assert S.vm(True)
    def Cops(h):
        k = KVR[h]
        return [I(f"v_cvt_pk_bf16_f32 v{k+q}, v{k+2*q}, v{k+2*q+1}") for q in range(4)]
    def Nm(h, t): return f"v_mfma_f32_32x32x16_bf16 {vr(ND[t],16)}, {vr(KVR[h])}, {ar(areg(8 + h, t))}, 0"
    def Vops(h, t):
        d = ND[t]
        L = [I(f"v_add_f32 v{d+8}, s{sEPS}, v{d+8}"), I(f"v_rcp_f32 v{d+8}, v{d+8}", 2)]
        for q in range(4):
            L += [I(f"v_mul_f32 v{d+2*q}, v{d+2*q}, v{d+8}"), I(f"v_mul_f32 v{d+2*q+1}, v{d+2*q+1}, v{d+8}")]
        L += [I(f"v_cvt_pk_bf16_f32 v{OF[0][t]+q}, v{d+2*q}, v{d+2*q+1}") for q in range(4)]
        return L
    vq = []
    def valu(n):
        while vq and n > 0:
            op = vq.pop(0); n -= op[2]; e(op[1])
    def redaddr():
        t = T
        L = [f"v_and_b32 v{t}, 31, v1", f"v_lshrrev_b32 v{t+1}, 3, v{t}", f"v_lshlrev_b32 v{t+1}, 13, v{t+1}",
             f"v_and_b32 v{t+2}, 7, v1", f"v_lshl_add_u32 v{t+1}, v{t+2}, 8, v{t+1}", f"v_add_u32 v{t+1}, s{sBL}, v{t+1}",
             f"v_lshrrev_b32 v{t+3}, 5, v1"]
        for q in range(4):
            L += [f"v_add_u32 v{t+4}, {2*q}, v{t+3}", f"v_xor_b32 v{t+4}, v{t+4}, v{t+2}", f"v_lshl_add_u32 v{t+8+q}, v{t+4}, 4, v{t+1}"]
        L += [f"v_lshrrev_b32 v{t}, 6, v0", f"v_lshlrev_b32 v{t}, 13, v{t}", f"v_bfe_u32 v{t+1}, v0, 3, 3",
              f"v_lshl_add_u32 v{t}, v{t+1}, 8, v{t}", f"v_lshlrev_b32 v{t+2}, 1, v{t+2}", f"v_xor_b32 v{t+2}, v{t+2}, v{t+1}",
              f"v_lshl_add_u32 v{t+4}, v{t+2}, 4, v{t}", f"v_xor_b32 v{t+5}, 16, v{t+4}"]
        return [I(x) for x in L]
    if OPT["qld"] == 0: g.vmem(FLG_LD, "flg"); g.vmem(KFL_LD, "kfl")
    if not npr:
        ensure_b(0)
        g.wait(vm=[("B", 0)])
        for f in read_b(0): f()
    for s in range(NS):
        kind, idx = step_kind(s)
        if s == OPT["qld"] and s > 0:
            g.vmem(FLG_LD, "flg"); g.vmem(KFL_LD, "kfl")
        if s - 1 >= npr: S.pages.append(BPAGE[s - 1])
        if s == OPT["pub"]:
            g.st.mark(g)
            S.q = late2; S.drain()
            g.st.mark(g)
        if s == OPT["qchk"]:
            poll(g, "flg", FLG_LD, flag_check(g, 0xf0))
            def chk():
                e(f"v_cmp_eq_u64 vcc, v[{vKFL}:{vKFL+1}], {sr(sNON,2)}")
                e(f"v_cmp_eq_u64 {sr(mB0,2)}, v[{vKFL+2}:{vKFL+3}], {sr(sNON,2)}")
                e(f"s_and_b64 vcc, vcc, {sr(mB0,2)}")
                e("s_cmp_eq_u64 vcc, -1")
            poll(g, "kfl", KFL_LD, chk)
            g.st.mark(g)
            for h in range(8):
                for t in range(2):
                    S.aq.append((0, 0, ([f"s_xor_b32 s{sT3}, s{sKEY}, {h}", f"s_mul_i32 s{sT3}, s{sT3}, {KVH}", f"s_add_u32 s{sT3}, s{sT3}, s{sKV}"] if t == 0 else [],
                                 f"buffer_load_dwordx4 {vr(KVR[h] + 4*t)}, v{vXD+2 if t else vKVO}, {sr(SWS)}, s{sT3} offen offset:{32*t} sc1", ("KV", 8 + h), t == 0)))
                S.aq += [(0, 0, it_a(8 + h, t)) for t in range(2)]
                if h == OPT["h2smp"]: S.aq.append((0, 0, ([], FLG_LD, ("flg", 99), False)))
        if s == 8:
            ensure(S.aq, 8 + OPT["olead"])
            g.st.mark(g)
            g.wait(vm=[("KV", 8), ("A", 8)])
            for op in Cops(0): e(op[1])
            e(Nm(0, 0)); e(Nm(0, 1))
            g.wait(vm=[("KV", 9)])
            for op in Cops(1) + Vops(0, 0): e(op[1])
            vq += [op + ("v1",) for op in Vops(0, 1)]
            g.st.mark(g)
        if s == OPT["h2chk"]:
            ensure(S.aq, 99)
            while S.cur is not None: S.vm(True)
            poll(g, [("flg", 99)], FLG_LD, flag_check(g, 0xff00))
            g.st.mark(g)
            S.aq += [(0, 0, it_a(s2, t)) for s2 in range(16, 30) for t in range(2)]
            for _ in range(OPT["h2n"]): S.vm(True)
        rb = []
        if npr <= s + 1 < NS:
            ensure_b(s + 1)
            rb = read_b(s + 1)
        b = BF[s % 3]
        def Mm(ct, t):
            acc = vr(ACC2 + 32 * ct + 16 * t, 16)
            act = ar(areg(s, t)) if kind == "h" else vr(OF[0][t])
            bo = ar(breg(s, ct)) if s < npr else vr(b+4*ct)
            return f"v_mfma_f32_32x32x16_bf16 {acc}, {bo}, {act}, {'0' if s == 0 else acc}"
        frc = s >= 16 or (OPT["qchk"] <= s < 8)
        if kind == "h":
            ensure(S.aq, s)
            g.wait(vm=[("A", s), ("B", s + 1)], lg=[("Bf", s)])
            if s == 22: vq += redaddr()
            if s == 27:
                g.wait(vm="xr")
                for tt in range(2):
                    for q in range(4):
                        vq.append(I(f"v_lshlrev_b32 v{92+8*tt+2*q}, 16, v{84+4*tt+q}"))
                        vq.append(I(f"v_and_b32 v{92+8*tt+2*q+1}, 0xffff0000, v{84+4*tt+q}"))
            for mi, (ct, t) in enumerate(((0, 0), (1, 0), (0, 1), (1, 1))):
                e(Mm(ct, t)); S.adv(32)
                sl = 6
                if mi < 2 and rb: rb.pop(0)(); rb.pop(0)(); sl -= 2
                sl -= S.vm(frc)
                valu(min(4, sl))
        else:
            h = idx
            nxt = h + 1 < 8
            if h + 2 < 8: ensure(S.aq, s + 2)
            g.wait(vm=[("A", s + 1), ("B", s + 1)] if nxt else [("B", s + 1)], lg=[("Bf", s)])
            seq = ([("N", 0)] if nxt else []) + [("M", 0, 0), ("M", 1, 0)] + ([("N", 1)] if nxt else []) + [("M", 0, 1), ("M", 1, 1)]
            for pi, pp in enumerate(seq):
                if pp == ("N", 1) or (pp == ("M", 0, 1) and not nxt):
                    while vq and vq[0][3:] == ("v1",): e(vq.pop(0)[1])
                e(Nm(h + 1, pp[1]) if pp[0] == "N" else Mm(pp[1], pp[2])); S.adv(32)
                if pp == ("M", 1, 0) and nxt: vq += [op + ("v0",) for op in Vops(h + 1, 0)]
                if pp == ("M", 1, 0) and h + 2 < 8:
                    g.wait(vm=[("KV", s + 2)])
                    vq += [op + ("v0",) for op in Cops(h + 2)]
                if pp == ("M", 1, 1) and nxt:
                    while vq and vq[0][3:] == ("v0",) and len(vq) > 6: e(vq.pop(0)[1])
                sl = 6
                if pi < 2 and rb: rb.pop(0)(); rb.pop(0)(); sl -= 2
                if pi >= 6 - OPT["ovm"]: sl -= S.vm(True)
                valu(OPT["ov"])
            while vq and vq[0][3:] == ("v0",): e(vq.pop(0)[1])
            if nxt: vq += [op + ("v1",) for op in Vops(h + 1, 1)]
        if s == 20:
            g.vmem(f"buffer_load_dwordx4 {vr(84)}, v{vXO}, {sr(SX)}, s{sXR} offen", "xr")
            g.vmem(f"buffer_load_dwordx4 {vr(88)}, v{vXO}, {sr(SX)}, s{sXR+1} offen", "xr")
        if s in (15, 29): g.st.mark(g)
    while vq: e(vq.pop(0)[1])
    assert not S.aq and not S.bq and S.bnext == 30
    t = T
    for ct in range(2):
        for tt in range(2):
            for q in range(4):
                a = ACC2 + 32 * ct + 16 * tt + 4 * q
                g.ds(f"ds_write_b128 v{t+8+q}, {vr(a)} offset:{tt * 4 * PAGE + ct * 128}", "rw")
    g.wait(lg_all=True)
    e("s_barrier")
    R = ACC2
    for tt in range(2):
        for w in range(4):
            for k in range(2):
                d = R + tt * 32 + w * 8 + k * 4
                g.ds(f"ds_read_b128 {vr(d)}, v{t+4+k} offset:{tt * 4 * PAGE + w * 2048}", ("rr", tt))
    for tt in range(2):
        g.wait(lg=[("rr", tt)])
        d = R + tt * 32
        for q in range(4):
            e(f"v_pk_add_f32 v[{d+2*q}:{d+2*q+1}], v[{d+2*q}:{d+2*q+1}], v[{d+8+2*q}:{d+8+2*q+1}]")
            e(f"v_pk_add_f32 v[{d+16+2*q}:{d+16+2*q+1}], v[{d+16+2*q}:{d+16+2*q+1}], v[{d+24+2*q}:{d+24+2*q+1}]")
        for q in range(4):
            e(f"v_pk_add_f32 v[{d+2*q}:{d+2*q+1}], v[{d+2*q}:{d+2*q+1}], v[{92+8*tt+2*q}:{92+8*tt+2*q+1}]")
        for q in range(4):
            e(f"v_pk_add_f32 v[{d+2*q}:{d+2*q+1}], v[{d+2*q}:{d+2*q+1}], v[{d+16+2*q}:{d+16+2*q+1}]")
        for q in range(4):
            e(f"v_cvt_pk_bf16_f32 v{d+8+q}, v{d+2*q}, v{d+2*q+1}")
        g.vmem(f"buffer_store_dwordx4 {vr(d+8)}, v{vXO}, {sr(SOUT)}, s{sXR+tt} offen" + ["", " sc1", " nt", " sc0 sc1"][OPT["osc"]], "o")
    stamp_flush(g)
    e("s_endpgm")

def stamp_flush(g):
    e = g.e
    if STAMP:
        g.st.mark(g)
        e("s_waitcnt vmcnt(0)")
        g.st.mark(g)
        e(f"v_readlane_b32 s{sT0}, v255, 63")
        e(f"s_lshl_b32 s{sT0}, s{sT0}, 2")
        e(f"s_add_u32 s{sT0}, s{sT0}, s{sW}")
        e(f"s_lshl_b32 s{sT0}, s{sT0}, 8")
        e(f"s_add_u32 s{sT0}, s{sT0}, {STB}")
        e("v_lshlrev_b32 v254, 2, v1")
        e(f"buffer_store_dword v255, v254, {sr(SWS)}, s{sT0} offen")

def dpf(g):
    e = g.e
    e("v_lshlrev_b32 v252, 7, v1")
    if OPT["s2f"]:
        e(f"s_lshl_b32 s{sT2}, s{sRB2}, 3")
        e(f"s_add_u32 s{sT2}, s{sT2}, s{sCB}")
    def touch(wave, nbytes, sd, cond_typ=None):
        nl = nbytes // 128
        e(f"s_mul_i32 s{sT1}, s{sT2 if OPT['s2f'] else 2}, {nbytes}")
        e(f"s_cmp_eq_u32 s{sW}, {wave}")
        e(f"s_cselect_b32 s{sT1}, s{sT1}, {OOB}")
        m = (1 << nl) - 1
        e("s_mov_b32 exec_lo, 0x%x" % (m & 0xffffffff)); e("s_mov_b32 exec_hi, 0x%x" % (m >> 32))
        g.vmem(f"buffer_load_dword v253, v252, {sr(sd)}, s{sT1} offen", "pf")
    touch(0, 5504, SW2); touch(1, 2048, SWO)
    if OPT["dpf"] >= 2:
        touch(2, 6144, SWP); touch(3, 6144, SWS2)
    e("s_mov_b64 exec, -1")

def it_touch():
    L = []
    for wave, nbytes, sd in ((0, 5504, SW2), (1, 2048, SWO)):
        m = (1 << (nbytes // 128)) - 1
        prep = [f"s_lshl_b32 s{sT3}, s{sRB2}, 3", f"s_add_u32 s{sT3}, s{sT3}, s{sCB}", f"s_mul_i32 s{sT3}, s{sT3}, {nbytes}",
                f"s_cmp_eq_u32 s{sW}, {wave}", f"s_cselect_b32 s{sT3}, s{sT3}, {OOB}", "v_lshlrev_b32 v252, 7, v1",
                "s_mov_b32 exec_lo, 0x%x" % (m & 0xffffffff), "s_mov_b32 exec_hi, 0x%x" % (m >> 32)]
        L.append((prep, f"buffer_load_dword v253, v252, {sr(sd)}, s{sT3} offen\ns_mov_b64 exec, -1", ("pf", 50), False))
    return L

def gen():
    g = Gen(); g.st = Stamps(); e = g.e
    prologue(g)
    g.st.mark(g)
    items = []
    for p in range(4): items += it_x(p) + it_w(0, p)
    pre = OPT["pre"]
    for it in items[:min(12, pre)]: emit_item(g, it)
    setup1(g)
    if OPT["dpf"] and OPT["dpos"] == 0: dpf(g)
    if OPT["tp"]:
        sh = {1: 20, 2: 18}[OPT["tp"]]
        e(f"v_lshlrev_b32 v252, {sh}, v1")
        e(f"s_cmp_eq_u32 s{sW}, 3")
        e(f"s_cselect_b32 s{sT1}, 0, {OOB}")
        e("s_mov_b64 exec, 0x%x" % ((1 << (12 << (20 - sh))) - 1) if sh == 20 else "s_mov_b32 exec_hi, 0xffff")
        g.vmem(f"buffer_load_dword v253, v252, {sr(SWS)}, s{sT1} offen", "pf")
        g.vmem(f"buffer_load_dword v253, v252, {sr(SOUT)}, s{sT1} offen", "pf")
        g.vmem(f"buffer_load_dword v253, v252, {sr(SDBG)}, s{sT1} offen", "pf")
        g.vmem(f"buffer_load_dword v253, v252, {sr(SWS2)}, s{sT1} offen", "pf")
        g.vmem(f"buffer_load_dword v253, v252, {sr(SW2)}, s{sT1} offen", "pf")
        g.vmem(f"buffer_load_dword v253, v252, {sr(SWO)}, s{sT1} offen", "pf")
        e("s_mov_b64 exec, -1")
    e(f"s_or_b32 s{sT1}, s{sRB}, s{sTYP}")
    e(f"s_or_b32 s{sT1}, s{sT1}, s{sW}")
    e(f"s_cmp_eq_u32 s{sT1}, 0")
    e(f"s_cselect_b32 s{sZ}, 1, 0")
    e("s_cbranch_scc0 L_NOZ")
    e(f"s_memrealtime {sr(sNON,2)}")
    e(f"v_lshlrev_b32 v{vL16}, 4, v1")
    for r in range(4): e(f"v_mov_b32 v{T+r}, 0")
    e(f"s_mul_i32 s{sT1}, s{sJ}, 4352")
    e(f"s_add_u32 s{sT1}, s{sT1}, {KVB}")
    for i in range(4):
        g.vmem(f"buffer_store_dwordx4 {vr(T)}, v{vL16}, {sr(SWS)}, s{sT1} offen offset:{1024*i} sc1", counted=False)
    e(f"s_add_u32 s{sT1}, s{sT1}, 4096")
    e("s_mov_b64 exec, 0xffff")
    g.vmem(f"buffer_store_dwordx4 {vr(T)}, v{vL16}, {sr(SWS)}, s{sT1} offen sc1", counted=False)
    e("s_mov_b64 exec, 1")
    e("s_waitcnt lgkmcnt(0)")
    e(f"s_or_b32 s{sNON}, s{sNON}, 1")
    e(f"v_mov_b32 v{T+4}, s{sNON}")
    e(f"v_mov_b32 v{T+5}, s{sNON+1}")
    e(f"s_cmp_eq_u32 s{sJ}, 0")
    e(f"s_cselect_b32 s{sT1}, 64, {OOB}")
    g.vmem(f"buffer_store_dwordx2 v[{T+4}:{T+5}], v{T}, {sr(SDBG)}, s{sT1} offen sc1", counted=False)
    e("s_mov_b64 exec, -1")
    e("s_nop 1")
    g.label("L_NOZ")
    if OPT["s2f"]:
        setup2(g)
    for it in items[12:pre]: emit_item(g, it)
    if OPT["dpf"] and OPT["dpos"] == 1: dpf(g)
    g.cur_open = items[pre - 1][3]
    assert not g.cur_open
    g.wq0 = items[pre:]
    if not OPT["s2f"]: setup2(g)
    g.st.mark(g)
    g.wait(vm=[("W", 0), ("X", 0)])
    e("s_barrier")
    g.st.mark(g)
    read_x(g, 0, 0); read_w(g, 0); read_x(g, 0, 1); read_w(g, 1)
    g.wait(lg=[("Wf", 0)])
    e(f"s_cmp_eq_u32 s{sTYP}, 0")
    e("s_cbranch_scc0 L_TYPEB")
    st = (list(g.vm), list(g.lg), g.st.n)
    body(g, 0)
    g.label("L_TYPEB")
    g.vm, g.lg, g.st.n = list(st[0]), list(st[1]), st[2]; g.hist = []
    body(g, 1)
    g.label("L_END")
    e("s_endpgm")
    return g

def kd(name, vgpr, sgpr, acc):
    return f""".amdhsa_kernel {name}
  .amdhsa_next_free_vgpr {vgpr}
  .amdhsa_next_free_sgpr {sgpr}
  .amdhsa_accum_offset {acc}
  .amdhsa_group_segment_fixed_size 0
  .amdhsa_kernarg_size 72
  .amdhsa_user_sgpr_count 2
  .amdhsa_user_sgpr_kernarg_segment_ptr 1
  .amdhsa_system_sgpr_workgroup_id_x 1
.end_amdhsa_kernel
"""

def main(out):
    hdr = open("parallel_sum__linear_attn_block__dense_activation_relu__prompt.s.ref").read().split("; Override")[0]
    g = gen()
    s = hdr
    s += "; @launch grid=(256,1,1) block=(256,1,1) lds=163840\n"
    s += '.amdgcn_target "amdgcn-amd-amdhsa--gfx950"\n.text\n'
    s += f".globl {NAME}\n.p2align 8\n.type {NAME},@function\n{NAME}:\n" + g.text()
    s += '.section .rodata,"a"\n.p2align 6\n' + kd(NAME, 512, 102, 256)
    open(out, "w").write(s)
    print("nops", g.nops, "lines", len(g.out), "stamps", g.st.n)

if __name__ == "__main__":
    for a in sys.argv[2:]:
        if a == "stamp": STAMP = 1
        elif a == "stamp2": STAMP = 2
        elif a == "v": VERB = True
        else:
            k, v = a.split("="); OPT[k] = int(v)
    main(sys.argv[1])
```

```python
import sys, struct
sys.path.insert(0, "dev")
from asmgen import Gen

def f2u(x): return struct.unpack("<I", struct.pack("<f", x))[0]
NAME = "parallel_sum__linear_attn_block__dense_activation_relu__prompt_kernel"

HB, QB, KVB, FLB, KFB = 0, 0x800000, 0xA00000, 0xB00000, 0xB10000
HRT = 131072
KVH = 1088
WS_BYTES = 268435456
OOB = 0x40000000
PAGE = 8192
XPAGE = [0, 2, 4, 6, 18]
MISC = 16 * PAGE
M_CS, M_RM, M_RR, M_KV = MISC, MISC + 512, MISC + 1024, MISC + 2048
STAMP = 0
VERB = False
STB = 0x8000000
OPT = dict(rot=2, pre=16, spin=20000, fdelay=14, adelay=16, period=66, debt=1, w1w=15, qrate=4, krate=1, h2n=0, hpoll=19, hlead=2, cpf=2, dpf=1, fs=5, pub=7, qchk=8, olead=4, h2smp=4, ovm=4, ov=6, h2chk=11, slp=2, qld=4, p2=64, dbg=0, lin=0, vm2=8, pc2=50, osc=0, bl=1, xr=1, pr=1, hb=1, hdelay=8, dpos=1, wp=7, s2f=1, dk=7, tp=0)

def vr(a, n=4): return f"v[{a}:{a+n-1}]"
def ar(a, n=4): return f"a[{a}:{a+n-1}]"
def sr(a, n=4): return f"s[{a}:{a+n-1}]"

SX, SWP, SWS2, SWS, SDBG, SW2, SWO, SOUT = 24, 28, 32, 36, 40, 44, 48, 52
sRB, sTYP, sJ, sW, sM, sN, sRB2, sCB = 56, 57, 58, 59, 60, 61, 62, 63
sXO, sPO, sSO = 64, 72, 80
sT0, sT1, sT2 = 88, 89, 90
sCOL = [4, 5, 6]
sXL, sBL, sT3 = 7, 8, 9
sRT = [10, 11]
sZ, sEPS, sLOG = 12, 13, 14
sK14 = 12
sHAK, sKEY = 64, 65
mB4, mH, mB0, mB1 = 16, 18, 20, 22
sNON = 92
sHST = [94, 95, 96]
sB2, sBO, sHA, sHA2, sPQ = 97, 98, 99, 100, 101
sKV, sFL, sKF, sXR = 91, 2, 3, 0

vXD, vWP, vWS, vBD = 2, 6, 8, 10
vXA = [12, 16]
vWA = 20
vCSW, vCSR, vL16, vSTO, vSTX, vSKIP = 26, 27, 28, 29, 30, 31
vRR, RL, vCSP, vTMP, vCSV, vCTLO = 32, 34, 36, 37, 38, 39
MO, S1, Q0, Q1, CS = 40, 44, 48, 52, 56
WF = [60, 64, 68]
AAUG, BAUG = [72, 76], 80
ACCS = [[84, 100], [116, 132]]
RROW = [148, 164]
PK, VF, T = 180, 196, 212
ONES = S1
RLL, EPSR = 52, 54
vFLO, vCTL, vZERO, vFLG, vNON = 244, 245, 246, 248, 250
vKFL = 48
vBT, vKVO, vXO = 12, 18, 19
ACC2, BF, ND, OF = 116, [56, 64, 72], [84, 100], [[196, 200], [204, 208]]
KVR = [180, 188, 212, 220, 228, 236, 40, 20]
def X(t, p, u): return 128 * t + 16 * p + 4 * u

class Stamps:
    def __init__(self): self.n = 0
    def mark2(self, g):
        if STAMP != 2: return
        g.e("s_memtime vcc"); g.e("s_waitcnt lgkmcnt(0)"); g.lg = []
        g.e("v_writelane_b32 v255, vcc_lo, %d" % self.n); self.n += 1
    def mark(self, g):
        if STAMP == 3:
            g.e("s_memrealtime vcc"); g.e("s_waitcnt lgkmcnt(0)"); g.lg = []
            if self.n == 0: g.e("s_not_b32 vcc_lo, vcc_lo")
            m = {0: 8, 3: 9, 4: 10, 5: 11, 6: 12, 12: 13, 15: 14, 17: 15}
            if self.n in m: g.e("v_writelane_b32 v255, vcc_lo, %d" % m[self.n])
            self.n += 1
            return
        if STAMP != 1: return
        g.e("s_memrealtime vcc"); g.e("s_waitcnt lgkmcnt(0)"); g.lg = []
        g.e("v_writelane_b32 v255, vcc_lo, %d" % self.n)
        g.e("s_memtime vcc"); g.e("s_waitcnt lgkmcnt(0)")
        g.e("v_writelane_b32 v255, vcc_lo, %d" % (self.n + 30)); self.n += 1

def srd(g, d, lo, nbytes):
    g.e(f"s_mov_b32 s{d}, s{lo}")
    g.e(f"s_and_b32 s{d+1}, s{lo+1}, 0xffff")
    g.e(f"s_mov_b32 s{d+2}, {nbytes}")
    g.e(f"s_mov_b32 s{d+3}, 0x00020000")

WORDER = [8, 9, 16, 17, 10, 11, 12, 13, 14, 15, 18, 19, 20, 21, 22, 23]
def page_plan():
    free = []
    wpage = {}; wav = {}
    for g in range(8): wpage[g] = 8 + g; wav[g] = -1
    ev = []
    xr = {3: 4, 4: 5, 0: 6, 1: 7, 2: 8}
    for sl, b in xr.items(): ev += [(b, XPAGE[sl]), (b, XPAGE[sl] + 1)]
    for g in range(8): ev.append((g + 1, wpage[g]))
    for g in WORDER:
        ev.sort(); b, pg = ev.pop(0)
        wpage[g] = pg; wav[g] = b
        ev.append((g + 1, pg))
    ev += [(24, 16), (24, 17)]
    ev.sort()
    return wpage, wav, ev
WPAGE, WAV, BEV = page_plan()
BPAGE = {}

def uses_primary(typ, c): return c == 0 or (typ == 0 and c == 1) or (typ == 1 and c == 2)
def step_kind(s):
    if s < 8: return ("h", s)
    if s < 16: return ("o", s - 8)
    return ("h", s - 8)
def aslot(k):
    p, r = k >> 3, k & 7
    return X(r >> 2, p, r & 3)
def aslot_of(s, t):
    if not OPT["pr"]: return 2 * s + t
    if s < 8: return 2 * s + t
    if s < 24: return 32 + 2 * (s - 8) + t
    return 2 * (s - 24) + t
def areg(s, t): return aslot(aslot_of(s, t))
def breg(s, ct): return aslot(16 + 2 * s + ct)

def it_x(p):
    L = []
    for i in range(4):
        prep = [f"s_add_u32 m0, s{sXL}, {XPAGE[p % 5] * PAGE}"] if i == 0 else []
        L.append((prep, f"buffer_load_dwordx4 v{vXD+i}, {sr(SX)}, s{sXO+p} offen offset:{1024*i} lds", ("X", p), i < 3))
    return L
def it_w(typ, gi):
    c, p = gi >> 3, gi & 7
    q = uses_primary(typ, c)
    s, v, tb = (SWP, vWP, sPO) if q else (SWS2, vWS, sSO)
    prep = [f"s_add_u32 m0, s{sBL}, {WPAGE[gi] * PAGE}", f"s_add_u32 s{sT0}, s{tb+p}, s{sCOL[c]}"]
    if typ == 1 and gi == 16:
        prep += [f"v_or_b32 v{vWP}, v{vWP}, v{vSKIP}", f"v_or_b32 v{vWP+1}, v{vWP+1}, v{vSKIP}"]
    return [(prep, f"buffer_load_dwordx4 v{v}, {sr(s)}, s{sT0} offen lds", ("W", gi), True),
            ([], f"buffer_load_dwordx4 v{v+1}, {sr(s)}, s{sT0} offen offset:1024 lds", ("W", gi), False)]
def it_b(s):
    k, idx = step_kind(s)
    sd, base = (SW2, sB2) if k == "h" else (SWO, sBO)
    if OPT["xr"] and idx < 16:
        prep = [f"s_add_u32 m0, s{sBL}, {BPAGE[s] * PAGE}", f"s_xor_b32 s{sT0}, s{sK14}, {idx * 16384}", f"s_add_u32 s{sT0}, s{sT0}, s{base}"]
    else:
        prep = [f"s_add_u32 m0, s{sBL}, {BPAGE[s] * PAGE}", f"s_add_u32 s{sT0}, s{base}, {idx * 16384}"]
    return [(prep, f"buffer_load_dwordx4 v{vBD}, {sr(sd)}, s{sT0} offen lds", ("B", s), True),
            ([], f"buffer_load_dwordx4 v{vBD+1}, {sr(sd)}, s{sT0} offen offset:1024 lds", ("B", s), False)]
def it_a(s, t):
    k, idx = step_kind(s)
    if k == "h" and idx < 16: prep = [f"s_xor_b32 s{sT3}, s{sHAK}, {idx * 1024 + t * HRT}"]
    elif k == "h": prep = [f"s_add_u32 s{sT3}, s{sHA2 if idx >= 20 else sHA}, {idx * 1024 + t * HRT}"]
    else: prep = [f"s_xor_b32 s{sT3}, s{sPQ}, {idx * 1024 + t * 32768}"]
    return (prep, f"buffer_load_dwordx4 {ar(areg(s, t))}, v{vL16}, {sr(SWS)}, s{sT3} offen sc1", ("A", s), False)
def emit_item(g, it):
    for x in it[0]: g.e(x)
    g.vmem(it[1], it[2])

def prologue(g):
    e = g.e
    e("s_cmp_ge_u32 s2, 256")
    e("s_cbranch_scc1 L_END")
    g.st.mark(g)
    e("s_load_dwordx16 s[4:19], s[0:1], 0")
    e("s_load_dwordx2 s[20:21], s[0:1], 64")
    if OPT["cpf"] == 1:
        e("s_getpc_b64 s[22:23]")
        e("v_lshlrev_b32 v252, 7, v0")
        g.vmem("global_load_dword v253, v252, s[22:23]", "pf")
    if OPT["cpf"] == 2:
        e("s_getpc_b64 s[22:23]")
        e("s_bfe_u32 s24, s2, 0x30003")
        e("s_lshl_b32 s24, s24, 12")
        e("v_lshrrev_b32 v252, 3, v0")
        e("v_lshl_add_u32 v252, v252, 7, s24")
        g.vmem("global_load_dword v253, v252, s[22:23]", "pf")
    e("v_and_b32 v1, 63, v0")
    e("v_lshrrev_b32 v2, 6, v0")
    if OPT["lin"]: e(f"s_lshr_b32 s{sT0}, s2, 5")
    else: e(f"s_and_b32 s{sT0}, s2, 7")
    e(f"v_readfirstlane_b32 s{sW}, v2")
    if OPT["lin"]: e(f"s_and_b32 s{sT1}, s2, 31")
    else: e(f"s_lshr_b32 s{sT1}, s2, 3")
    e(f"s_and_b32 s{sRB}, s{sT0}, 3")
    e(f"s_lshl_b32 s{sRB}, s{sRB}, 2")
    e(f"s_lshr_b32 s{sT2}, s{sT1}, 3")
    e(f"s_add_u32 s{sRB}, s{sRB}, s{sT2}")
    e(f"s_lshl_b32 s{sRB2}, s{sT0}, 2")
    e(f"s_add_u32 s{sRB2}, s{sRB2}, s{sT2}")
    e(f"s_and_b32 s{sCB}, s{sT1}, 7")
    e(f"s_and_b32 s{sTYP}, s{sCB}, 1")
    e(f"s_lshr_b32 s{sJ}, s{sT0}, 2")
    e(f"s_lshl_b32 s{sJ}, s{sJ}, 2")
    e(f"s_lshr_b32 s{sT0}, s{sCB}, 1")
    e(f"s_add_u32 s{sJ}, s{sJ}, s{sT0}")
    if OPT["rot"] == 1: e(f"s_add_u32 s91, s{sCB}, s{sT2}")
    elif OPT["rot"] == 2: e(f"s_lshl_b32 s91, s{sT2}, 1"); e(f"s_add_u32 s91, s91, s{sCB}")
    elif OPT["rot"] in (3, 4, 5):
        e(f"s_lshr_b32 s91, s{sRB}, 2")
        e("s_lshl_b32 s91, s91, 1")
        e(f"s_and_b32 s92, s{sJ}, 4")
        e("s_add_u32 s91, s91, s92")
        if OPT["rot"] == 4:
            e(f"s_add_u32 s92, s{sCB}, s{sT2}")
            e("s_and_b32 s92, s92, 1")
            e("s_add_u32 s91, s91, s92")
        if OPT["rot"] == 5:
            e(f"s_add_u32 s92, s{sCB}, s{sT2}")
            e("s_and_b32 s92, s92, 3")
            e("s_add_u32 s91, s91, s92")
    else: e("s_mov_b32 s91, 0")
    e("v_lshrrev_b32 v12, 3, v1")
    e("v_and_b32 v13, 7, v1")
    e("v_lshrrev_b32 v14, 1, v12")
    e("v_xor_b32 v15, v13, v14")
    e("v_lshlrev_b32 v15, 4, v15")
    e(f"v_lshl_add_u32 v{vXD}, v12, 10, v15")
    e(f"v_xor_b32 v{vXD+1}, 64, v{vXD}")
    e(f"v_add_u32 v{vXD+2}, {2*7168}, v{vXD}")
    e(f"v_add_u32 v{vXD+3}, {3*7168}, v{vXD+1}")
    e(f"v_add_u32 v{vXD+1}, 7168, v{vXD+1}")
    e("v_and_b32 v14, 1, v14")
    e("v_lshlrev_b32 v14, 2, v14")
    e("v_xor_b32 v15, v13, v14")
    e("v_lshlrev_b32 v15, 4, v15")
    e("s_movk_i32 s97, 2752")
    e("s_movk_i32 s96, 3072")
    e(f"s_cmp_eq_u32 s{sTYP}, 0")
    e("s_cselect_b32 s98, s96, s97")
    e("s_cselect_b32 s99, s97, s96")
    e(f"v_mad_u32_u24 v{vWP}, s98, v12, v15")
    e("s_lshl_b32 s100, s98, 3")
    e("s_sub_u32 s100, s100, 1024")
    e(f"v_add_u32 v{vWP+1}, s100, v{vWP}")
    e(f"s_lshl_b32 s92, s{sRB}, 7")
    e(f"s_lshl_b32 s{sT0}, s{sW}, 5")
    e(f"s_add_u32 s92, s92, s{sT0}")
    e("s_lshl_b32 s92, s92, 10")
    e(f"s_lshl_b32 s93, s{sW}, 4")
    def tab(p):
        e(f"s_add_u32 s{sT0}, s91, {p}")
        e(f"s_and_b32 s{sT0}, s{sT0}, 7")
        e(f"s_lshl_b32 s{sXO+p}, s{sT0}, 7")
        e(f"s_add_u32 s{sXO+p}, s{sXO+p}, s92")
        e(f"s_lshl_b32 s{sT0}, s{sT0}, 6")
        e(f"s_add_u32 s{sT0}, s{sT0}, s93")
        e(f"s_mul_i32 s{sPO+p}, s{sT0}, s98")
        e(f"s_mul_i32 s{sSO+p}, s{sT0}, s99")
    g.tab = tab
    for p in range(3): tab(p)
    e(f"s_lshl_b32 s95, s{sJ}, 7")
    e(f"s_add_u32 s95, s95, 1024")
    e(f"s_lshr_b32 s{sT0}, s{sJ}, 1")
    e(f"s_mul_i32 s{sT0}, s{sT0}, 704")
    e(f"s_and_b32 s{sT1}, s{sJ}, 1")
    e(f"s_lshl_b32 s{sT1}, s{sT1}, 7")
    e(f"s_add_u32 s{sT0}, s{sT0}, s{sT1}")
    e(f"s_lshl_b32 s{SWP+2}, s98, 9")
    e(f"s_lshl_b32 s{SWS2+2}, s99, 9")
    e(f"s_mov_b32 s{SWP+3}, 0x00020000")
    e(f"s_mov_b32 s{SWS2+3}, 0x00020000")
    e(f"s_mov_b32 s{SX+2}, {2048*1024}")
    e(f"s_mov_b32 s{SX+3}, 0x00020000")
    e(f"s_cmp_eq_u32 s{sTYP}, 0")
    e(f"s_cselect_b32 s95, s95, s{sT0}")
    e("s_waitcnt lgkmcnt(0)")
    e(f"s_cselect_b32 s{SWP}, s6, s12")
    e(f"s_cselect_b32 s{SWP+1}, s7, s13")
    e(f"s_cselect_b32 s{SWS2}, s12, s6")
    e(f"s_cselect_b32 s{SWS2+1}, s13, s7")
    e(f"s_mov_b32 s{SX}, s4")
    e(f"s_and_b32 s{SX+1}, s5, 0xffff")
    e(f"s_and_b32 s{SWP+1}, s{SWP+1}, 0xffff")
    e(f"s_mov_b32 s{SWO}, s8")
    e(f"s_and_b32 s{SWO+1}, s9, 0xffff")
    e(f"s_mov_b32 s{sCOL[0]}, s95")
    e(f"s_lshl_b32 s{sXL}, s{sW}, 12")
    e(f"s_lshl_b32 s{sBL}, s{sW}, 11")

def setup1(g):
    e = g.e
    e(f"s_and_b32 s{SWS2+1}, s{SWS2+1}, 0xffff")
    e(f"s_mov_b32 s{SWO+2}, {512*1024}")
    e(f"s_mov_b32 s{SWO+3}, 0x00020000")
    srd(g, SWS, 20, WS_BYTES)
    srd(g, SDBG, 18, 256)
    srd(g, SW2, 14, 1376 * 1024)
    srd(g, SOUT, 16, 2048 * 1024)
    e(f"s_lshr_b32 s{sM}, s{sW}, 1")
    e(f"s_and_b32 s{sN}, s{sW}, 1")
    for p in range(3, 8): g.tab(p)

def setup2(g):
    e = g.e
    t = T
    e(f"v_mad_u32_u24 v{vWS}, s99, v12, v15")
    e("s_lshl_b32 s100, s99, 3")
    e("s_sub_u32 s100, s100, 1024")
    e(f"v_add_u32 v{vWS+1}, s100, v{vWS}")
    e(f"v_lshl_add_u32 v{vBD}, v12, 10, v15")
    e(f"v_add_u32 v{vBD+1}, 7168, v{vBD}")
    e(f"s_and_b32 s{sT0}, s{sJ}, 1")
    e(f"s_cmp_eq_u32 s{sJ}, 6")
    e(f"s_cselect_b32 s{sT0}, 1, s{sT0}")
    e(f"s_and_b32 s101, s{sT0}, s{sTYP}")
    e(f"v_bfe_u32 v{vSKIP}, v15, 6, 1")
    e(f"v_and_b32 v{vSKIP}, s101, v{vSKIP}")
    e(f"v_lshlrev_b32 v{vSKIP}, 30, v{vSKIP}")
    e(f"v_and_b32 v{t}, 31, v1")
    e(f"v_lshrrev_b32 v{t+1}, 5, v1")
    e(f"v_bfe_u32 v{t+2}, v1, 1, 3")
    e(f"s_lshl_b32 s{sT1}, s{sM}, 6")
    e(f"s_lshl_b32 s{sT0}, s{sN}, 5")
    e(f"s_add_u32 s{sT1}, s{sT1}, s{sT0}")
    e(f"v_add_u32 v{t+3}, s{sT1}, v{t}")
    e(f"v_lshlrev_b32 v{t+4}, 7, v{t+3}")
    for u in range(4):
        e(f"s_xor_b32 s{sT0}, s{sM}, {u}")
        e(f"s_lshl_b32 s{sT0}, s{sT0}, 1")
        e(f"v_add_u32 v{t+5}, s{sT0}, v{t+1}")
        e(f"v_xor_b32 v{t+5}, v{t+5}, v{t+2}")
        e(f"v_lshl_add_u32 v{vXA[0]+u}, v{t+5}, 4, v{t+4}")
        e(f"v_xor_b32 v{vXA[1]+u}, 0x1000, v{vXA[0]+u}")
    e(f"v_lshlrev_b32 v{vSTO}, 2, v{t+3}")
    e(f"v_add_u32 v{vSTO}, {M_RM}, v{vSTO}")
    e(f"v_xor_b32 v{vSTX}, 0x80, v{vSTO}")
    e(f"v_bfe_u32 v{t+5}, v1, 2, 2")
    e(f"v_and_b32 v{t+6}, 3, v1")
    e(f"v_bfe_u32 v{t+7}, v1, 4, 1")
    e(f"v_lshrrev_b32 v{t+8}, 1, v{t+6}")
    e(f"v_lshl_add_u32 v{t+8}, v{t+7}, 1, v{t+8}")
    e(f"v_lshrrev_b32 v{t+9}, 1, v{t+5}")
    e(f"v_lshlrev_b32 v{t+9}, 2, v{t+9}")
    e(f"v_xor_b32 v{t+8}, v{t+8}, v{t+9}")
    e(f"v_lshlrev_b32 v{t+8}, 4, v{t+8}")
    e(f"v_and_b32 v{t+9}, 1, v{t+6}")
    e(f"v_lshl_add_u32 v{t+8}, v{t+9}, 3, v{t+8}")
    e(f"v_lshl_add_u32 v{t+8}, v{t+5}, 7, v{t+8}")
    e(f"v_lshl_add_u32 v247, v{t+1}, 9, v{t+8}")
    e(f"v_lshl_add_u32 v{t+9}, v{t+1}, 10, v{t+8}")
    e(f"s_lshl_b32 s{sT0}, s{sN}, 6")
    e(f"v_xor_b32 v{t+9}, s{sT0}, v{t+9}")
    e(f"s_lshl_b32 s{sT0}, s{sM}, 11")
    e(f"v_add_u32 v{vWA}, s{sT0}, v{t+9}")
    e(f"v_subrev_u32 v{vWA+1}, s{sT0}, v{t+9}")
    e(f"v_add_u32 v{vWA+1}, 2048, v{vWA+1}")
    for r in (1, 2):
        e(f"v_add_u32 v{vWA+2*r}, {65536*r}, v{vWA}")
        e(f"v_add_u32 v{vWA+2*r+1}, {65536*r}, v{vWA+1}")
    e(f"v_lshlrev_b32 v{vL16}, 4, v1")
    e(f"v_cmp_eq_u32 {sr(mB4,2)}, 1, v{t+7}")
    e(f"v_cmp_eq_u32 {sr(mH,2)}, 1, v{t+1}")
    e(f"v_and_b32 v{t+9}, 1, v1")
    e(f"v_cmp_eq_u32 {sr(mB0,2)}, 1, v{t+9}")
    e(f"v_and_b32 v{t+10}, 2, v1")
    e(f"v_cmp_eq_u32 {sr(mB1,2)}, 2, v{t+10}")
    e(f"v_cmp_eq_u32 vcc, v{t+9}, v{t+7}")
    e(f"v_mov_b32 v{t+10}, 0x3f803f80")
    for r in range(4): e(f"v_cndmask_b32 v{MO+r}, 0, v{t+10}, vcc")
    for r in range(1, 4):
        e(f"v_mov_b32 v{AAUG[0]+r}, 0"); e(f"v_mov_b32 v{AAUG[1]+r}, 0"); e(f"v_mov_b32 v{BAUG+r}, 0")
    e(f"v_mov_b32 v{vZERO}, 0")
    e(f"s_mov_b32 s{sLOG}, 0x3fb8aa3b")
    e(f"s_mov_b32 s{sLOG+1}, 0x3fb8aa3b")
    e(f"s_mov_b32 s{sEPS}, 0x%08x" % f2u(1e-6))
    e(f"s_lshl_b32 s{sT0}, s{sN}, 1")
    e(f"s_add_u32 s{sT0}, s{sT0}, s{sM}")
    e(f"s_lshl_b32 s{sT0}, s{sT0}, 7")
    e(f"s_add_u32 s{sT0}, s{sT0}, {M_CS}")
    e(f"v_lshl_add_u32 v{vCSW}, v{t}, 2, s{sT0}")
    e(f"v_xor_b32 v{vCSR}, 0x80, v{vCSW}")
    e(f"v_lshlrev_b32 v{t+9}, 4, v{t+1}")
    e(f"s_lshl_b32 s{sT0}, s{sT1}, 2")
    e(f"s_add_u32 s{sT0}, s{sT0}, {M_RR}")
    e(f"v_add_u32 v{vRR}, s{sT0}, v{t+9}")
    e(f"v_xor_b32 v{vRR+1}, 0x80, v{vRR}")
    e(f"s_lshl_b32 s{sT0}, s{sRB}, 2")
    e(f"s_lshl_b32 s{sT2}, s{sM}, 1")
    e(f"s_add_u32 s{sT0}, s{sT0}, s{sT2}")
    e(f"s_add_u32 s{sRT[0]}, s{sT0}, s{sN}")
    e(f"s_xor_b32 s{sRT[1]}, s{sRT[0]}, 1")
    e(f"v_and_b32 v{t+9}, 15, v1")
    e(f"v_lshlrev_b32 v{vFLO}, 3, v{t+9}")
    e(f"v_lshlrev_b32 v{vCTLO}, 2, v1")
    e(f"s_lshr_b32 s{sT0}, s{sJ}, 1")
    e(f"s_mul_i32 s{sT0}, s{sT0}, 704")
    e(f"s_and_b32 s{sT1}, s{sJ}, 1")
    e(f"s_lshl_b32 s{sT2}, s{sT1}, 7")
    e(f"s_add_u32 s{sT2}, s{sT2}, s{sT0}")
    e(f"s_add_u32 s{sCOL[2]}, s{sT2}, 256")
    e(f"s_lshl_b32 s{sT1}, s{sT1}, 6")
    e(f"s_sub_u32 s{sT0}, s{sT0}, s{sT1}")
    e(f"s_add_u32 s{sT0}, s{sT0}, 576")
    e(f"s_lshl_b32 s{sCOL[1]}, s{sJ}, 7")
    e(f"s_add_u32 s{sT2}, s{sCOL[1]}, 2048")
    e(f"s_cmp_eq_u32 s{sTYP}, 0")
    e(f"s_cselect_b32 s{sCOL[1]}, s{sT2}, s{sCOL[1]}")
    e(f"s_cselect_b32 s{sCOL[2]}, s{sCOL[2]}, s{sT0}")
    e(f"s_lshl_b32 s{sT0}, s{sN}, 11")
    e(f"s_lshl_b32 s{sHST[1]}, s{sJ}, 12")
    e(f"s_add_u32 s{sHST[1]}, s{sHST[1]}, s{sT0}")
    e(f"s_add_u32 s{sHST[1]}, s{sHST[1]}, {QB}")
    e(f"s_lshr_b32 s{sT1}, s{sJ}, 1")
    e(f"s_mul_i32 s{sT1}, s{sT1}, 10240")
    e(f"s_add_u32 s{sT0}, s{sT0}, s{sT1}")
    for c in (0, 2):
        e(f"s_lshl_b32 s{sHST[c]}, s{sCOL[c]}, 5")
        e(f"s_add_u32 s{sHST[c]}, s{sHST[c]}, s{sT0}")
    e(f"s_and_b32 s{sT0}, s101, s{sN}")
    e(f"s_cmp_eq_u32 s{sT0}, 1")
    e(f"s_cselect_b32 s{sHST[2]}, {OOB}, s{sHST[2]}")
    e(f"s_lshl_b32 s{sT0}, s{sCB}, 7")
    e(f"s_mul_i32 s{sB2}, s{sW}, {22 * 16 * 1024}")
    e(f"s_add_u32 s{sB2}, s{sB2}, s{sT0}")
    e(f"s_lshl_b32 s{sBO}, s{sW}, 17")
    e(f"s_add_u32 s{sBO}, s{sBO}, s{sT0}")
    e(f"s_lshl_b32 s{sXR}, s{sRB2}, 16")
    e(f"s_add_u32 s{sXR}, s{sXR}, s{sT0}")
    e(f"s_add_u32 s{sXR+1}, s{sXR}, 32768")
    e(f"s_lshl_b32 s{sHA}, s{sRB2}, 3")
    e(f"s_add_u32 s{sHA}, s{sHA}, s{sW}")
    e(f"s_lshl_b32 s{sHA}, s{sHA}, 15")
    e(f"s_cmp_eq_u32 s{sW}, 3")
    e(f"s_cselect_b32 s{sHA2}, {OOB}, s{sHA}")
    e(f"s_lshl_b32 s{sPQ}, s{sRB2}, 6")
    e(f"s_lshl_b32 s{sT0}, s{sW}, 3")
    e(f"s_add_u32 s{sPQ}, s{sPQ}, s{sT0}")
    e(f"s_lshl_b32 s{sPQ}, s{sPQ}, 10")
    e(f"s_add_u32 s{sPQ}, s{sPQ}, {QB}")
    e(f"s_mul_i32 s{sKV}, s{sW}, {8 * KVH}")
    e(f"s_add_u32 s{sKV}, s{sKV}, {KVB}")
    if STAMP: e("v_writelane_b32 v255, s2, 63")
    e(f"s_lshl_b32 s{sFL}, s{sRB2}, 2")
    e(f"s_add_u32 s{sFL}, s{sFL}, s{sW}")
    e(f"s_lshl_b32 s{sFL}, s{sFL}, 7")
    e(f"s_add_u32 s{sFL}, s{sFL}, {FLB}")
    e(f"s_lshl_b32 s{sKF}, s{sW}, 10")
    e(f"s_add_u32 s{sKF}, s{sKF}, {KFB}")

def I(t, c=1): return ("i", t, c)
def setup3_ops():
    L = [I(f"v_add_u32 v{vBT}, s{sBL}, v247"), I(f"v_xor_b32 v{vBT+1}, 64, v{vBT}")]
    for r in (1, 2):
        L += [I(f"v_add_u32 v{vBT+2*r}, {65536*r}, v{vBT}"), I(f"v_add_u32 v{vBT+2*r+1}, {65536*r}, v{vBT+1}")]
    L += [I(f"v_lshrrev_b32 v{vXD}, 5, v1"),
          I(f"v_lshlrev_b32 v{vXD+1}, 8, v{vXD}"),
          I(f"v_lshl_add_u32 v{vXD+1}, v{vFLO}, 1, v{vXD+1}"),
          I(f"v_lshlrev_b32 v{vXD}, 4, v{vXD}"),
          I(f"v_add_u32 v{vXD}, 1024, v{vXD}"),
          I(f"v_cndmask_b32 v{vKVO}, v{vXD+1}, v{vXD}, {sr(mB4,2)}"),
          I(f"v_add_u32 v{vXD+1}, 480, v{vXD+1}"),
          I(f"v_cndmask_b32 v{vXD+2}, v{vXD+1}, v{vXD}, {sr(mB4,2)}"),
          I(f"v_lshrrev_b32 v{vXD}, 3, v0"),
          I(f"v_and_b32 v{vXD+1}, 7, v0"),
          I(f"v_lshlrev_b32 v{vXD+1}, 4, v{vXD+1}"),
          I(f"v_lshl_add_u32 v{vXO}, v{vXD}, 10, v{vXD+1}")]
    return L

def read_x1(g, p, u, t):
    off = XPAGE[p % 5] * PAGE
    if off < 65536:
        g.ds(f"ds_read_b128 {ar(X(t, p, u))}, v{vXA[t] + u} offset:{off}", ("X", p, u))
    else:
        g.e(f"v_add_u32 v{vTMP}, {off}, v{vXA[t] + u}")
        g.ds(f"ds_read_b128 {ar(X(t, p, u))}, v{vTMP}", ("X", p, u))
def read_x(g, p, u):
    for t in range(2): read_x1(g, p, u, t)
def read_w(g, step):
    gi, u = step >> 2, step & 3
    b = WF[step % 3]
    pg = WPAGE[gi]
    off = (pg & 7) * PAGE + (u & ~1) * 2048
    a = vWA + 2 * (pg >> 3) + (u & 1)
    g.ds(f"ds_read_b64_tr_b16 v[{b}:{b+1}], v{a} offset:{off}", ("Wf", step))
    g.ds(f"ds_read_b64_tr_b16 v[{b+2}:{b+3}], v{a} offset:{off + 512}", ("Wf", step))

def flag_store(addr_ops, tag):
    return [("blk", addr_ops, 6), ("waitvm", tag),
            ("blk", ["s_mov_b64 exec, 1",
                     ("vm", f"buffer_store_dwordx2 v[{vNON}:{vNON+1}], v{vZERO}, {sr(SWS)}, s{sT1} offen sc1"),
                     "s_mov_b64 exec, -1"], 4)]
def flag_addr(kind):
    return [f"s_lshl_b32 s{sT1}, s{sRB}, 1", f"s_add_u32 s{sT1}, s{sT1}, s{sM}", f"s_lshl_b32 s{sT1}, s{sT1}, 2",
            f"s_lshr_b32 s{sT2}, s{sJ}, 1", f"s_add_u32 s{sT1}, s{sT1}, s{sT2}", f"s_lshl_b32 s{sT1}, s{sT1}, 4",
            f"s_and_b32 s{sT2}, s{sJ}, 1", f"s_lshl_b32 s{sT2}, s{sT2}, 1", f"s_add_u32 s{sT1}, s{sT1}, s{sT2}",
            f"s_add_u32 s{sT1}, s{sT1}, s{sN}", f"s_add_u32 s{sT1}, s{sT1}, {kind * 4}", f"s_lshl_b32 s{sT1}, s{sT1}, 3",
            f"s_add_u32 s{sT1}, s{sT1}, {FLB}"]
def kvflag_addr():
    return [f"s_lshl_b32 s{sT1}, s{sRB}, 2", f"s_add_u32 s{sT1}, s{sT1}, s{sW}", f"s_lshl_b32 s{sT1}, s{sT1}, 3",
            f"s_lshl_b32 s{sT2}, s{sJ}, 9", f"s_add_u32 s{sT1}, s{sT1}, s{sT2}", f"s_add_u32 s{sT1}, s{sT1}, {KFB}"]
def bfr(d, s): return [I(f"v_cvt_pk_bf16_f32 v{d}, v{s}, v{s}"), I(f"v_and_b32 v{d}, 0xffff0000, v{d}")]
SEL = ["op_sel:[0,0] op_sel_hi:[1,0]", "op_sel:[0,1] op_sel_hi:[1,1]"]
SEL3 = ["op_sel:[0,0,0] op_sel_hi:[1,0,1]", "op_sel:[0,1,0] op_sel_hi:[1,1,1]"]

def epilogue(c, typ, fast):
    L = []
    A = ACCS[c & 1]
    corient = (typ == 0 and c < 2)
    t = T; cs = vCSV
    bau = [I(f"v_add_f32 v{cs}, v{cs}, v{vCSP}"),
           I(f"v_cvt_pk_bf16_f32 v{t}, -v{cs}, -v{cs}"),
           I(f"v_and_b32 v{t}, 0xffff0000, v{t}"),
           I(f"v_sub_f32 v{t}, -v{cs}, v{t}"),
           I(f"v_cvt_pk_bf16_f32 v{t}, -v{cs}, v{t}"),
           I(f"v_cndmask_b32 v{BAUG}, v{t}, 0, {sr(mH,2)}")]
    if c == 0:
        L += [I(f"v_cndmask_b32 v{t+1}, v{S1}, v{S1+1}, {sr(mB4,2)}")]
        L += [I(f"v_add_f32 v{Q0+r}, v{Q0+r}, v{Q1+r}") for r in range(4)]
        L += [I(f"v_cndmask_b32 v{t+2}, v{Q0}, v{Q0+1}, {sr(mB0,2)}"),
              I(f"v_cndmask_b32 v{t+3}, v{Q0+2}, v{Q0+3}, {sr(mB0,2)}"),
              I(f"v_cndmask_b32 v{t+2}, v{t+2}, v{t+3}, {sr(mB1,2)}"),
              I(f"v_mov_b32 v{t+3}, v{t+2}"),
              I(f"v_mul_f32 v{t+1}, 0x3b000000, v{t+1}"),
              I(f"v_cvt_pk_bf16_f32 v{AAUG[0]}, v{t+1}, v{t+1}"),
              I(f"v_permlane32_swap_b32 v{t+2}, v{t+3}"),
              I(f"v_add_f32 v{t+2}, v{t+2}, v{t+3}"),
              I(f"v_mul_f32 v{t+2}, 0x3b000000, v{t+2}"),
              I(f"v_fma_f32 v{t+2}, -v{t+1}, v{t+1}, v{t+2}"),
              I(f"v_max_f32 v{t+2}, 0, v{t+2}")]
        L += bfr(t+2, t+2)
        L += [I(f"v_add_f32 v{t+2}, 0x%08x, v{t+2}" % f2u(1e-5))]
        L += bfr(t+2, t+2)
        L += [I(f"v_sqrt_f32 v{t+2}, v{t+2}", 2), ("ds", f"ds_write_b32 v{vSTO}, v{AAUG[0]}", "fw")]
        L += bfr(t+2, t+2)
        L += [I(f"v_rcp_f32 v{RL}, v{t+2}", 2), bau[0]]
        L += [("ds", f"ds_write_b32 v{vSTO}, v{RL} offset:512", "fw"), ("bar", bau[1:])]
        L += [("ds", f"ds_read_b32 v{AAUG[1]}, v{vSTX}", "fr"), ("ds", f"ds_read_b32 v{RL+1}, v{vSTX} offset:512", "fr")]
        if typ == 0:
            for tt in range(2):
                for q in range(4):
                    L += [("ds", f"ds_read_b128 {vr(RROW[tt] + 4*q)}, v{vRR+tt} offset:{32*q}", "fr")]
        L += [("delay", 1), ("waitlg", "fr")]
    else:
        L += bau
    for tt in range(2):
        a, b = (vr(AAUG[tt]), vr(BAUG)) if corient else (vr(BAUG), vr(AAUG[tt]))
        L += [("mfma", f"v_mfma_f32_32x32x16_bf16 {vr(A[tt],16)}, {a}, {b}, {vr(A[tt],16)}")]
    L += [("delay", 1)]
    def pk(op, d, a, b, c3=None, mod=""):
        s = f"{op} v[{d}:{d+1}], v[{a}:{a+1}], {b}"
        if c3 is not None: s += f", v[{c3}:{c3+1}]"
        return s + (" " + mod if mod else "")
    def cvt(tt, d): return [I(f"v_cvt_pk_bf16_f32 v{d+q}, v{A[tt]+2*q}, v{A[tt]+2*q+1}") for q in range(8)]
    def store(tt, d, stride, tag):
        return [("st", [([f"s_mul_i32 s{sT3}, s{sRT[tt]}, {stride}", f"s_add_u32 s{sT3}, s{sT3}, s{sHST[c]}"],
                         f"buffer_store_dwordx4 {vr(d)}, v{vL16}, {sr(SWS)}, s{sT3} offen sc1", tag, True),
                        ([], f"buffer_store_dwordx4 {vr(d+4)}, v{vL16}, {sr(SWS)}, s{sT3} offen offset:1024 sc1", tag, False)])]
    tag = "st%d" % c
    if c == 1 and typ == 1:
        L += [("burst", [pk("v_pk_mul_f32", t+16*tt+2*q, A[tt]+2*q, f"v[{RLL}:{RLL+1}]", None, SEL[tt]) for tt in range(2) for q in range(8)])]
        L += [("rate", OPT["qrate"])]
        for tt in range(2):
            for r in range(16):
                L += [I(f"v_exp_f32_e64 v{t+16*tt+r}, v{t+16*tt+r} clamp", 2), I(f"v_max_f32 v{A[tt]+r}, v{EPSR+tt}, v{A[tt]+r}")]
        L += [("burst", [pk("v_pk_fma_f32", A[tt]+2*q, A[tt]+2*q, f"v[{RL}:{RL+1}]", t+16*tt+2*q, SEL3[tt]) for tt in range(2) for q in range(8)])]
        for tt in range(2): L += cvt(tt, VF + 8*tt) + store(tt, VF + 8*tt, 32768, tag)
        L += [("rate", 0), ("delay", OPT["fdelay"])] + flag_store(flag_addr(1), tag)
    elif c == 0 and typ == 0:
        B = [pk("v_pk_mul_f32", A[tt]+2*q, A[tt]+2*q, f"v[{RROW[tt]+2*q}:{RROW[tt]+2*q+1}]") for tt in range(2) for q in range(8)]
        B += [pk("v_pk_mul_f32", t+16*tt+2*q, A[tt]+2*q, sr(sLOG, 2)) for tt in range(2) for q in range(8)]
        L += [("burst", B), ("rate", OPT["krate"])]
        for tt in range(2):
            for r in range(16):
                L += [I(f"v_exp_f32_e64 v{t+16*tt+r}, v{t+16*tt+r} clamp", 2), I(f"v_max_f32 v{A[tt]+r}, s{sEPS}, v{A[tt]+r}")]
        L += [("burst", [pk("v_pk_add_f32", A[tt]+2*q, A[tt]+2*q, f"v[{t+16*tt+2*q}:{t+16*tt+2*q+1}]") for tt in range(2) for q in range(8)])]
        for tt in range(2): L += cvt(tt, PK + 8*tt)
        L += [("rate", 0)]
    elif c == 1 and typ == 0:
        B = [pk("v_pk_mul_f32", A[tt]+2*q, A[tt]+2*q, f"v[{RROW[tt]+2*q}:{RROW[tt]+2*q+1}]") for tt in range(2) for q in range(8)]
        B += [x[1] for tt in range(2) for x in cvt(tt, VF + 8*tt)]
        L += [("burst", B)]
        KVA = A[0]
        adr = [I(f"v_bfe_u32 v{t+16}, v1, 4, 1"), I(f"v_mul_u32_u24 v{t+16}, {KVH}, v{t+16}"),
               ("blk", [f"s_mul_i32 s{sT1}, s{sM}, 4352", f"s_mul_i32 s{sT2}, s{sN}, 2176", f"s_add_u32 s{sT1}, s{sT1}, s{sT2}",
                        f"s_add_u32 s{sT1}, s{sT1}, {M_KV}", f"v_add_u32 v{t+16}, s{sT1}, v{t+16}"], 5),
               I(f"v_lshrrev_b32 v{t+17}, 5, v1"),
               I(f"v_lshrrev_b32 v{t+18}, 1, v{vFLO}"), I(f"v_add_u32 v{t+18}, v{t+18}, v{t+16}"),
               I(f"v_lshl_add_u32 v{t+16}, v{t+17}, 8, v{t+16}"),
               I(f"v_lshl_add_u32 v{t+16}, v{vFLO}, 1, v{t+16}"), I(f"v_lshlrev_b32 v{t+19}, 2, v0"),
               I(f"v_add_u32 v{t+20}, {M_KV}, v{t+19}"),
               I(f"v_cndmask_b32 v{t+8}, v{S1}, v{S1+1}, {sr(mB4,2)}"),
               ("ds", f"ds_write_b32 v{t+18}, v{t+8} offset:1024", "fw")]
        ms = []
        for i in range(4): ms.append(f"v_mfma_f32_16x16x32_bf16 {vr(S1)}, {vr(MO)}, {vr(PK+4*i)}, {'0' if i == 0 else vr(S1)}")
        L.insert(len(L) - 1, ("burst", ms))
        ms = []
        for i in range(4): ms.append(f"v_mfma_f32_32x32x16_bf16 {vr(KVA,16)}, {vr(PK+4*i)}, {vr(VF+4*i)}, {'0' if i == 0 else vr(KVA,16)}")
        L += [("mfmas", ms, adr), ("delay", 1)]
        L += [I(f"v_cndmask_b32 v{t+r}, v{KVA+r}, v{KVA+8+r}, {sr(mB4,2)}") for r in range(8)]
        L += [("ds", f"ds_write_b128 v{t+16}, {vr(t)}", "fw"), ("ds", f"ds_write_b128 v{t+16}, {vr(t+4)} offset:512", "fw")]
        L += [("bar", setup3_ops())]
        L += [("ds", f"ds_read2st64_b32 v[{t+2*i}:{t+2*i+1}], v{t+20} offset0:{4*i} offset1:{17+4*i}", "fr") for i in range(5)]
        L += [("delay", 1), ("waitlg", "fr")]
        L += [I(f"v_add_f32 v{t+2*i}, v{t+2*i}, v{t+2*i+1}") for i in range(5)]
        its = []
        for i in range(4):
            prep = [f"s_mul_i32 s{sT3}, s{sJ}, 4352", f"s_add_u32 s{sT3}, s{sT3}, {KVB}"] if i == 0 else []
            its.append((prep, f"buffer_atomic_add_f32 v{t+2*i}, v{t+19}, {sr(SWS)}, s{sT3} offen offset:{1024*i}", "at", True))
        its.append(([f"s_add_u32 s{sT3}, s{sT3}, 4096", f"s_cmp_eq_u32 s{sW}, 0", f"s_cselect_b32 s{sT3}, s{sT3}, {OOB}"],
                    f"buffer_atomic_add_f32 v{t+8}, v{t+19}, {sr(SWS)}, s{sT3} offen", "at", False))
        L += [("st", its), ("delay", OPT["adelay"])] + flag_store(kvflag_addr(), "at")
    else:
        if not fast and OPT["hb"]:
            L += [("burst", [pk("v_pk_mul_f32", A[tt]+2*q, A[tt]+2*q, f"v[{RL}:{RL+1}]", None, SEL[tt]) for tt in range(2) for q in range(8)])]
        for tt in range(2):
            d = VF + 8*tt
            if fast: L += [I(pk("v_pk_mul_f32", A[tt]+2*q, A[tt]+2*q, f"v[{RL}:{RL+1}]", None, SEL[tt])) for q in range(8)]
            elif not OPT["hb"]: L += [I(f"v_mul_f32 v{A[tt]+r}, v{RL+tt}, v{A[tt]+r}") for r in range(16)]
            for hf in range(2):
                L += [I(f"v_cvt_pk_bf16_f32 v{d+q}, v{A[tt]+2*q}, v{A[tt]+2*q+1}") for q in range(4*hf, 4*hf+4)]
                L += [I(f"v_pk_max_i16 v{d+q}, v{d+q}, 0") for q in range(4*hf, 4*hf+4)]
                if fast: L += [("st", [store(tt, d, HRT, tag)[0][1][hf]])]
            if not fast: L += store(tt, d, HRT, tag)
        kind = 0 if c == 0 else (2 if typ == 0 else 3)
        if c == 0:
            L += [I(f"v_mul_f32 v{RLL+tt}, s{sLOG}, v{RL+tt}") for tt in range(2)]
            L += [I(f"v_rcp_f32 v{EPSR+tt}, v{RL+tt}", 2) for tt in range(2)]
            L += setup3_ops()
            L += [I(f"v_mul_f32 v{EPSR+tt}, s{sEPS}, v{EPSR+tt}") for tt in range(2)]
        L += [("delay", OPT["hdelay"])] if not fast else [("late",)]
        L += flag_store(flag_addr(kind), tag)
    return L

class Sched:
    def __init__(self, g, typ):
        self.g = g; self.typ = typ
        self.q = []; self.side = []; self.wait_bar = False; self.delay = 0
        self.wq = []; self.sq = []; self.aq = []; self.bq = []
        self.cur = None
        self.bar = -1; self.free_stage = 0; self.tok = 0.0; self.extra = 0; self.pages = []; self.bnext = 0
    def adv(self, cy): self.tok = min(2.0, self.tok + cy / (OPT["pc2"] if 16 <= self.bar < 24 else OPT["period"]))
    def pick(self, force=False):
        if self.cur is not None: return self.cur
        if self.sq: return self.sq
        if self.wq and self.wq[0][0] <= self.bar and (self.tok >= 1 or force or self.wq[0][2][2][1] <= self.bar + 4): return self.wq
        if self.tok < 1 and not force: return None
        a_ok = self.aq and self.aq[0][0] < self.free_stage
        if not self.bq and self.bnext < 30 and self.pages and not self.wq:
            BPAGE[self.bnext] = self.pages.pop(0)
            self.bq = [(0, 0, it) for it in it_b(self.bnext)]; self.bnext += 1
        b_ok = bool(self.bq)
        if a_ok and b_ok:
            sa = self.aq[0][2][2][1]; sb = self.bq[0][2][2][1]
            if sa == 99: sa = 0
            return self.bq if sb <= sa + OPT["bl"] else self.aq
        if a_ok: return self.aq
        if b_ok: return self.bq
        return None
    def vm(self, force=False):
        q = self.pick(force)
        if q is None: return 0
        it = q.pop(0)[2] if q is not self.sq else q.pop(0)
        emit_item(self.g, it)
        self.cur = q if it[3] else None
        tg = it[2]
        isw1 = isinstance(tg, tuple) and tg[0] == "W" and ((self.typ == 0 and tg[1] >= 16) or (self.typ == 1 and not 8 <= tg[1] < 16))
        self.tok -= OPT["w1w"] / 10.0 if isw1 else 0.3 if tg == "at" else 1
        self.tok = max(self.tok, -OPT["debt"])
        return len(it[0]) + 2
    def emit1(self, op):
        g = self.g; k = op[0]
        if k == "i": g.e(op[1])
        elif k == "ds": g.ds(op[1], op[2])
        elif k == "vm": g.vmem(op[1], op[2] if len(op) > 2 else "misc")
        elif k == "mfma": g.e(op[1])
        elif k == "waitlg": g.wait(lg=op[1])
        elif k == "waitvm":
            if VERB: print("   typ", self.typ, "waitvm", op[1], "at step", self.step)
            while self.sq or self.cur is not None: self.vm(True)
            g.wait(vm=op[1])
        elif k in ("blk", "burst"):
            for x in op[1]:
                if isinstance(x, str): g.e(x)
                else: self.emit1(x)
        elif k == "st":
            if VERB: print("   typ", self.typ, "st", op[1][0][2], "at step", self.step)
            self.sq += op[1]
    def cost(self, op):
        k = op[0]
        if k in ("i", "blk"): return op[2]
        return {"ds": 1, "vm": 2, "waitlg": 1, "waitvm": 1, "st": 0}[k]
    def tick(self):
        if self.delay > 0: self.delay -= 1
    def fill(self, slots):
        slots = min(slots, 4) + self.extra
        while slots > 0:
            if self.side: q = self.side
            elif self.q and not self.wait_bar and self.delay == 0: q = self.q
            else: return
            op = q[0]
            if op[0] in ("mfma", "mfmas", "late", "burst"): return
            if op[0] == "bar": q.pop(0); self.wait_bar = True; self.side = list(op[1]); continue
            if op[0] == "delay": q.pop(0); self.delay = op[1]; return
            if op[0] == "rate": q.pop(0); self.extra = op[1]; continue
            if op[0] == "i" and self.cost(op) > slots: return
            q.pop(0); slots -= self.cost(op); self.emit1(op)
    def big(self):
        while self.q and not self.side and self.q[0][0] in ("mfma", "mfmas", "burst") and not self.wait_bar and self.delay == 0:
            op = self.q.pop(0)
            if op[0] == "burst":
                for n, x in enumerate(op[1]):
                    self.g.e(x)
                    if n % 16 == 15: self.adv(72); self.vm()
            elif op[0] == "mfma":
                self.g.e(op[1]); self.adv(32); self.vm()
            else:
                self.side = list(op[2]); self.delay = 1
                for m in op[1]:
                    self.g.e(m); self.adv(32); self.fill(6 - self.vm())
                while self.side: self.emit1(self.side.pop(0))
                self.delay = 0
                return
    def drain(self, until_late=False):
        while self.side: self.emit1(self.side.pop(0))
        if self.wait_bar and self.q:
            self.g.wait(lg="fw"); self.g.e("s_barrier")
        self.wait_bar = False; self.delay = 0
        while self.q:
            op = self.q[0]
            if op[0] == "late":
                if until_late: return
                self.q.pop(0); continue
            self.q.pop(0)
            if op[0] == "bar":
                for x in op[1]: self.emit1(x)
                self.g.wait(lg="fw"); self.g.e("s_barrier"); continue
            if op[0] == "delay": continue
            if op[0] == "rate": self.extra = op[1]; continue
            if op[0] == "mfmas":
                for m in op[1]: self.g.e(m)
                for x in op[2]: self.emit1(x)
                continue
            self.emit1(op)
            if op[0] == "st":
                while self.sq or (self.cur is not None and self.cur is not self.sq): self.vm(True)

npoll = [0]
def poll(g, first_tag, reload, check):
    if OPT["dbg"] & 1: return
    n = npoll[0]; npoll[0] += 1
    g.wait(vm=first_tag)
    g.e(f"s_mov_b32 s{sT2}, 0")
    check()
    g.e(f"s_cbranch_scc1 L_POK{n}")
    g.label(f"L_PL{n}")
    if OPT["slp"]: g.e("s_sleep %d" % OPT["slp"])
    g.e(reload)
    g.e("s_waitcnt vmcnt(0)")
    g.e(f"s_add_u32 s{sT2}, s{sT2}, 1")
    g.e(f"s_cmp_gt_u32 s{sT2}, {OPT['spin']}")
    g.e(f"s_cbranch_scc1 L_POK{n}")
    check()
    g.e(f"s_cbranch_scc0 L_PL{n}")
    g.label(f"L_POK{n}")
    g.e("s_nop 4")
    if STAMP == 1: g.e(f"v_writelane_b32 v255, s{sT2}, {52 + n % 5}")

CTL_LD = f"buffer_load_dword v{vCTL}, v{vCTLO}, {sr(SDBG)}, 0 offen sc1"
FLG_LD = f"buffer_load_dwordx2 v[{vFLG}:{vFLG+1}], v{vFLO}, {sr(SWS)}, s{sFL} offen sc1"
KFL_LD = f"buffer_load_dwordx4 {vr(vKFL)}, v{vL16}, {sr(SWS)}, s{sKF} offen sc1"
def flag_check(g, mask):
    def f():
        g.e(f"v_cmp_eq_u64 vcc, v[{vFLG}:{vFLG+1}], {sr(sNON,2)}")
        g.e(f"s_and_b32 vcc_lo, vcc_lo, {mask}")
        g.e(f"s_cmp_eq_u32 vcc_lo, {mask}")
    return f

def body(g, typ):
    e = g.e
    S = Sched(g, typ)
    S.wq = [(-1, 0, it) for it in g.wq0]
    S.cur = S.wq if g.cur_open else None
    for p in range(4, 8):
        S.wq += [(p - 4, 0, it) for it in it_x(p)] + [(-1, 0, it) for it in it_w(typ, p)]
    for k, gi in enumerate(WORDER):
        if OPT["dpf"] and OPT["dpos"] == 2 and k == OPT["dk"]: S.wq += [(-1, 0, it) for it in it_touch()]
        S.wq += [(max(WAV[gi], OPT['wp'] if k >= 4 else -1), 0, it) for it in it_w(typ, gi)]
    BPAGE.clear()
    if OPT["dbg"] & 8: S.bnext = 30
    prq = [(s2, ct) for s2 in range(8) for ct in range(2)] if OPT["pr"] else []
    prel = []
    if OPT["dbg"] & 64: S.wq = []
    for gi in range(24):
        c, p = gi >> 3, gi & 7
        corient = (typ == 0 and c < 2)
        A = ACCS[c & 1]
        for u in range(4):
            step = gi * 4 + u
            first = (p == 0 and u == 0)
            wf = vr(WF[step % 3])
            S.tick(); S.step = step
            if first and c > 0:
                e(f"v_cndmask_b32 v{vCSV}, v{CS}, v{CS+1}, {sr(mB4,2)}")
            S.big()
            if (u % 2 == 0 or p == 7) and not OPT["dbg"] & 16:
                e(f"v_mfma_f32_16x16x32_bf16 {vr(CS)}, {vr(MO)}, {wf}, {'0' if first else vr(CS)}"); S.adv(16)
            if c == 0:
                x0 = X(0, p, u)
                e(f"v_mfma_f32_4x4x4_16b_bf16 {vr(Q0)}, a[{x0}:{x0+1}], a[{x0}:{x0+1}], {'0' if first else vr(Q0)}")
                e(f"v_mfma_f32_4x4x4_16b_bf16 {vr(Q1)}, a[{x0+2}:{x0+3}], a[{x0+2}:{x0+3}], {'0' if first else vr(Q1)}")
                e(f"v_mfma_f32_16x16x32_bf16 {vr(S1)}, {vr(MO)}, {ar(x0)}, {'0' if first else vr(S1)}"); S.adv(40)
                read_w(g, step + 2)
            def M(t):
                cc = "0" if first else vr(A[t], 16)
                a, b = (ar(X(t, p, u)), wf) if corient else (wf, ar(X(t, p, u)))
                e(f"v_mfma_f32_32x32x16_bf16 {vr(A[t],16)}, {a}, {b}, {cc}"); S.adv(32)
            M(0)
            sl = 6
            if c == 0:
                if step + 2 < 32: read_x1(g, (step + 2) >> 2, (step + 2) & 3, 0); sl -= 1
                sl -= S.vm()
            elif step + 2 < 96:
                read_w(g, step + 2); sl -= 2
            if gi >= OPT["vm2"]: sl -= S.vm()
            while prel and ("PR", prel[0]) not in g.lg:
                S.pages.append(BPAGE[prel.pop(0)])
            if prq and (16 + 2 * prq[0][0] + prq[0][1]) >> 3 < S.free_stage:
                s2, ct = prq.pop(0)
                assert s2 in BPAGE and ("B", s2) not in [x[2][2] for x in S.bq]
                g.wait(vm=[("B", s2)])
                pg = BPAGE[s2]
                for k in range(2):
                    r = breg(s2, ct) + 2 * k
                    g.ds(f"ds_read_b64_tr_b16 a[{r}:{r+1}], v{vBT+2*(pg>>3)+ct} offset:{(pg & 7) * PAGE + k*1024}", ("PR", s2))
                sl -= 2
                if ct == 1: prel.append(s2)
            S.fill(sl)
            M(1)
            sl = 5
            if step + 2 < 32: read_x1(g, (step + 2) >> 2, (step + 2) & 3, 1); sl -= 1
            if p == 7 and u == 2:
                g.ds(f"ds_read_b32 v{vCSP}, v{vCSR}", "csp"); sl -= 1
            sl -= S.vm()
            if u == 1: sl -= 1
            if p == 6 and u == 3:
                e(f"v_cndmask_b32 v{vTMP}, v{CS}, v{CS+1}, {sr(mB4,2)}")
                g.ds(f"ds_write_b32 v{vCSW}, v{vTMP}", "fw"); sl -= 2
            if c == 2 and u == 3: S.free_stage = p + 1
            if u == 1:
                while any(x[2][2][1] <= gi + 1 for x in S.wq):
                    assert S.vm(True)
                g.st.mark2(g)
                g.wait(vm=[("W", gi + 1), ("X", gi + 1)], lg=["fw", ("Wf", step + 1), ("X", (step+1) >> 2, (step+1) & 3)])
                if not OPT["dbg"] & 4: e("s_barrier")
                g.st.mark2(g)
                S.bar = gi; S.wait_bar = False
                S.pages += [pg for (bb, pg) in BEV if bb == gi]
                if gi == 2: publish_ctl(g, typ)
                if gi == 5: g.vmem(CTL_LD, "ctl")
                if gi == 6:
                    assert not any(x[2][2][0] == "X" for x in S.wq)
                    if OPT["xr"]:
                        e(f"s_and_b32 s{sKEY}, s{sRB2}, 3")
                        e(f"s_lshl_b32 s{sKEY}, s{sKEY}, 1")
                        e(f"s_add_u32 s{sKEY}, s{sKEY}, s{sCB}")
                        e(f"s_and_b32 s{sKEY}, s{sKEY}, 7")
                    else: e(f"s_mov_b32 s{sKEY}, 0")
                    e(f"s_lshl_b32 s{sK14}, s{sKEY}, 14")
                    e(f"s_lshl_b32 s{sHAK}, s{sKEY}, 10")
                    e(f"s_or_b32 s{sPQ}, s{sPQ}, s{sHAK}")
                    e(f"s_or_b32 s{sHAK}, s{sHAK}, s{sHA}")
                if gi == 9:
                    def chk():
                        e(f"v_readlane_b32 s{sNON}, v{vCTL}, 16")
                        e(f"v_readlane_b32 s{sNON+1}, v{vCTL}, 17")
                        if typ == 0:
                            e(f"v_readlane_b32 vcc_lo, v{vCTL}, s{sJ}")
                            e(f"s_min_u32 vcc_lo, vcc_lo, s{sNON}")
                            e(f"s_cmp_lg_u32 vcc_lo, 0")
                        else:
                            e(f"s_cmp_lg_u32 s{sNON}, 0")
                    poll(g, "ctl", CTL_LD, chk)
                    e(f"v_mov_b32 v{vNON}, s{sNON}")
                    e(f"v_mov_b32 v{vNON+1}, s{sNON+1}")
                if gi == OPT["hpoll"] - OPT["hlead"]: g.vmem(FLG_LD, "flg")
                if gi == OPT["hpoll"]:
                    poll(g, "flg", FLG_LD, flag_check(g, 0xf))
                    S.aq += [(aslot_of(s, t) >> 3, 0, it_a(s, t)) for s in range(8) for t in range(2)]
            elif step + 1 < 96:
                g.wait(lg=[("Wf", step + 1), ("X", (step+1) >> 2, (step+1) & 3)])
            S.fill(sl + OPT["fs"] - 5)
        if p == 7:
            g.st.mark(g)
            if c < 2:
                n = len([op for op in S.q if op[0] == "i"])
                if n: print("  typ", typ, "chunk", c, "leftover valu", n)
                S.drain()
                g.wait(lg="csp")
                if not OPT["dbg"] & 2: S.q += epilogue(c, typ, False)
    if OPT["dbg"] & 1:
        stamp_flush(g); e("s_endpgm"); return
    n = len([op for op in S.q if op[0] == "i"])
    if n: print("  typ", typ, "chunk 2 leftover valu", n)
    k = len(S.q)
    while k > 0 and S.q[k-1][0] in ("blk", "waitvm", "delay") and len(S.q) - k < 4: k -= 1
    late = S.q[k:] if len(S.q) - k >= 3 else []
    if late: S.q = S.q[:k]; print("  typ", typ, "late chunk-1 flag")
    S.drain()
    while S.sq or S.cur is not None: assert S.vm(True)
    g.wait(lg="csp")
    e(f"v_cndmask_b32 v{vCSV}, v{CS}, v{CS+1}, {sr(mB4,2)}")
    ep = epilogue(2, typ, True)
    i = [k for k, op in enumerate(ep) if op[0] == "delay"][0]
    S.q = ep[:i]
    S.drain()
    if S.aq: print("  typ", typ, "late A loads", len(S.aq))
    print("  typ", typ, "B items left at T1", 2 * (30 - S.bnext) + len(S.bq), "prereads left", len(prq))
    assert not prq
    while S.aq: assert S.vm(True)
    S.q = late; S.drain()
    if OPT["qld"] < 0: g.vmem(FLG_LD, "flg"); g.vmem(KFL_LD, "kfl")
    S.q = ep[i:]
    S.drain(until_late=True)
    S.cur = None
    late2 = S.q; S.q = []
    g.st.mark(g)
    g.wait(lg_all=True)
    e("s_barrier")
    S.bar = 24; S.free_stage = 8
    S.pages += [BPAGE[x] for x in prel] + [pg for (bb, pg) in BEV if bb == 24]
    sv = OPT["period"]; OPT["period"] = OPT["p2"]
    phase2(g, S, late2)
    OPT["period"] = sv

def publish_ctl(g, typ):
    if typ != 0: return
    e = g.e
    e(f"s_cmp_eq_u32 s{sZ}, 1")
    e("s_cbranch_scc0 L_NOZF")
    e(f"s_lshl_b32 s{sT1}, s{sJ}, 2")
    e(f"v_mov_b32 v{vTMP}, 1")
    e("s_mov_b64 exec, 1")
    g.vmem(f"buffer_store_dword v{vTMP}, v{vZERO}, {sr(SDBG)}, s{sT1} offen sc1", counted=False)
    e("s_mov_b64 exec, -1")
    g.label("L_NOZF")

def phase2(g, S, late2):
    e = g.e
    NS = 30
    def read_b(s):
        pg = BPAGE[s]; rng = pg >> 3; off = (pg & 7) * PAGE
        b = BF[s % 3]
        return [lambda ct=ct, k=k: g.ds(f"ds_read_b64_tr_b16 v[{b+4*ct+2*k}:{b+4*ct+2*k+1}], v{vBT+2*rng+ct} offset:{off + k*1024}", ("Bf", s))
                for ct in range(2) for k in range(2)]
    def ensure_b(s):
        while S.bnext <= s or any(x[2][2][1] == s for x in S.bq):
            if S.cur is not None: assert S.vm(True); continue
            sv = S.aq; S.aq = []
            assert S.vm(True)
            S.aq = sv
    npr = 8 if OPT["pr"] else 0
    def ensure(q, s):
        while any(x[2][2][1] == s for x in q):
            if S.cur is None:
                it = q.pop(0)[2]; emit_item(g, it); S.cur = q if it[3] else None
            else:
                assert S.vm(True)
    def Cops(h):
        k = KVR[h]
        return [I(f"v_cvt_pk_bf16_f32 v{k+q}, v{k+2*q}, v{k+2*q+1}") for q in range(4)]
    def Nm(h, t): return f"v_mfma_f32_32x32x16_bf16 {vr(ND[t],16)}, {vr(KVR[h])}, {ar(areg(8 + h, t))}, 0"
    def Vops(h, t):
        d = ND[t]
        L = [I(f"v_add_f32 v{d+8}, s{sEPS}, v{d+8}"), I(f"v_rcp_f32 v{d+8}, v{d+8}", 2)]
        for q in range(4):
            L += [I(f"v_mul_f32 v{d+2*q}, v{d+2*q}, v{d+8}"), I(f"v_mul_f32 v{d+2*q+1}, v{d+2*q+1}, v{d+8}")]
        L += [I(f"v_cvt_pk_bf16_f32 v{OF[0][t]+q}, v{d+2*q}, v{d+2*q+1}") for q in range(4)]
        return L
    vq = []
    def valu(n):
        while vq and n > 0:
            op = vq.pop(0); n -= op[2]; e(op[1])
    def redaddr():
        t = T
        L = [f"v_and_b32 v{t}, 31, v1", f"v_lshrrev_b32 v{t+1}, 3, v{t}", f"v_lshlrev_b32 v{t+1}, 13, v{t+1}",
             f"v_and_b32 v{t+2}, 7, v1", f"v_lshl_add_u32 v{t+1}, v{t+2}, 8, v{t+1}", f"v_add_u32 v{t+1}, s{sBL}, v{t+1}",
             f"v_lshrrev_b32 v{t+3}, 5, v1"]
        for q in range(4):
            L += [f"v_add_u32 v{t+4}, {2*q}, v{t+3}", f"v_xor_b32 v{t+4}, v{t+4}, v{t+2}", f"v_lshl_add_u32 v{t+8+q}, v{t+4}, 4, v{t+1}"]
        L += [f"v_lshrrev_b32 v{t}, 6, v0", f"v_lshlrev_b32 v{t}, 13, v{t}", f"v_bfe_u32 v{t+1}, v0, 3, 3",
              f"v_lshl_add_u32 v{t}, v{t+1}, 8, v{t}", f"v_lshlrev_b32 v{t+2}, 1, v{t+2}", f"v_xor_b32 v{t+2}, v{t+2}, v{t+1}",
              f"v_lshl_add_u32 v{t+4}, v{t+2}, 4, v{t}", f"v_xor_b32 v{t+5}, 16, v{t+4}"]
        return [I(x) for x in L]
    if OPT["qld"] == 0: g.vmem(FLG_LD, "flg"); g.vmem(KFL_LD, "kfl")
    if not npr:
        ensure_b(0)
        g.wait(vm=[("B", 0)])
        for f in read_b(0): f()
    for s in range(NS):
        kind, idx = step_kind(s)
        if s == OPT["qld"] and s > 0:
            g.vmem(FLG_LD, "flg"); g.vmem(KFL_LD, "kfl")
        if s - 1 >= npr: S.pages.append(BPAGE[s - 1])
        if s == OPT["pub"]:
            g.st.mark(g)
            S.q = late2; S.drain()
            g.st.mark(g)
        if s == OPT["qchk"]:
            poll(g, "flg", FLG_LD, flag_check(g, 0xf0))
            def chk():
                e(f"v_cmp_eq_u64 vcc, v[{vKFL}:{vKFL+1}], {sr(sNON,2)}")
                e(f"v_cmp_eq_u64 {sr(mB0,2)}, v[{vKFL+2}:{vKFL+3}], {sr(sNON,2)}")
                e(f"s_and_b64 vcc, vcc, {sr(mB0,2)}")
                e("s_cmp_eq_u64 vcc, -1")
            poll(g, "kfl", KFL_LD, chk)
            g.st.mark(g)
            for h in range(8):
                for t in range(2):
                    S.aq.append((0, 0, ([f"s_xor_b32 s{sT3}, s{sKEY}, {h}", f"s_mul_i32 s{sT3}, s{sT3}, {KVH}", f"s_add_u32 s{sT3}, s{sT3}, s{sKV}"] if t == 0 else [],
                                 f"buffer_load_dwordx4 {vr(KVR[h] + 4*t)}, v{vXD+2 if t else vKVO}, {sr(SWS)}, s{sT3} offen offset:{32*t} sc1", ("KV", 8 + h), t == 0)))
                S.aq += [(0, 0, it_a(8 + h, t)) for t in range(2)]
                if h == OPT["h2smp"]: S.aq.append((0, 0, ([], FLG_LD, ("flg", 99), False)))
        if s == 8:
            ensure(S.aq, 8 + OPT["olead"])
            g.st.mark(g)
            g.wait(vm=[("KV", 8), ("A", 8)])
            for op in Cops(0): e(op[1])
            e(Nm(0, 0)); e(Nm(0, 1))
            g.wait(vm=[("KV", 9)])
            for op in Cops(1) + Vops(0, 0): e(op[1])
            vq += [op + ("v1",) for op in Vops(0, 1)]
            g.st.mark(g)
        if s == OPT["h2chk"]:
            ensure(S.aq, 99)
            while S.cur is not None: S.vm(True)
            poll(g, [("flg", 99)], FLG_LD, flag_check(g, 0xff00))
            g.st.mark(g)
            S.aq += [(0, 0, it_a(s2, t)) for s2 in range(16, 30) for t in range(2)]
            for _ in range(OPT["h2n"]): S.vm(True)
        rb = []
        if npr <= s + 1 < NS:
            ensure_b(s + 1)
            rb = read_b(s + 1)
        b = BF[s % 3]
        def Mm(ct, t):
            acc = vr(ACC2 + 32 * ct + 16 * t, 16)
            act = ar(areg(s, t)) if kind == "h" else vr(OF[0][t])
            bo = ar(breg(s, ct)) if s < npr else vr(b+4*ct)
            return f"v_mfma_f32_32x32x16_bf16 {acc}, {bo}, {act}, {'0' if s == 0 else acc}"
        frc = s >= 16 or (OPT["qchk"] <= s < 8)
        if kind == "h":
            ensure(S.aq, s)
            g.wait(vm=[("A", s), ("B", s + 1)], lg=[("Bf", s)])
            if s == 22: vq += redaddr()
            if s == 27:
                g.wait(vm="xr")
                for tt in range(2):
                    for q in range(4):
                        vq.append(I(f"v_lshlrev_b32 v{92+8*tt+2*q}, 16, v{84+4*tt+q}"))
                        vq.append(I(f"v_and_b32 v{92+8*tt+2*q+1}, 0xffff0000, v{84+4*tt+q}"))
            for mi, (ct, t) in enumerate(((0, 0), (1, 0), (0, 1), (1, 1))):
                e(Mm(ct, t)); S.adv(32)
                sl = 6
                if mi < 2 and rb: rb.pop(0)(); rb.pop(0)(); sl -= 2
                sl -= S.vm(frc)
                valu(min(4, sl))
        else:
            h = idx
            nxt = h + 1 < 8
            if h + 2 < 8: ensure(S.aq, s + 2)
            g.wait(vm=[("A", s + 1), ("B", s + 1)] if nxt else [("B", s + 1)], lg=[("Bf", s)])
            seq = ([("N", 0)] if nxt else []) + [("M", 0, 0), ("M", 1, 0)] + ([("N", 1)] if nxt else []) + [("M", 0, 1), ("M", 1, 1)]
            for pi, pp in enumerate(seq):
                if pp == ("N", 1) or (pp == ("M", 0, 1) and not nxt):
                    while vq and vq[0][3:] == ("v1",): e(vq.pop(0)[1])
                e(Nm(h + 1, pp[1]) if pp[0] == "N" else Mm(pp[1], pp[2])); S.adv(32)
                if pp == ("M", 1, 0) and nxt: vq += [op + ("v0",) for op in Vops(h + 1, 0)]
                if pp == ("M", 1, 0) and h + 2 < 8:
                    g.wait(vm=[("KV", s + 2)])
                    vq += [op + ("v0",) for op in Cops(h + 2)]
                if pp == ("M", 1, 1) and nxt:
                    while vq and vq[0][3:] == ("v0",) and len(vq) > 6: e(vq.pop(0)[1])
                sl = 6
                if pi < 2 and rb: rb.pop(0)(); rb.pop(0)(); sl -= 2
                if pi >= 6 - OPT["ovm"]: sl -= S.vm(True)
                valu(OPT["ov"])
            while vq and vq[0][3:] == ("v0",): e(vq.pop(0)[1])
            if nxt: vq += [op + ("v1",) for op in Vops(h + 1, 1)]
        if s == 20:
            g.vmem(f"buffer_load_dwordx4 {vr(84)}, v{vXO}, {sr(SX)}, s{sXR} offen", "xr")
            g.vmem(f"buffer_load_dwordx4 {vr(88)}, v{vXO}, {sr(SX)}, s{sXR+1} offen", "xr")
        if s in (15, 29): g.st.mark(g)
    while vq: e(vq.pop(0)[1])
    assert not S.aq and not S.bq and S.bnext == 30
    t = T
    for ct in range(2):
        for tt in range(2):
            for q in range(4):
                a = ACC2 + 32 * ct + 16 * tt + 4 * q
                g.ds(f"ds_write_b128 v{t+8+q}, {vr(a)} offset:{tt * 4 * PAGE + ct * 128}", "rw")
    g.wait(lg_all=True)
    e("s_barrier")
    R = ACC2
    for tt in range(2):
        for w in range(4):
            for k in range(2):
                d = R + tt * 32 + w * 8 + k * 4
                g.ds(f"ds_read_b128 {vr(d)}, v{t+4+k} offset:{tt * 4 * PAGE + w * 2048}", ("rr", tt))
    for tt in range(2):
        g.wait(lg=[("rr", tt)])
        d = R + tt * 32
        for q in range(4):
            e(f"v_pk_add_f32 v[{d+2*q}:{d+2*q+1}], v[{d+2*q}:{d+2*q+1}], v[{d+8+2*q}:{d+8+2*q+1}]")
            e(f"v_pk_add_f32 v[{d+16+2*q}:{d+16+2*q+1}], v[{d+16+2*q}:{d+16+2*q+1}], v[{d+24+2*q}:{d+24+2*q+1}]")
        for q in range(4):
            e(f"v_pk_add_f32 v[{d+2*q}:{d+2*q+1}], v[{d+2*q}:{d+2*q+1}], v[{92+8*tt+2*q}:{92+8*tt+2*q+1}]")
        for q in range(4):
            e(f"v_pk_add_f32 v[{d+2*q}:{d+2*q+1}], v[{d+2*q}:{d+2*q+1}], v[{d+16+2*q}:{d+16+2*q+1}]")
        for q in range(4):
            e(f"v_cvt_pk_bf16_f32 v{d+8+q}, v{d+2*q}, v{d+2*q+1}")
        g.vmem(f"buffer_store_dwordx4 {vr(d+8)}, v{vXO}, {sr(SOUT)}, s{sXR+tt} offen" + ["", " sc1", " nt", " sc0 sc1"][OPT["osc"]], "o")
    stamp_flush(g)
    e("s_endpgm")

def stamp_flush(g):
    e = g.e
    if STAMP:
        g.st.mark(g)
        e("s_waitcnt vmcnt(0)")
        g.st.mark(g)
        if STAMP == 3:
            e("v_lshlrev_b32 v254, 2, v1")
            e("s_mov_b64 exec, 0xff00")
            e(f"buffer_atomic_umax v255, v254, {sr(SDBG)}, 0 offen sc1")
            return
        e(f"v_readlane_b32 s{sT0}, v255, 63")
        e(f"s_lshl_b32 s{sT0}, s{sT0}, 2")
        e(f"s_add_u32 s{sT0}, s{sT0}, s{sW}")
        e(f"s_lshl_b32 s{sT0}, s{sT0}, 8")
        e(f"s_add_u32 s{sT0}, s{sT0}, {STB}")
        e("v_lshlrev_b32 v254, 2, v1")
        e(f"buffer_store_dword v255, v254, {sr(SWS)}, s{sT0} offen")

def dpf(g):
    e = g.e
    e("v_lshlrev_b32 v252, 7, v1")
    if OPT["s2f"]:
        e(f"s_lshl_b32 s{sT2}, s{sRB2}, 3")
        e(f"s_add_u32 s{sT2}, s{sT2}, s{sCB}")
    def touch(wave, nbytes, sd, cond_typ=None):
        nl = nbytes // 128
        e(f"s_mul_i32 s{sT1}, s{sT2 if OPT['s2f'] else 2}, {nbytes}")
        e(f"s_cmp_eq_u32 s{sW}, {wave}")
        e(f"s_cselect_b32 s{sT1}, s{sT1}, {OOB}")
        m = (1 << nl) - 1
        e("s_mov_b32 exec_lo, 0x%x" % (m & 0xffffffff)); e("s_mov_b32 exec_hi, 0x%x" % (m >> 32))
        g.vmem(f"buffer_load_dword v253, v252, {sr(sd)}, s{sT1} offen", "pf")
    touch(0, 5504, SW2); touch(1, 2048, SWO)
    if OPT["dpf"] >= 2:
        touch(2, 6144, SWP); touch(3, 6144, SWS2)
    e("s_mov_b64 exec, -1")

def it_touch():
    L = []
    for wave, nbytes, sd in ((0, 5504, SW2), (1, 2048, SWO)):
        m = (1 << (nbytes // 128)) - 1
        prep = [f"s_lshl_b32 s{sT3}, s{sRB2}, 3", f"s_add_u32 s{sT3}, s{sT3}, s{sCB}", f"s_mul_i32 s{sT3}, s{sT3}, {nbytes}",
                f"s_cmp_eq_u32 s{sW}, {wave}", f"s_cselect_b32 s{sT3}, s{sT3}, {OOB}", "v_lshlrev_b32 v252, 7, v1",
                "s_mov_b32 exec_lo, 0x%x" % (m & 0xffffffff), "s_mov_b32 exec_hi, 0x%x" % (m >> 32)]
        L.append((prep, f"buffer_load_dword v253, v252, {sr(sd)}, s{sT3} offen\ns_mov_b64 exec, -1", ("pf", 50), False))
    return L

def gen():
    g = Gen(); g.st = Stamps(); e = g.e
    prologue(g)
    g.st.mark(g)
    items = []
    for p in range(4): items += it_x(p) + it_w(0, p)
    pre = OPT["pre"]
    for it in items[:min(12, pre)]: emit_item(g, it)
    setup1(g)
    if OPT["dpf"] and OPT["dpos"] == 0: dpf(g)
    if OPT["tp"]:
        sh = {1: 20, 2: 18}[OPT["tp"]]
        e(f"v_lshlrev_b32 v252, {sh}, v1")
        e(f"s_cmp_eq_u32 s{sW}, 3")
        e(f"s_cselect_b32 s{sT1}, 0, {OOB}")
        e("s_mov_b64 exec, 0x%x" % ((1 << (12 << (20 - sh))) - 1) if sh == 20 else "s_mov_b32 exec_hi, 0xffff")
        g.vmem(f"buffer_load_dword v253, v252, {sr(SWS)}, s{sT1} offen", "pf")
        g.vmem(f"buffer_load_dword v253, v252, {sr(SOUT)}, s{sT1} offen", "pf")
        g.vmem(f"buffer_load_dword v253, v252, {sr(SDBG)}, s{sT1} offen", "pf")
        g.vmem(f"buffer_load_dword v253, v252, {sr(SWS2)}, s{sT1} offen", "pf")
        g.vmem(f"buffer_load_dword v253, v252, {sr(SW2)}, s{sT1} offen", "pf")
        g.vmem(f"buffer_load_dword v253, v252, {sr(SWO)}, s{sT1} offen", "pf")
        e("s_mov_b64 exec, -1")
    e(f"s_or_b32 s{sT1}, s{sRB}, s{sTYP}")
    e(f"s_or_b32 s{sT1}, s{sT1}, s{sW}")
    e(f"s_cmp_eq_u32 s{sT1}, 0")
    e(f"s_cselect_b32 s{sZ}, 1, 0")
    e("s_cbranch_scc0 L_NOZ")
    e(f"s_memrealtime {sr(sNON,2)}")
    e(f"v_lshlrev_b32 v{vL16}, 4, v1")
    for r in range(4): e(f"v_mov_b32 v{T+r}, 0")
    e(f"s_mul_i32 s{sT1}, s{sJ}, 4352")
    e(f"s_add_u32 s{sT1}, s{sT1}, {KVB}")
    for i in range(4):
        g.vmem(f"buffer_store_dwordx4 {vr(T)}, v{vL16}, {sr(SWS)}, s{sT1} offen offset:{1024*i} sc1", counted=False)
    e(f"s_add_u32 s{sT1}, s{sT1}, 4096")
    e("s_mov_b64 exec, 0xffff")
    g.vmem(f"buffer_store_dwordx4 {vr(T)}, v{vL16}, {sr(SWS)}, s{sT1} offen sc1", counted=False)
    e("s_mov_b64 exec, 1")
    e("s_waitcnt lgkmcnt(0)")
    e(f"s_or_b32 s{sNON}, s{sNON}, 1")
    e(f"v_mov_b32 v{T+4}, s{sNON}")
    e(f"v_mov_b32 v{T+5}, s{sNON+1}")
    e(f"s_cmp_eq_u32 s{sJ}, 0")
    e(f"s_cselect_b32 s{sT1}, 64, {OOB}")
    g.vmem(f"buffer_store_dwordx2 v[{T+4}:{T+5}], v{T}, {sr(SDBG)}, s{sT1} offen sc1", counted=False)
    e("s_mov_b64 exec, -1")
    e("s_nop 1")
    g.label("L_NOZ")
    if OPT["s2f"]:
        setup2(g)
    for it in items[12:pre]: emit_item(g, it)
    if OPT["dpf"] and OPT["dpos"] == 1: dpf(g)
    g.cur_open = items[pre - 1][3]
    assert not g.cur_open
    g.wq0 = items[pre:]
    if not OPT["s2f"]: setup2(g)
    g.st.mark(g)
    g.wait(vm=[("W", 0), ("X", 0)])
    e("s_barrier")
    g.st.mark(g)
    read_x(g, 0, 0); read_w(g, 0); read_x(g, 0, 1); read_w(g, 1)
    g.wait(lg=[("Wf", 0)])
    e(f"s_cmp_eq_u32 s{sTYP}, 0")
    e("s_cbranch_scc0 L_TYPEB")
    st = (list(g.vm), list(g.lg), g.st.n)
    body(g, 0)
    g.label("L_TYPEB")
    g.vm, g.lg, g.st.n = list(st[0]), list(st[1]), st[2]; g.hist = []
    body(g, 1)
    g.label("L_END")
    e("s_endpgm")
    return g

def kd(name, vgpr, sgpr, acc):
    return f""".amdhsa_kernel {name}
  .amdhsa_next_free_vgpr {vgpr}
  .amdhsa_next_free_sgpr {sgpr}
  .amdhsa_accum_offset {acc}
  .amdhsa_group_segment_fixed_size 0
  .amdhsa_kernarg_size 72
  .amdhsa_user_sgpr_count 2
  .amdhsa_user_sgpr_kernarg_segment_ptr 1
  .amdhsa_system_sgpr_workgroup_id_x 1
.end_amdhsa_kernel
"""

def main(out):
    hdr = open("parallel_sum__linear_attn_block__dense_activation_relu__prompt.s.ref").read().split("; Override")[0]
    g = gen()
    s = hdr
    s += "; @launch grid=(256,1,1) block=(256,1,1) lds=163840\n"
    s += '.amdgcn_target "amdgcn-amd-amdhsa--gfx950"\n.text\n'
    s += f".globl {NAME}\n.p2align 8\n.type {NAME},@function\n{NAME}:\n" + g.text()
    s += '.section .rodata,"a"\n.p2align 6\n' + kd(NAME, 512, 102, 256)
    open(out, "w").write(s)
    print("nops", g.nops, "lines", len(g.out), "stamps", g.st.n)

if __name__ == "__main__":
    for a in sys.argv[2:]:
        if a == "stamp": STAMP = 1
        elif a == "stamp2": STAMP = 2
        elif a == "stamp3": STAMP = 3
        elif a == "v": VERB = True
        else:
            k, v = a.split("="); OPT[k] = int(v)
    main(sys.argv[1])
```

```python
import sys, struct
sys.path.insert(0, "dev")
from asmgen import Gen

def f2u(x): return struct.unpack("<I", struct.pack("<f", x))[0]
NAME = "parallel_sum__linear_attn_block__dense_activation_relu__prompt_kernel"

HB, QB, KVB, FLB, KFB = 0, 0x800000, 0xA00000, 0xB00000, 0xB10000
HRT = 131072
KVH = 1088
WS_BYTES = 268435456
OOB = 0x40000000
PAGE = 8192
XPAGE = [0, 2, 4, 6, 18]
MISC = 16 * PAGE
M_CS, M_RM, M_RR, M_KV = MISC, MISC + 512, MISC + 1024, MISC + 2048
STAMP = 0
VERB = False
STB = 0x8000000
OPT = dict(rot=2, pre=16, spin=20000, fdelay=14, adelay=16, period=66, debt=1, w1w=15, qrate=4, krate=1, h2n=0, hpoll=19, hlead=2, cpf=2, dpf=1, fs=5, pub=7, qchk=8, olead=4, h2smp=4, ovm=4, ov=6, h2chk=11, slp=2, qld=4, p2=64, dbg=0, lin=0, vm2=8, pc2=50, osc=0, bl=1, xr=1, pr=1, hb=1, hdelay=8, dpos=2, wp=7, s2f=1, dk=7, tp=0, h2at=-1, quiet=99, qs=-1, zt=0, t3=7, q3=1, lt=6, tl=3, tb=1)

def vr(a, n=4): return f"v[{a}:{a+n-1}]"
def ar(a, n=4): return f"a[{a}:{a+n-1}]"
def sr(a, n=4): return f"s[{a}:{a+n-1}]"

SX, SWP, SWS2, SWS, SDBG, SW2, SWO, SOUT = 24, 28, 32, 36, 40, 44, 48, 52
sRB, sTYP, sJ, sW, sM, sN, sRB2, sCB = 56, 57, 58, 59, 60, 61, 62, 63
sXO, sPO, sSO = 64, 72, 80
sT0, sT1, sT2 = 88, 89, 90
sCOL = [4, 5, 6]
sXL, sBL, sT3 = 7, 8, 9
sRT = [10, 11]
sZ, sEPS, sLOG = 12, 13, 14
sK14 = 12
sHAK, sKEY = 64, 65
mB4, mH, mB0, mB1 = 16, 18, 20, 22
sNON = 92
sHST = [94, 95, 96]
sB2, sBO, sHA, sHA2, sPQ = 97, 98, 99, 100, 101
sKV, sFL, sKF, sXR = 91, 2, 3, 0

vXD, vWP, vWS, vBD = 2, 6, 8, 10
vXA = [12, 16]
vWA = 20
vCSW, vCSR, vL16, vSTO, vSTX, vSKIP = 26, 27, 28, 29, 30, 31
vRR, RL, vCSP, vTMP, vCSV, vCTLO = 32, 34, 36, 37, 38, 39
MO, S1, Q0, Q1, CS = 40, 44, 48, 52, 56
WF = [60, 64, 68]
AAUG, BAUG = [72, 76], 80
ACCS = [[84, 100], [116, 132]]
RROW = [148, 164]
PK, VF, T = 180, 196, 212
ONES = S1
RLL, EPSR = 52, 54
vFLO, vCTL, vZERO, vFLG, vNON = 244, 245, 246, 248, 250
vKFL = 48
vBT, vKVO, vXO = 12, 18, 19
ACC2, BF, ND, OF = 116, [56, 64, 72], [84, 100], [[196, 200], [204, 208]]
KVR = [180, 188, 212, 220, 228, 236, 40, 20]
def X(t, p, u): return 128 * t + 16 * p + 4 * u

class Stamps:
    def __init__(self): self.n = 0
    def mark2(self, g):
        if STAMP != 2: return
        g.e("s_memtime vcc"); g.e("s_waitcnt lgkmcnt(0)"); g.lg = []
        g.e("v_writelane_b32 v255, vcc_lo, %d" % self.n); self.n += 1
    def mark(self, g):
        if STAMP == 3:
            g.e("s_memrealtime vcc"); g.e("s_waitcnt lgkmcnt(0)"); g.lg = []
            if self.n == 0: g.e("s_not_b32 vcc_lo, vcc_lo")
            m = {0: 8, 3: 9, 4: 10, 5: 11, 6: 12, 12: 13, 15: 14, 17: 15}
            if self.n in m: g.e("v_writelane_b32 v255, vcc_lo, %d" % m[self.n])
            self.n += 1
            return
        if STAMP != 1: return
        g.e("s_memrealtime vcc"); g.e("s_waitcnt lgkmcnt(0)"); g.lg = []
        g.e("v_writelane_b32 v255, vcc_lo, %d" % self.n)
        g.e("s_memtime vcc"); g.e("s_waitcnt lgkmcnt(0)")
        g.e("v_writelane_b32 v255, vcc_lo, %d" % (self.n + 30)); self.n += 1

def srd(g, d, lo, nbytes):
    g.e(f"s_mov_b32 s{d}, s{lo}")
    g.e(f"s_and_b32 s{d+1}, s{lo+1}, 0xffff")
    g.e(f"s_mov_b32 s{d+2}, {nbytes}")
    g.e(f"s_mov_b32 s{d+3}, 0x00020000")

WORDER = [8, 9, 16, 17, 10, 11, 12, 13, 14, 15, 18, 19, 20, 21, 22, 23]
def page_plan():
    free = []
    wpage = {}; wav = {}
    for g in range(8): wpage[g] = 8 + g; wav[g] = -1
    ev = []
    xr = {3: 4, 4: 5, 0: 6, 1: 7, 2: 8}
    for sl, b in xr.items(): ev += [(b, XPAGE[sl]), (b, XPAGE[sl] + 1)]
    for g in range(8): ev.append((g + 1, wpage[g]))
    for g in WORDER:
        ev.sort(); b, pg = ev.pop(0)
        wpage[g] = pg; wav[g] = b
        ev.append((g + 1, pg))
    ev += [(24, 16), (24, 17)]
    ev.sort()
    return wpage, wav, ev
WPAGE, WAV, BEV = page_plan()
BPAGE = {}

def uses_primary(typ, c): return c == 0 or (typ == 0 and c == 1) or (typ == 1 and c == 2)
def step_kind(s):
    if s < 8: return ("h", s)
    if s < 16: return ("o", s - 8)
    return ("h", s - 8)
def aslot(k):
    p, r = k >> 3, k & 7
    return X(r >> 2, p, r & 3)
def aslot_of(s, t):
    if not OPT["pr"]: return 2 * s + t
    if s < 8: return 2 * s + t
    if s < 24: return 32 + 2 * (s - 8) + t
    return 2 * (s - 24) + t
def areg(s, t): return aslot(aslot_of(s, t))
def breg(s, ct): return aslot(16 + 2 * s + ct)

def it_x(p):
    L = []
    for i in range(4):
        prep = [f"s_add_u32 m0, s{sXL}, {XPAGE[p % 5] * PAGE}"] if i == 0 else []
        L.append((prep, f"buffer_load_dwordx4 v{vXD+i}, {sr(SX)}, s{sXO+p} offen offset:{1024*i} lds", ("X", p), i < 3))
    return L
def it_w(typ, gi):
    c, p = gi >> 3, gi & 7
    q = uses_primary(typ, c)
    s, v, tb = (SWP, vWP, sPO) if q else (SWS2, vWS, sSO)
    prep = [f"s_add_u32 m0, s{sBL}, {WPAGE[gi] * PAGE}", f"s_add_u32 s{sT0}, s{tb+p}, s{sCOL[c]}"]
    if typ == 1 and gi == 16:
        prep += [f"v_or_b32 v{vWP}, v{vWP}, v{vSKIP}", f"v_or_b32 v{vWP+1}, v{vWP+1}, v{vSKIP}"]
    return [(prep, f"buffer_load_dwordx4 v{v}, {sr(s)}, s{sT0} offen lds", ("W", gi), True),
            ([], f"buffer_load_dwordx4 v{v+1}, {sr(s)}, s{sT0} offen offset:1024 lds", ("W", gi), False)]
def it_b(s):
    k, idx = step_kind(s)
    sd, base = (SW2, sB2) if k == "h" else (SWO, sBO)
    if OPT["xr"] and idx < 16:
        prep = [f"s_add_u32 m0, s{sBL}, {BPAGE[s] * PAGE}", f"s_xor_b32 s{sT0}, s{sK14}, {idx * 16384}", f"s_add_u32 s{sT0}, s{sT0}, s{base}"]
    else:
        prep = [f"s_add_u32 m0, s{sBL}, {BPAGE[s] * PAGE}", f"s_add_u32 s{sT0}, s{base}, {idx * 16384}"]
    return [(prep, f"buffer_load_dwordx4 v{vBD}, {sr(sd)}, s{sT0} offen lds", ("B", s), True),
            ([], f"buffer_load_dwordx4 v{vBD+1}, {sr(sd)}, s{sT0} offen offset:1024 lds", ("B", s), False)]
def it_a(s, t):
    k, idx = step_kind(s)
    if k == "h" and idx < 16: prep = [f"s_xor_b32 s{sT3}, s{sHAK}, {idx * 1024 + t * HRT}"]
    elif k == "h": prep = [f"s_add_u32 s{sT3}, s{sHA2 if idx >= 20 else sHA}, {idx * 1024 + t * HRT}"]
    else: prep = [f"s_xor_b32 s{sT3}, s{sPQ}, {idx * 1024 + t * 32768}"]
    return (prep, f"buffer_load_dwordx4 {ar(areg(s, t))}, v{vL16}, {sr(SWS)}, s{sT3} offen sc1", ("A", s), False)
def emit_item(g, it):
    for x in it[0]: g.e(x)
    g.vmem(it[1], it[2])

def prologue(g):
    e = g.e
    e("s_cmp_ge_u32 s2, 256")
    e("s_cbranch_scc1 L_END")
    g.st.mark(g)
    e("s_load_dwordx16 s[4:19], s[0:1], 0")
    e("s_load_dwordx2 s[20:21], s[0:1], 64")
    if OPT["cpf"] == 1:
        e("s_getpc_b64 s[22:23]")
        e("v_lshlrev_b32 v252, 7, v0")
        g.vmem("global_load_dword v253, v252, s[22:23]", "pf")
    if OPT["cpf"] == 2:
        e("s_getpc_b64 s[22:23]")
        e("s_bfe_u32 s24, s2, 0x30003")
        e("s_lshl_b32 s24, s24, 12")
        e("v_lshrrev_b32 v252, 3, v0")
        e("v_lshl_add_u32 v252, v252, 7, s24")
        g.vmem("global_load_dword v253, v252, s[22:23]", "pf")
    e("v_and_b32 v1, 63, v0")
    e("v_lshrrev_b32 v2, 6, v0")
    if OPT["lin"]: e(f"s_lshr_b32 s{sT0}, s2, 5")
    else: e(f"s_and_b32 s{sT0}, s2, 7")
    e(f"v_readfirstlane_b32 s{sW}, v2")
    if OPT["lin"]: e(f"s_and_b32 s{sT1}, s2, 31")
    else: e(f"s_lshr_b32 s{sT1}, s2, 3")
    e(f"s_and_b32 s{sRB}, s{sT0}, 3")
    e(f"s_lshl_b32 s{sRB}, s{sRB}, 2")
    e(f"s_lshr_b32 s{sT2}, s{sT1}, 3")
    e(f"s_add_u32 s{sRB}, s{sRB}, s{sT2}")
    e(f"s_lshl_b32 s{sRB2}, s{sT0}, 2")
    e(f"s_add_u32 s{sRB2}, s{sRB2}, s{sT2}")
    e(f"s_and_b32 s{sCB}, s{sT1}, 7")
    e(f"s_and_b32 s{sTYP}, s{sCB}, 1")
    e(f"s_lshr_b32 s{sJ}, s{sT0}, 2")
    e(f"s_lshl_b32 s{sJ}, s{sJ}, 2")
    e(f"s_lshr_b32 s{sT0}, s{sCB}, 1")
    e(f"s_add_u32 s{sJ}, s{sJ}, s{sT0}")
    if OPT["rot"] == 1: e(f"s_add_u32 s91, s{sCB}, s{sT2}")
    elif OPT["rot"] == 2: e(f"s_lshl_b32 s91, s{sT2}, 1"); e(f"s_add_u32 s91, s91, s{sCB}")
    elif OPT["rot"] in (3, 4, 5):
        e(f"s_lshr_b32 s91, s{sRB}, 2")
        e("s_lshl_b32 s91, s91, 1")
        e(f"s_and_b32 s92, s{sJ}, 4")
        e("s_add_u32 s91, s91, s92")
        if OPT["rot"] == 4:
            e(f"s_add_u32 s92, s{sCB}, s{sT2}")
            e("s_and_b32 s92, s92, 1")
            e("s_add_u32 s91, s91, s92")
        if OPT["rot"] == 5:
            e(f"s_add_u32 s92, s{sCB}, s{sT2}")
            e("s_and_b32 s92, s92, 3")
            e("s_add_u32 s91, s91, s92")
    else: e("s_mov_b32 s91, 0")
    e("v_lshrrev_b32 v12, 3, v1")
    e("v_and_b32 v13, 7, v1")
    e("v_lshrrev_b32 v14, 1, v12")
    e("v_xor_b32 v15, v13, v14")
    e("v_lshlrev_b32 v15, 4, v15")
    e(f"v_lshl_add_u32 v{vXD}, v12, 10, v15")
    e(f"v_xor_b32 v{vXD+1}, 64, v{vXD}")
    e(f"v_add_u32 v{vXD+2}, {2*7168}, v{vXD}")
    e(f"v_add_u32 v{vXD+3}, {3*7168}, v{vXD+1}")
    e(f"v_add_u32 v{vXD+1}, 7168, v{vXD+1}")
    e("v_and_b32 v14, 1, v14")
    e("v_lshlrev_b32 v14, 2, v14")
    e("v_xor_b32 v15, v13, v14")
    e("v_lshlrev_b32 v15, 4, v15")
    e("s_movk_i32 s97, 2752")
    e("s_movk_i32 s96, 3072")
    e(f"s_cmp_eq_u32 s{sTYP}, 0")
    e("s_cselect_b32 s98, s96, s97")
    e("s_cselect_b32 s99, s97, s96")
    e(f"v_mad_u32_u24 v{vWP}, s98, v12, v15")
    e("s_lshl_b32 s100, s98, 3")
    e("s_sub_u32 s100, s100, 1024")
    e(f"v_add_u32 v{vWP+1}, s100, v{vWP}")
    e(f"s_lshl_b32 s92, s{sRB}, 7")
    e(f"s_lshl_b32 s{sT0}, s{sW}, 5")
    e(f"s_add_u32 s92, s92, s{sT0}")
    e("s_lshl_b32 s92, s92, 10")
    e(f"s_lshl_b32 s93, s{sW}, 4")
    def tab(p):
        e(f"s_add_u32 s{sT0}, s91, {p}")
        e(f"s_and_b32 s{sT0}, s{sT0}, 7")
        e(f"s_lshl_b32 s{sXO+p}, s{sT0}, 7")
        e(f"s_add_u32 s{sXO+p}, s{sXO+p}, s92")
        e(f"s_lshl_b32 s{sT0}, s{sT0}, 6")
        e(f"s_add_u32 s{sT0}, s{sT0}, s93")
        e(f"s_mul_i32 s{sPO+p}, s{sT0}, s98")
        e(f"s_mul_i32 s{sSO+p}, s{sT0}, s99")
    g.tab = tab
    for p in range(3): tab(p)
    e(f"s_lshl_b32 s95, s{sJ}, 7")
    e(f"s_add_u32 s95, s95, 1024")
    e(f"s_lshr_b32 s{sT0}, s{sJ}, 1")
    e(f"s_mul_i32 s{sT0}, s{sT0}, 704")
    e(f"s_and_b32 s{sT1}, s{sJ}, 1")
    e(f"s_lshl_b32 s{sT1}, s{sT1}, 7")
    e(f"s_add_u32 s{sT0}, s{sT0}, s{sT1}")
    e(f"s_lshl_b32 s{SWP+2}, s98, 9")
    e(f"s_lshl_b32 s{SWS2+2}, s99, 9")
    e(f"s_mov_b32 s{SWP+3}, 0x00020000")
    e(f"s_mov_b32 s{SWS2+3}, 0x00020000")
    e(f"s_mov_b32 s{SX+2}, {2048*1024}")
    e(f"s_mov_b32 s{SX+3}, 0x00020000")
    e(f"s_cmp_eq_u32 s{sTYP}, 0")
    e(f"s_cselect_b32 s95, s95, s{sT0}")
    e("s_waitcnt lgkmcnt(0)")
    e(f"s_cselect_b32 s{SWP}, s6, s12")
    e(f"s_cselect_b32 s{SWP+1}, s7, s13")
    e(f"s_cselect_b32 s{SWS2}, s12, s6")
    e(f"s_cselect_b32 s{SWS2+1}, s13, s7")
    e(f"s_mov_b32 s{SX}, s4")
    e(f"s_and_b32 s{SX+1}, s5, 0xffff")
    e(f"s_and_b32 s{SWP+1}, s{SWP+1}, 0xffff")
    e(f"s_mov_b32 s{SWO}, s8")
    e(f"s_and_b32 s{SWO+1}, s9, 0xffff")
    e(f"s_mov_b32 s{sCOL[0]}, s95")
    e(f"s_lshl_b32 s{sXL}, s{sW}, 12")
    e(f"s_lshl_b32 s{sBL}, s{sW}, 11")

def setup1(g):
    e = g.e
    e(f"s_and_b32 s{SWS2+1}, s{SWS2+1}, 0xffff")
    e(f"s_mov_b32 s{SWO+2}, {512*1024}")
    e(f"s_mov_b32 s{SWO+3}, 0x00020000")
    srd(g, SWS, 20, WS_BYTES)
    srd(g, SDBG, 18, 256)
    srd(g, SW2, 14, 1376 * 1024)
    srd(g, SOUT, 16, 2048 * 1024)
    e(f"s_lshr_b32 s{sM}, s{sW}, 1")
    e(f"s_and_b32 s{sN}, s{sW}, 1")
    for p in range(3, 8): g.tab(p)

def setup2(g):
    e = g.e
    t = T
    e(f"v_mad_u32_u24 v{vWS}, s99, v12, v15")
    e("s_lshl_b32 s100, s99, 3")
    e("s_sub_u32 s100, s100, 1024")
    e(f"v_add_u32 v{vWS+1}, s100, v{vWS}")
    e(f"v_lshl_add_u32 v{vBD}, v12, 10, v15")
    e(f"v_add_u32 v{vBD+1}, 7168, v{vBD}")
    e(f"s_and_b32 s{sT0}, s{sJ}, 1")
    e(f"s_cmp_eq_u32 s{sJ}, 6")
    e(f"s_cselect_b32 s{sT0}, 1, s{sT0}")
    e(f"s_and_b32 s101, s{sT0}, s{sTYP}")
    e(f"v_bfe_u32 v{vSKIP}, v15, 6, 1")
    e(f"v_and_b32 v{vSKIP}, s101, v{vSKIP}")
    e(f"v_lshlrev_b32 v{vSKIP}, 30, v{vSKIP}")
    e(f"v_and_b32 v{t}, 31, v1")
    e(f"v_lshrrev_b32 v{t+1}, 5, v1")
    e(f"v_bfe_u32 v{t+2}, v1, 1, 3")
    e(f"s_lshl_b32 s{sT1}, s{sM}, 6")
    e(f"s_lshl_b32 s{sT0}, s{sN}, 5")
    e(f"s_add_u32 s{sT1}, s{sT1}, s{sT0}")
    e(f"v_add_u32 v{t+3}, s{sT1}, v{t}")
    e(f"v_lshlrev_b32 v{t+4}, 7, v{t+3}")
    for u in range(4):
        e(f"s_xor_b32 s{sT0}, s{sM}, {u}")
        e(f"s_lshl_b32 s{sT0}, s{sT0}, 1")
        e(f"v_add_u32 v{t+5}, s{sT0}, v{t+1}")
        e(f"v_xor_b32 v{t+5}, v{t+5}, v{t+2}")
        e(f"v_lshl_add_u32 v{vXA[0]+u}, v{t+5}, 4, v{t+4}")
        e(f"v_xor_b32 v{vXA[1]+u}, 0x1000, v{vXA[0]+u}")
    e(f"v_lshlrev_b32 v{vSTO}, 2, v{t+3}")
    e(f"v_add_u32 v{vSTO}, {M_RM}, v{vSTO}")
    e(f"v_xor_b32 v{vSTX}, 0x80, v{vSTO}")
    e(f"v_bfe_u32 v{t+5}, v1, 2, 2")
    e(f"v_and_b32 v{t+6}, 3, v1")
    e(f"v_bfe_u32 v{t+7}, v1, 4, 1")
    e(f"v_lshrrev_b32 v{t+8}, 1, v{t+6}")
    e(f"v_lshl_add_u32 v{t+8}, v{t+7}, 1, v{t+8}")
    e(f"v_lshrrev_b32 v{t+9}, 1, v{t+5}")
    e(f"v_lshlrev_b32 v{t+9}, 2, v{t+9}")
    e(f"v_xor_b32 v{t+8}, v{t+8}, v{t+9}")
    e(f"v_lshlrev_b32 v{t+8}, 4, v{t+8}")
    e(f"v_and_b32 v{t+9}, 1, v{t+6}")
    e(f"v_lshl_add_u32 v{t+8}, v{t+9}, 3, v{t+8}")
    e(f"v_lshl_add_u32 v{t+8}, v{t+5}, 7, v{t+8}")
    e(f"v_lshl_add_u32 v247, v{t+1}, 9, v{t+8}")
    e(f"v_lshl_add_u32 v{t+9}, v{t+1}, 10, v{t+8}")
    e(f"s_lshl_b32 s{sT0}, s{sN}, 6")
    e(f"v_xor_b32 v{t+9}, s{sT0}, v{t+9}")
    e(f"s_lshl_b32 s{sT0}, s{sM}, 11")
    e(f"v_add_u32 v{vWA}, s{sT0}, v{t+9}")
    e(f"v_subrev_u32 v{vWA+1}, s{sT0}, v{t+9}")
    e(f"v_add_u32 v{vWA+1}, 2048, v{vWA+1}")
    for r in (1, 2):
        e(f"v_add_u32 v{vWA+2*r}, {65536*r}, v{vWA}")
        e(f"v_add_u32 v{vWA+2*r+1}, {65536*r}, v{vWA+1}")
    e(f"v_lshlrev_b32 v{vL16}, 4, v1")
    e(f"v_cmp_eq_u32 {sr(mB4,2)}, 1, v{t+7}")
    e(f"v_cmp_eq_u32 {sr(mH,2)}, 1, v{t+1}")
    e(f"v_and_b32 v{t+9}, 1, v1")
    e(f"v_cmp_eq_u32 {sr(mB0,2)}, 1, v{t+9}")
    e(f"v_and_b32 v{t+10}, 2, v1")
    e(f"v_cmp_eq_u32 {sr(mB1,2)}, 2, v{t+10}")
    e(f"v_cmp_eq_u32 vcc, v{t+9}, v{t+7}")
    e(f"v_mov_b32 v{t+10}, 0x3f803f80")
    for r in range(4): e(f"v_cndmask_b32 v{MO+r}, 0, v{t+10}, vcc")
    for r in range(1, 4):
        e(f"v_mov_b32 v{AAUG[0]+r}, 0"); e(f"v_mov_b32 v{AAUG[1]+r}, 0"); e(f"v_mov_b32 v{BAUG+r}, 0")
    e(f"v_mov_b32 v{vZERO}, 0")
    e(f"s_mov_b32 s{sLOG}, 0x3fb8aa3b")
    e(f"s_mov_b32 s{sLOG+1}, 0x3fb8aa3b")
    e(f"s_mov_b32 s{sEPS}, 0x%08x" % f2u(1e-6))
    e(f"s_lshl_b32 s{sT0}, s{sN}, 1")
    e(f"s_add_u32 s{sT0}, s{sT0}, s{sM}")
    e(f"s_lshl_b32 s{sT0}, s{sT0}, 7")
    e(f"s_add_u32 s{sT0}, s{sT0}, {M_CS}")
    e(f"v_lshl_add_u32 v{vCSW}, v{t}, 2, s{sT0}")
    e(f"v_xor_b32 v{vCSR}, 0x80, v{vCSW}")
    e(f"v_lshlrev_b32 v{t+9}, 4, v{t+1}")
    e(f"s_lshl_b32 s{sT0}, s{sT1}, 2")
    e(f"s_add_u32 s{sT0}, s{sT0}, {M_RR}")
    e(f"v_add_u32 v{vRR}, s{sT0}, v{t+9}")
    e(f"v_xor_b32 v{vRR+1}, 0x80, v{vRR}")
    e(f"s_lshl_b32 s{sT0}, s{sRB}, 2")
    e(f"s_lshl_b32 s{sT2}, s{sM}, 1")
    e(f"s_add_u32 s{sT0}, s{sT0}, s{sT2}")
    e(f"s_add_u32 s{sRT[0]}, s{sT0}, s{sN}")
    e(f"s_xor_b32 s{sRT[1]}, s{sRT[0]}, 1")
    e(f"v_and_b32 v{t+9}, 15, v1")
    e(f"v_lshlrev_b32 v{vFLO}, 3, v{t+9}")
    e(f"v_lshlrev_b32 v{vCTLO}, 2, v1")
    e(f"s_lshr_b32 s{sT0}, s{sJ}, 1")
    e(f"s_mul_i32 s{sT0}, s{sT0}, 704")
    e(f"s_and_b32 s{sT1}, s{sJ}, 1")
    e(f"s_lshl_b32 s{sT2}, s{sT1}, 7")
    e(f"s_add_u32 s{sT2}, s{sT2}, s{sT0}")
    e(f"s_add_u32 s{sCOL[2]}, s{sT2}, 256")
    e(f"s_lshl_b32 s{sT1}, s{sT1}, 6")
    e(f"s_sub_u32 s{sT0}, s{sT0}, s{sT1}")
    e(f"s_add_u32 s{sT0}, s{sT0}, 576")
    e(f"s_lshl_b32 s{sCOL[1]}, s{sJ}, 7")
    e(f"s_add_u32 s{sT2}, s{sCOL[1]}, 2048")
    e(f"s_cmp_eq_u32 s{sTYP}, 0")
    e(f"s_cselect_b32 s{sCOL[1]}, s{sT2}, s{sCOL[1]}")
    e(f"s_cselect_b32 s{sCOL[2]}, s{sCOL[2]}, s{sT0}")
    e(f"s_lshl_b32 s{sT0}, s{sN}, 11")
    e(f"s_lshl_b32 s{sHST[1]}, s{sJ}, 12")
    e(f"s_add_u32 s{sHST[1]}, s{sHST[1]}, s{sT0}")
    e(f"s_add_u32 s{sHST[1]}, s{sHST[1]}, {QB}")
    e(f"s_lshr_b32 s{sT1}, s{sJ}, 1")
    e(f"s_mul_i32 s{sT1}, s{sT1}, 10240")
    e(f"s_add_u32 s{sT0}, s{sT0}, s{sT1}")
    for c in (0, 2):
        e(f"s_lshl_b32 s{sHST[c]}, s{sCOL[c]}, 5")
        e(f"s_add_u32 s{sHST[c]}, s{sHST[c]}, s{sT0}")
    e(f"s_and_b32 s{sT0}, s101, s{sN}")
    e(f"s_cmp_eq_u32 s{sT0}, 1")
    e(f"s_cselect_b32 s{sHST[2]}, {OOB}, s{sHST[2]}")
    e(f"s_lshl_b32 s{sT0}, s{sCB}, 7")
    e(f"s_mul_i32 s{sB2}, s{sW}, {22 * 16 * 1024}")
    e(f"s_add_u32 s{sB2}, s{sB2}, s{sT0}")
    e(f"s_lshl_b32 s{sBO}, s{sW}, 17")
    e(f"s_add_u32 s{sBO}, s{sBO}, s{sT0}")
    e(f"s_lshl_b32 s{sXR}, s{sRB2}, 16")
    e(f"s_add_u32 s{sXR}, s{sXR}, s{sT0}")
    e(f"s_add_u32 s{sXR+1}, s{sXR}, 32768")
    e(f"s_lshl_b32 s{sHA}, s{sRB2}, 3")
    e(f"s_add_u32 s{sHA}, s{sHA}, s{sW}")
    e(f"s_lshl_b32 s{sHA}, s{sHA}, 15")
    e(f"s_cmp_eq_u32 s{sW}, 3")
    e(f"s_cselect_b32 s{sHA2}, {OOB}, s{sHA}")
    e(f"s_lshl_b32 s{sPQ}, s{sRB2}, 6")
    e(f"s_lshl_b32 s{sT0}, s{sW}, 3")
    e(f"s_add_u32 s{sPQ}, s{sPQ}, s{sT0}")
    e(f"s_lshl_b32 s{sPQ}, s{sPQ}, 10")
    e(f"s_add_u32 s{sPQ}, s{sPQ}, {QB}")
    e(f"s_mul_i32 s{sKV}, s{sW}, {8 * KVH}")
    e(f"s_add_u32 s{sKV}, s{sKV}, {KVB}")
    if STAMP: e("v_writelane_b32 v255, s2, 63")
    e(f"s_lshl_b32 s{sFL}, s{sRB2}, 2")
    e(f"s_add_u32 s{sFL}, s{sFL}, s{sW}")
    e(f"s_lshl_b32 s{sFL}, s{sFL}, 7")
    e(f"s_add_u32 s{sFL}, s{sFL}, {FLB}")
    e(f"s_lshl_b32 s{sKF}, s{sW}, 10")
    e(f"s_add_u32 s{sKF}, s{sKF}, {KFB}")

def I(t, c=1): return ("i", t, c)
def setup3_ops():
    L = [I(f"v_add_u32 v{vBT}, s{sBL}, v247"), I(f"v_xor_b32 v{vBT+1}, 64, v{vBT}")]
    for r in (1, 2):
        L += [I(f"v_add_u32 v{vBT+2*r}, {65536*r}, v{vBT}"), I(f"v_add_u32 v{vBT+2*r+1}, {65536*r}, v{vBT+1}")]
    L += [I(f"v_lshrrev_b32 v{vXD}, 5, v1"),
          I(f"v_lshlrev_b32 v{vXD+1}, 8, v{vXD}"),
          I(f"v_lshl_add_u32 v{vXD+1}, v{vFLO}, 1, v{vXD+1}"),
          I(f"v_lshlrev_b32 v{vXD}, 4, v{vXD}"),
          I(f"v_add_u32 v{vXD}, 1024, v{vXD}"),
          I(f"v_cndmask_b32 v{vKVO}, v{vXD+1}, v{vXD}, {sr(mB4,2)}"),
          I(f"v_add_u32 v{vXD+1}, 480, v{vXD+1}"),
          I(f"v_cndmask_b32 v{vXD+2}, v{vXD+1}, v{vXD}, {sr(mB4,2)}"),
          I(f"v_lshrrev_b32 v{vXD}, 3, v0"),
          I(f"v_and_b32 v{vXD+1}, 7, v0"),
          I(f"v_lshlrev_b32 v{vXD+1}, 4, v{vXD+1}"),
          I(f"v_lshl_add_u32 v{vXO}, v{vXD}, 10, v{vXD+1}")]
    return L

def read_x1(g, p, u, t):
    off = XPAGE[p % 5] * PAGE
    if off < 65536:
        g.ds(f"ds_read_b128 {ar(X(t, p, u))}, v{vXA[t] + u} offset:{off}", ("X", p, u))
    else:
        g.e(f"v_add_u32 v{vTMP}, {off}, v{vXA[t] + u}")
        g.ds(f"ds_read_b128 {ar(X(t, p, u))}, v{vTMP}", ("X", p, u))
def read_x(g, p, u):
    for t in range(2): read_x1(g, p, u, t)
def read_w(g, step):
    gi, u = step >> 2, step & 3
    b = WF[step % 3]
    pg = WPAGE[gi]
    off = (pg & 7) * PAGE + (u & ~1) * 2048
    a = vWA + 2 * (pg >> 3) + (u & 1)
    g.ds(f"ds_read_b64_tr_b16 v[{b}:{b+1}], v{a} offset:{off}", ("Wf", step))
    g.ds(f"ds_read_b64_tr_b16 v[{b+2}:{b+3}], v{a} offset:{off + 512}", ("Wf", step))

def flag_store(addr_ops, tag):
    return [("blk", addr_ops, 6), ("waitvm", tag),
            ("blk", ["s_mov_b64 exec, 1",
                     ("vm", f"buffer_store_dwordx2 v[{vNON}:{vNON+1}], v{vZERO}, {sr(SWS)}, s{sT1} offen sc1"),
                     "s_mov_b64 exec, -1"], 4)]
def flag_addr(kind):
    return [f"s_lshl_b32 s{sT1}, s{sRB}, 1", f"s_add_u32 s{sT1}, s{sT1}, s{sM}", f"s_lshl_b32 s{sT1}, s{sT1}, 2",
            f"s_lshr_b32 s{sT2}, s{sJ}, 1", f"s_add_u32 s{sT1}, s{sT1}, s{sT2}", f"s_lshl_b32 s{sT1}, s{sT1}, 4",
            f"s_and_b32 s{sT2}, s{sJ}, 1", f"s_lshl_b32 s{sT2}, s{sT2}, 1", f"s_add_u32 s{sT1}, s{sT1}, s{sT2}",
            f"s_add_u32 s{sT1}, s{sT1}, s{sN}", f"s_add_u32 s{sT1}, s{sT1}, {kind * 4}", f"s_lshl_b32 s{sT1}, s{sT1}, 3",
            f"s_add_u32 s{sT1}, s{sT1}, {FLB}"]
def kvflag_addr():
    return [f"s_lshl_b32 s{sT1}, s{sRB}, 2", f"s_add_u32 s{sT1}, s{sT1}, s{sW}", f"s_lshl_b32 s{sT1}, s{sT1}, 3",
            f"s_lshl_b32 s{sT2}, s{sJ}, 9", f"s_add_u32 s{sT1}, s{sT1}, s{sT2}", f"s_add_u32 s{sT1}, s{sT1}, {KFB}"]
def bfr(d, s): return [I(f"v_cvt_pk_bf16_f32 v{d}, v{s}, v{s}"), I(f"v_and_b32 v{d}, 0xffff0000, v{d}")]
SEL = ["op_sel:[0,0] op_sel_hi:[1,0]", "op_sel:[0,1] op_sel_hi:[1,1]"]
SEL3 = ["op_sel:[0,0,0] op_sel_hi:[1,0,1]", "op_sel:[0,1,0] op_sel_hi:[1,1,1]"]

def epilogue(c, typ, fast):
    L = []
    A = ACCS[c & 1]
    corient = (typ == 0 and c < 2)
    t = T; cs = vCSV
    bau = [I(f"v_add_f32 v{cs}, v{cs}, v{vCSP}"),
           I(f"v_cvt_pk_bf16_f32 v{t}, -v{cs}, -v{cs}"),
           I(f"v_and_b32 v{t}, 0xffff0000, v{t}"),
           I(f"v_sub_f32 v{t}, -v{cs}, v{t}"),
           I(f"v_cvt_pk_bf16_f32 v{t}, -v{cs}, v{t}"),
           I(f"v_cndmask_b32 v{BAUG}, v{t}, 0, {sr(mH,2)}")]
    if c == 0:
        L += [I(f"v_cndmask_b32 v{t+1}, v{S1}, v{S1+1}, {sr(mB4,2)}")]
        L += [I(f"v_add_f32 v{Q0+r}, v{Q0+r}, v{Q1+r}") for r in range(4)]
        L += [I(f"v_cndmask_b32 v{t+2}, v{Q0}, v{Q0+1}, {sr(mB0,2)}"),
              I(f"v_cndmask_b32 v{t+3}, v{Q0+2}, v{Q0+3}, {sr(mB0,2)}"),
              I(f"v_cndmask_b32 v{t+2}, v{t+2}, v{t+3}, {sr(mB1,2)}"),
              I(f"v_mov_b32 v{t+3}, v{t+2}"),
              I(f"v_mul_f32 v{t+1}, 0x3b000000, v{t+1}"),
              I(f"v_cvt_pk_bf16_f32 v{AAUG[0]}, v{t+1}, v{t+1}"),
              I(f"v_permlane32_swap_b32 v{t+2}, v{t+3}"),
              I(f"v_add_f32 v{t+2}, v{t+2}, v{t+3}"),
              I(f"v_mul_f32 v{t+2}, 0x3b000000, v{t+2}"),
              I(f"v_fma_f32 v{t+2}, -v{t+1}, v{t+1}, v{t+2}"),
              I(f"v_max_f32 v{t+2}, 0, v{t+2}")]
        L += bfr(t+2, t+2)
        L += [I(f"v_add_f32 v{t+2}, 0x%08x, v{t+2}" % f2u(1e-5))]
        L += bfr(t+2, t+2)
        L += [I(f"v_sqrt_f32 v{t+2}, v{t+2}", 2), ("ds", f"ds_write_b32 v{vSTO}, v{AAUG[0]}", "fw")]
        L += bfr(t+2, t+2)
        L += [I(f"v_rcp_f32 v{RL}, v{t+2}", 2), bau[0]]
        L += [("ds", f"ds_write_b32 v{vSTO}, v{RL} offset:512", "fw"), ("bar", bau[1:])]
        L += [("ds", f"ds_read_b32 v{AAUG[1]}, v{vSTX}", "fr"), ("ds", f"ds_read_b32 v{RL+1}, v{vSTX} offset:512", "fr")]
        if typ == 0:
            for tt in range(2):
                for q in range(4):
                    L += [("ds", f"ds_read_b128 {vr(RROW[tt] + 4*q)}, v{vRR+tt} offset:{32*q}", "fr")]
        L += [("delay", 1), ("waitlg", "fr")]
    else:
        L += bau
    for tt in range(2):
        a, b = (vr(AAUG[tt]), vr(BAUG)) if corient else (vr(BAUG), vr(AAUG[tt]))
        L += [("mfma", f"v_mfma_f32_32x32x16_bf16 {vr(A[tt],16)}, {a}, {b}, {vr(A[tt],16)}")]
    L += [("delay", 1)]
    def pk(op, d, a, b, c3=None, mod=""):
        s = f"{op} v[{d}:{d+1}], v[{a}:{a+1}], {b}"
        if c3 is not None: s += f", v[{c3}:{c3+1}]"
        return s + (" " + mod if mod else "")
    def cvt(tt, d): return [I(f"v_cvt_pk_bf16_f32 v{d+q}, v{A[tt]+2*q}, v{A[tt]+2*q+1}") for q in range(8)]
    def store(tt, d, stride, tag):
        return [("st", [([f"s_mul_i32 s{sT3}, s{sRT[tt]}, {stride}", f"s_add_u32 s{sT3}, s{sT3}, s{sHST[c]}"],
                         f"buffer_store_dwordx4 {vr(d)}, v{vL16}, {sr(SWS)}, s{sT3} offen sc1", tag, True),
                        ([], f"buffer_store_dwordx4 {vr(d+4)}, v{vL16}, {sr(SWS)}, s{sT3} offen offset:1024 sc1", tag, False)])]
    tag = "st%d" % c
    if c == 1 and typ == 1:
        L += [("burst", [pk("v_pk_mul_f32", t+16*tt+2*q, A[tt]+2*q, f"v[{RLL}:{RLL+1}]", None, SEL[tt]) for tt in range(2) for q in range(8)])]
        L += [("rate", OPT["qrate"])]
        for tt in range(2):
            for r in range(16):
                L += [I(f"v_exp_f32_e64 v{t+16*tt+r}, v{t+16*tt+r} clamp", 2), I(f"v_max_f32 v{A[tt]+r}, v{EPSR+tt}, v{A[tt]+r}")]
        L += [("burst", [pk("v_pk_fma_f32", A[tt]+2*q, A[tt]+2*q, f"v[{RL}:{RL+1}]", t+16*tt+2*q, SEL3[tt]) for tt in range(2) for q in range(8)])]
        for tt in range(2): L += cvt(tt, VF + 8*tt) + store(tt, VF + 8*tt, 32768, tag)
        L += [("rate", 0), ("delay", OPT["fdelay"])] + flag_store(flag_addr(1), tag)
    elif c == 0 and typ == 0:
        B = [pk("v_pk_mul_f32", A[tt]+2*q, A[tt]+2*q, f"v[{RROW[tt]+2*q}:{RROW[tt]+2*q+1}]") for tt in range(2) for q in range(8)]
        B += [pk("v_pk_mul_f32", t+16*tt+2*q, A[tt]+2*q, sr(sLOG, 2)) for tt in range(2) for q in range(8)]
        L += [("burst", B), ("rate", OPT["krate"])]
        for tt in range(2):
            for r in range(16):
                L += [I(f"v_exp_f32_e64 v{t+16*tt+r}, v{t+16*tt+r} clamp", 2), I(f"v_max_f32 v{A[tt]+r}, s{sEPS}, v{A[tt]+r}")]
        L += [("burst", [pk("v_pk_add_f32", A[tt]+2*q, A[tt]+2*q, f"v[{t+16*tt+2*q}:{t+16*tt+2*q+1}]") for tt in range(2) for q in range(8)])]
        for tt in range(2): L += cvt(tt, PK + 8*tt)
        L += [("rate", 0)]
    elif c == 1 and typ == 0:
        B = [pk("v_pk_mul_f32", A[tt]+2*q, A[tt]+2*q, f"v[{RROW[tt]+2*q}:{RROW[tt]+2*q+1}]") for tt in range(2) for q in range(8)]
        B += [x[1] for tt in range(2) for x in cvt(tt, VF + 8*tt)]
        L += [("burst", B)]
        KVA = A[0]
        adr = [I(f"v_bfe_u32 v{t+16}, v1, 4, 1"), I(f"v_mul_u32_u24 v{t+16}, {KVH}, v{t+16}"),
               ("blk", [f"s_mul_i32 s{sT1}, s{sM}, 4352", f"s_mul_i32 s{sT2}, s{sN}, 2176", f"s_add_u32 s{sT1}, s{sT1}, s{sT2}",
                        f"s_add_u32 s{sT1}, s{sT1}, {M_KV}", f"v_add_u32 v{t+16}, s{sT1}, v{t+16}"], 5),
               I(f"v_lshrrev_b32 v{t+17}, 5, v1"),
               I(f"v_lshrrev_b32 v{t+18}, 1, v{vFLO}"), I(f"v_add_u32 v{t+18}, v{t+18}, v{t+16}"),
               I(f"v_lshl_add_u32 v{t+16}, v{t+17}, 8, v{t+16}"),
               I(f"v_lshl_add_u32 v{t+16}, v{vFLO}, 1, v{t+16}"), I(f"v_lshlrev_b32 v{t+19}, 2, v0"),
               I(f"v_add_u32 v{t+20}, {M_KV}, v{t+19}"),
               I(f"v_cndmask_b32 v{t+8}, v{S1}, v{S1+1}, {sr(mB4,2)}"),
               ("ds", f"ds_write_b32 v{t+18}, v{t+8} offset:1024", "fw")]
        ms = []
        for i in range(4): ms.append(f"v_mfma_f32_16x16x32_bf16 {vr(S1)}, {vr(MO)}, {vr(PK+4*i)}, {'0' if i == 0 else vr(S1)}")
        L.insert(len(L) - 1, ("burst", ms))
        ms = []
        for i in range(4): ms.append(f"v_mfma_f32_32x32x16_bf16 {vr(KVA,16)}, {vr(PK+4*i)}, {vr(VF+4*i)}, {'0' if i == 0 else vr(KVA,16)}")
        L += [("mfmas", ms, adr), ("delay", 1)]
        L += [I(f"v_cndmask_b32 v{t+r}, v{KVA+r}, v{KVA+8+r}, {sr(mB4,2)}") for r in range(8)]
        L += [("ds", f"ds_write_b128 v{t+16}, {vr(t)}", "fw"), ("ds", f"ds_write_b128 v{t+16}, {vr(t+4)} offset:512", "fw")]
        L += [("bar", setup3_ops())]
        L += [("ds", f"ds_read2st64_b32 v[{t+2*i}:{t+2*i+1}], v{t+20} offset0:{4*i} offset1:{17+4*i}", "fr") for i in range(5)]
        L += [("delay", 1), ("waitlg", "fr")]
        L += [I(f"v_add_f32 v{t+2*i}, v{t+2*i}, v{t+2*i+1}") for i in range(5)]
        its = []
        for i in range(4):
            prep = [f"s_mul_i32 s{sT3}, s{sJ}, 4352", f"s_add_u32 s{sT3}, s{sT3}, {KVB}"] if i == 0 else []
            its.append((prep, f"buffer_atomic_add_f32 v{t+2*i}, v{t+19}, {sr(SWS)}, s{sT3} offen offset:{1024*i}", "at", True))
        its.append(([f"s_add_u32 s{sT3}, s{sT3}, 4096", f"s_cmp_eq_u32 s{sW}, 0", f"s_cselect_b32 s{sT3}, s{sT3}, {OOB}"],
                    f"buffer_atomic_add_f32 v{t+8}, v{t+19}, {sr(SWS)}, s{sT3} offen", "at", False))
        L += [("st", its), ("delay", OPT["adelay"])] + flag_store(kvflag_addr(), "at")
    else:
        if not fast and OPT["hb"]:
            L += [("burst", [pk("v_pk_mul_f32", A[tt]+2*q, A[tt]+2*q, f"v[{RL}:{RL+1}]", None, SEL[tt]) for tt in range(2) for q in range(8)])]
        for tt in range(2):
            d = VF + 8*tt
            if fast: L += [I(pk("v_pk_mul_f32", A[tt]+2*q, A[tt]+2*q, f"v[{RL}:{RL+1}]", None, SEL[tt])) for q in range(8)]
            elif not OPT["hb"]: L += [I(f"v_mul_f32 v{A[tt]+r}, v{RL+tt}, v{A[tt]+r}") for r in range(16)]
            for hf in range(2):
                L += [I(f"v_cvt_pk_bf16_f32 v{d+q}, v{A[tt]+2*q}, v{A[tt]+2*q+1}") for q in range(4*hf, 4*hf+4)]
                L += [I(f"v_pk_max_i16 v{d+q}, v{d+q}, 0") for q in range(4*hf, 4*hf+4)]
                if fast: L += [("st", [store(tt, d, HRT, tag)[0][1][hf]])]
            if not fast: L += store(tt, d, HRT, tag)
        kind = 0 if c == 0 else (2 if typ == 0 else 3)
        if c == 0:
            L += [I(f"v_mul_f32 v{RLL+tt}, s{sLOG}, v{RL+tt}") for tt in range(2)]
            L += [I(f"v_rcp_f32 v{EPSR+tt}, v{RL+tt}", 2) for tt in range(2)]
            L += setup3_ops()
            L += [I(f"v_mul_f32 v{EPSR+tt}, s{sEPS}, v{EPSR+tt}") for tt in range(2)]
        L += [("delay", OPT["hdelay"])] if not fast else [("late",)]
        L += flag_store(flag_addr(kind), tag)
    return L

class Sched:
    def __init__(self, g, typ):
        self.g = g; self.typ = typ
        self.q = []; self.side = []; self.wait_bar = False; self.delay = 0
        self.wq = []; self.sq = []; self.aq = []; self.bq = []
        self.cur = None
        self.bar = -1; self.free_stage = 0; self.tok = 0.0; self.extra = 0; self.pages = []; self.bnext = 0; self.step = 0
    def adv(self, cy): self.tok = min(2.0, self.tok + cy / (OPT["pc2"] if 16 <= self.bar < 24 else OPT["period"]))
    def pick(self, force=False):
        if self.cur is not None: return self.cur
        if self.sq: return self.sq
        if self.wq and self.wq[0][0] <= self.bar and (self.tok >= 1 or force or self.wq[0][2][2][1] <= self.bar + 4): return self.wq
        if self.tok < 1 and not force: return None
        a_ok = self.aq and self.aq[0][0] < self.free_stage
        if not self.bq and self.bnext < 30 and self.pages and not self.wq and not (self.bar < 24 and self.step >= OPT["quiet"]):
            BPAGE[self.bnext] = self.pages.pop(0)
            self.bq = [(0, 0, it) for it in it_b(self.bnext)]; self.bnext += 1
        b_ok = bool(self.bq)
        if a_ok and b_ok:
            sa = self.aq[0][2][2][1]; sb = self.bq[0][2][2][1]
            if sa == 99: sa = 0
            return self.bq if sb <= sa + OPT["bl"] else self.aq
        if a_ok: return self.aq
        if b_ok: return self.bq
        return None
    def vm(self, force=False):
        q = self.pick(force)
        if q is None: return 0
        it = q.pop(0)[2] if q is not self.sq else q.pop(0)
        emit_item(self.g, it)
        self.cur = q if it[3] else None
        tg = it[2]
        isw1 = isinstance(tg, tuple) and tg[0] == "W" and ((self.typ == 0 and tg[1] >= 16) or (self.typ == 1 and not 8 <= tg[1] < 16))
        self.tok -= OPT["w1w"] / 10.0 if isw1 else 0.3 if tg == "at" else 1
        self.tok = max(self.tok, -OPT["debt"])
        return len(it[0]) + 2
    def emit1(self, op):
        g = self.g; k = op[0]
        if k == "i": g.e(op[1])
        elif k == "ds": g.ds(op[1], op[2])
        elif k == "vm": g.vmem(op[1], op[2] if len(op) > 2 else "misc")
        elif k == "mfma": g.e(op[1])
        elif k == "waitlg": g.wait(lg=op[1])
        elif k == "waitvm":
            if VERB: print("   typ", self.typ, "waitvm", op[1], "at step", self.step)
            while self.sq or self.cur is not None: self.vm(True)
            g.wait(vm=op[1])
        elif k in ("blk", "burst"):
            for x in op[1]:
                if isinstance(x, str): g.e(x)
                else: self.emit1(x)
        elif k == "st":
            if VERB: print("   typ", self.typ, "st", op[1][0][2], "at step", self.step)
            self.sq += op[1]
    def cost(self, op):
        k = op[0]
        if k in ("i", "blk"): return op[2]
        return {"ds": 1, "vm": 2, "waitlg": 1, "waitvm": 1, "st": 0}[k]
    def tick(self):
        if self.delay > 0: self.delay -= 1
    def fill(self, slots):
        slots = min(slots, 4) + self.extra
        while slots > 0:
            if self.side: q = self.side
            elif self.q and not self.wait_bar and self.delay == 0: q = self.q
            else: return
            op = q[0]
            if op[0] in ("mfma", "mfmas", "late", "burst"): return
            if op[0] == "bar": q.pop(0); self.wait_bar = True; self.side = list(op[1]); continue
            if op[0] == "delay": q.pop(0); self.delay = op[1]; return
            if op[0] == "rate": q.pop(0); self.extra = op[1]; continue
            if op[0] == "i" and self.cost(op) > slots: return
            q.pop(0); slots -= self.cost(op); self.emit1(op)
    def big(self):
        while self.q and not self.side and self.q[0][0] in ("mfma", "mfmas", "burst") and not self.wait_bar and self.delay == 0:
            op = self.q.pop(0)
            if op[0] == "burst":
                for n, x in enumerate(op[1]):
                    self.g.e(x)
                    if n % 16 == 15: self.adv(72); self.vm()
            elif op[0] == "mfma":
                self.g.e(op[1]); self.adv(32); self.vm()
            else:
                self.side = list(op[2]); self.delay = 1
                for m in op[1]:
                    self.g.e(m); self.adv(32); self.fill(6 - self.vm())
                while self.side: self.emit1(self.side.pop(0))
                self.delay = 0
                return
    def drain(self, until_late=False):
        while self.side: self.emit1(self.side.pop(0))
        if self.wait_bar and self.q:
            self.g.wait(lg="fw"); self.g.e("s_barrier")
        self.wait_bar = False; self.delay = 0
        while self.q:
            op = self.q[0]
            if op[0] == "late":
                if until_late: return
                self.q.pop(0); continue
            self.q.pop(0)
            if op[0] == "bar":
                for x in op[1]: self.emit1(x)
                self.g.wait(lg="fw"); self.g.e("s_barrier"); continue
            if op[0] == "delay": continue
            if op[0] == "rate": self.extra = op[1]; continue
            if op[0] == "mfmas":
                for m in op[1]: self.g.e(m)
                for x in op[2]: self.emit1(x)
                continue
            self.emit1(op)
            if op[0] == "st":
                while self.sq or (self.cur is not None and self.cur is not self.sq): self.vm(True)

npoll = [0]
def poll(g, first_tag, reload, check):
    if OPT["dbg"] & 1: return
    n = npoll[0]; npoll[0] += 1
    g.wait(vm=first_tag)
    g.e(f"s_mov_b32 s{sT2}, 0")
    check()
    g.e(f"s_cbranch_scc1 L_POK{n}")
    g.label(f"L_PL{n}")
    if OPT["slp"]: g.e("s_sleep %d" % OPT["slp"])
    g.e(reload)
    g.e("s_waitcnt vmcnt(0)")
    g.e(f"s_add_u32 s{sT2}, s{sT2}, 1")
    g.e(f"s_cmp_gt_u32 s{sT2}, {OPT['spin']}")
    g.e(f"s_cbranch_scc1 L_POK{n}")
    check()
    g.e(f"s_cbranch_scc0 L_PL{n}")
    g.label(f"L_POK{n}")
    g.e("s_nop 4")
    if STAMP == 1: g.e(f"v_writelane_b32 v255, s{sT2}, {52 + n % 5}")

CTL_LD = f"buffer_load_dword v{vCTL}, v{vCTLO}, {sr(SDBG)}, 0 offen sc1"
FLG_LD = f"buffer_load_dwordx2 v[{vFLG}:{vFLG+1}], v{vFLO}, {sr(SWS)}, s{sFL} offen sc1"
KFL_LD = f"buffer_load_dwordx4 {vr(vKFL)}, v{vL16}, {sr(SWS)}, s{sKF} offen sc1"
def flag_check(g, mask):
    def f():
        g.e(f"v_cmp_eq_u64 vcc, v[{vFLG}:{vFLG+1}], {sr(sNON,2)}")
        g.e(f"s_and_b32 vcc_lo, vcc_lo, {mask}")
        g.e(f"s_cmp_eq_u32 vcc_lo, {mask}")
    return f

def body(g, typ):
    e = g.e
    S = Sched(g, typ)
    S.wq = [(-1, 0, it) for it in g.wq0]
    S.cur = S.wq if g.cur_open else None
    for p in range(4, 8):
        S.wq += [(p - 4, 0, it) for it in it_x(p)] + [(-1, 0, it) for it in it_w(typ, p)]
    for k, gi in enumerate(WORDER):
        if OPT["dpf"] and OPT["dpos"] == 2 and k == OPT["dk"]: S.wq += [(-1, 0, it) for it in it_touch()]
        if k == OPT["t3"]: S.wq += [(-1, 0, it) for it in it_touch3()]
        S.wq += [(max(WAV[gi], OPT['wp'] if k >= 4 else -1), 0, it) for it in it_w(typ, gi)]
    BPAGE.clear()
    if OPT["dbg"] & 8: S.bnext = 30
    prq = [(s2, ct) for s2 in range(8) for ct in range(2)] if OPT["pr"] else []
    prel = []
    if OPT["dbg"] & 64: S.wq = []
    for gi in range(24):
        c, p = gi >> 3, gi & 7
        corient = (typ == 0 and c < 2)
        A = ACCS[c & 1]
        for u in range(4):
            step = gi * 4 + u
            first = (p == 0 and u == 0)
            wf = vr(WF[step % 3])
            S.tick(); S.step = step
            if step == OPT["qs"]:
                while S.cur is not None: S.vm(True)
                g.vmem(FLG_LD, "flg"); g.vmem(KFL_LD, "kfl")
            if first and c > 0:
                e(f"v_cndmask_b32 v{vCSV}, v{CS}, v{CS+1}, {sr(mB4,2)}")
            S.big()
            if (u % 2 == 0 or p == 7) and not OPT["dbg"] & 16:
                e(f"v_mfma_f32_16x16x32_bf16 {vr(CS)}, {vr(MO)}, {wf}, {'0' if first else vr(CS)}"); S.adv(16)
            if c == 0:
                x0 = X(0, p, u)
                e(f"v_mfma_f32_4x4x4_16b_bf16 {vr(Q0)}, a[{x0}:{x0+1}], a[{x0}:{x0+1}], {'0' if first else vr(Q0)}")
                e(f"v_mfma_f32_4x4x4_16b_bf16 {vr(Q1)}, a[{x0+2}:{x0+3}], a[{x0+2}:{x0+3}], {'0' if first else vr(Q1)}")
                e(f"v_mfma_f32_16x16x32_bf16 {vr(S1)}, {vr(MO)}, {ar(x0)}, {'0' if first else vr(S1)}"); S.adv(40)
                read_w(g, step + 2)
            def M(t):
                cc = "0" if first else vr(A[t], 16)
                a, b = (ar(X(t, p, u)), wf) if corient else (wf, ar(X(t, p, u)))
                e(f"v_mfma_f32_32x32x16_bf16 {vr(A[t],16)}, {a}, {b}, {cc}"); S.adv(32)
            M(0)
            sl = 6
            if c == 0:
                if step + 2 < 32: read_x1(g, (step + 2) >> 2, (step + 2) & 3, 0); sl -= 1
                sl -= S.vm()
            elif step + 2 < 96:
                read_w(g, step + 2); sl -= 2
            if gi >= OPT["vm2"]: sl -= S.vm()
            while prel and ("PR", prel[0]) not in g.lg:
                S.pages.append(BPAGE[prel.pop(0)])
            if prq and (16 + 2 * prq[0][0] + prq[0][1]) >> 3 < S.free_stage:
                s2, ct = prq.pop(0)
                assert s2 in BPAGE and ("B", s2) not in [x[2][2] for x in S.bq]
                g.wait(vm=[("B", s2)])
                pg = BPAGE[s2]
                for k in range(2):
                    r = breg(s2, ct) + 2 * k
                    g.ds(f"ds_read_b64_tr_b16 a[{r}:{r+1}], v{vBT+2*(pg>>3)+ct} offset:{(pg & 7) * PAGE + k*1024}", ("PR", s2))
                sl -= 2
                if ct == 1: prel.append(s2)
            S.fill(sl)
            M(1)
            sl = 5
            if step + 2 < 32: read_x1(g, (step + 2) >> 2, (step + 2) & 3, 1); sl -= 1
            if p == 7 and u == 2:
                g.ds(f"ds_read_b32 v{vCSP}, v{vCSR}", "csp"); sl -= 1
            sl -= S.vm()
            if u == 1: sl -= 1
            if p == 6 and u == 3:
                e(f"v_cndmask_b32 v{vTMP}, v{CS}, v{CS+1}, {sr(mB4,2)}")
                g.ds(f"ds_write_b32 v{vCSW}, v{vTMP}", "fw"); sl -= 2
            if c == 2 and u == 3: S.free_stage = p + 1
            if u == 1:
                while any(x[2][2][1] <= gi + 1 for x in S.wq):
                    assert S.vm(True)
                g.st.mark2(g)
                g.wait(vm=[("W", gi + 1), ("X", gi + 1)], lg=["fw", ("Wf", step + 1), ("X", (step+1) >> 2, (step+1) & 3)])
                if not OPT["dbg"] & 4: e("s_barrier")
                g.st.mark2(g)
                S.bar = gi; S.wait_bar = False
                S.pages += [pg for (bb, pg) in BEV if bb == gi]
                if gi == 2: publish_ctl(g, typ)
                if gi == 5: g.vmem(CTL_LD, "ctl")
                if gi == 6:
                    assert not any(x[2][2][0] == "X" for x in S.wq)
                    if OPT["xr"]:
                        e(f"s_and_b32 s{sKEY}, s{sRB2}, 3")
                        e(f"s_lshl_b32 s{sKEY}, s{sKEY}, 1")
                        e(f"s_add_u32 s{sKEY}, s{sKEY}, s{sCB}")
                        e(f"s_and_b32 s{sKEY}, s{sKEY}, 7")
                    else: e(f"s_mov_b32 s{sKEY}, 0")
                    e(f"s_lshl_b32 s{sK14}, s{sKEY}, 14")
                    e(f"s_lshl_b32 s{sHAK}, s{sKEY}, 10")
                    e(f"s_or_b32 s{sPQ}, s{sPQ}, s{sHAK}")
                    e(f"s_or_b32 s{sHAK}, s{sHAK}, s{sHA}")
                if gi == 9:
                    def chk():
                        e(f"v_readlane_b32 s{sNON}, v{vCTL}, 16")
                        e(f"v_readlane_b32 s{sNON+1}, v{vCTL}, 17")
                        if typ == 0:
                            e(f"v_readlane_b32 vcc_lo, v{vCTL}, s{sJ}")
                            e(f"s_min_u32 vcc_lo, vcc_lo, s{sNON}")
                            e(f"s_cmp_lg_u32 vcc_lo, 0")
                        else:
                            e(f"s_cmp_lg_u32 s{sNON}, 0")
                    poll(g, "ctl", CTL_LD, chk)
                    e(f"v_mov_b32 v{vNON}, s{sNON}")
                    e(f"v_mov_b32 v{vNON+1}, s{sNON+1}")
                if gi == OPT["hpoll"] - OPT["hlead"]: g.vmem(FLG_LD, "flg")
                if gi == OPT["hpoll"]:
                    poll(g, "flg", FLG_LD, flag_check(g, 0xf))
                    S.aq += [(aslot_of(s, t) >> 3, 0, it_a(s, t)) for s in range(8) for t in range(2)]
            elif step + 1 < 96:
                g.wait(lg=[("Wf", step + 1), ("X", (step+1) >> 2, (step+1) & 3)])
            S.fill(sl + OPT["fs"] - 5)
        if p == 7:
            g.st.mark(g)
            if c < 2:
                n = len([op for op in S.q if op[0] == "i"])
                if n: print("  typ", typ, "chunk", c, "leftover valu", n)
                S.drain()
                g.wait(lg="csp")
                if not OPT["dbg"] & 2: S.q += epilogue(c, typ, False)
    if OPT["dbg"] & 1:
        stamp_flush(g); e("s_endpgm"); return
    n = len([op for op in S.q if op[0] == "i"])
    if n: print("  typ", typ, "chunk 2 leftover valu", n)
    k = len(S.q)
    while k > 0 and S.q[k-1][0] in ("blk", "waitvm", "delay") and len(S.q) - k < 4: k -= 1
    late = S.q[k:] if len(S.q) - k >= 3 else []
    if late: S.q = S.q[:k]; print("  typ", typ, "late chunk-1 flag")
    S.drain()
    while S.sq or S.cur is not None: assert S.vm(True)
    g.wait(lg="csp")
    e(f"v_cndmask_b32 v{vCSV}, v{CS}, v{CS+1}, {sr(mB4,2)}")
    ep = epilogue(2, typ, True)
    i = [k for k, op in enumerate(ep) if op[0] == "delay"][0]
    S.q = ep[:i]
    S.drain()
    if S.aq: print("  typ", typ, "late A loads", len(S.aq))
    print("  typ", typ, "B items left at T1", 2 * (30 - S.bnext) + len(S.bq), "prereads left", len(prq))
    assert not prq
    while S.aq: assert S.vm(True)
    S.q = late; S.drain()
    if OPT["qld"] < 0 and OPT["qs"] < 0: g.vmem(FLG_LD, "flg"); g.vmem(KFL_LD, "kfl")
    S.q = ep[i:]
    S.drain(until_late=True)
    S.cur = None
    late2 = S.q; S.q = []
    g.st.mark(g)
    g.wait(lg_all=True)
    e("s_barrier")
    S.bar = 24; S.free_stage = 8
    S.pages += [BPAGE[x] for x in prel] + [pg for (bb, pg) in BEV if bb == 24]
    sv = OPT["period"]; OPT["period"] = OPT["p2"]
    phase2(g, S, late2)
    OPT["period"] = sv

def publish_ctl(g, typ):
    if typ != OPT["zt"]: return
    e = g.e
    e(f"s_cmp_eq_u32 s{sZ}, 1")
    e("s_cbranch_scc0 L_NOZF")
    e(f"s_lshl_b32 s{sT1}, s{sJ}, 2")
    e(f"v_mov_b32 v{vTMP}, 1")
    e("s_mov_b64 exec, 1")
    g.vmem(f"buffer_store_dword v{vTMP}, v{vZERO}, {sr(SDBG)}, s{sT1} offen sc1", counted=False)
    e("s_mov_b64 exec, -1")
    g.label("L_NOZF")

def phase2(g, S, late2):
    e = g.e
    NS = 30
    LT = OPT["lt"]; S0 = NS - LT
    BL = [180, 188, 196, 204, 224, 232, 40, 48]
    def bfreg(s): return BL[s - S0] if s >= S0 else BF[s % 3]
    def read_b(s):
        pg = BPAGE[s]; rng = pg >> 3; off = (pg & 7) * PAGE
        b = bfreg(s)
        return [lambda ct=ct, k=k: g.ds(f"ds_read_b64_tr_b16 v[{b+4*ct+2*k}:{b+4*ct+2*k+1}], v{vBT+2*rng+ct} offset:{off + k*1024}", ("Bf", s))
                for ct in range(2) for k in range(2)]
    def ensure_b(s):
        while S.bnext <= s or any(x[2][2][1] == s for x in S.bq):
            if S.cur is not None: assert S.vm(True); continue
            sv = S.aq; S.aq = []
            assert S.vm(True)
            S.aq = sv
    npr = 8 if OPT["pr"] else 0
    def ensure(q, s):
        while any(x[2][2][1] == s for x in q):
            if S.cur is None:
                it = q.pop(0)[2]; emit_item(g, it); S.cur = q if it[3] else None
            else:
                assert S.vm(True)
    def Cops(h):
        k = KVR[h]
        return [I(f"v_cvt_pk_bf16_f32 v{k+q}, v{k+2*q}, v{k+2*q+1}") for q in range(4)]
    def Nm(h, t): return f"v_mfma_f32_32x32x16_bf16 {vr(ND[t],16)}, {vr(KVR[h])}, {ar(areg(8 + h, t))}, 0"
    def Vops(h, t):
        d = ND[t]
        L = [I(f"v_add_f32 v{d+8}, s{sEPS}, v{d+8}"), I(f"v_rcp_f32 v{d+8}, v{d+8}", 2)]
        for q in range(4):
            L += [I(f"v_mul_f32 v{d+2*q}, v{d+2*q}, v{d+8}"), I(f"v_mul_f32 v{d+2*q+1}, v{d+2*q+1}, v{d+8}")]
        L += [I(f"v_cvt_pk_bf16_f32 v{OF[0][t]+q}, v{d+2*q}, v{d+2*q+1}") for q in range(4)]
        return L
    vq = []
    tailm = []; trq = []
    def valu(n):
        while vq and n > 0:
            op = vq.pop(0); n -= op[2]; e(op[1])
    def redaddr():
        t = T
        L = [f"v_and_b32 v{t}, 31, v1", f"v_lshrrev_b32 v{t+1}, 3, v{t}", f"v_lshlrev_b32 v{t+1}, 13, v{t+1}",
             f"v_and_b32 v{t+2}, 7, v1", f"v_lshl_add_u32 v{t+1}, v{t+2}, 8, v{t+1}", f"v_add_u32 v{t+1}, s{sBL}, v{t+1}",
             f"v_lshrrev_b32 v{t+3}, 5, v1"]
        for q in range(4):
            L += [f"v_add_u32 v{t+4}, {2*q}, v{t+3}", f"v_xor_b32 v{t+4}, v{t+4}, v{t+2}", f"v_lshl_add_u32 v{t+8+q}, v{t+4}, 4, v{t+1}"]
        L += [f"v_lshrrev_b32 v{t}, 6, v0", f"v_lshlrev_b32 v{t}, 13, v{t}", f"v_bfe_u32 v{t+1}, v0, 3, 3",
              f"v_lshl_add_u32 v{t}, v{t+1}, 8, v{t}", f"v_lshlrev_b32 v{t+2}, 1, v{t+2}", f"v_xor_b32 v{t+2}, v{t+2}, v{t+1}",
              f"v_lshl_add_u32 v{t+4}, v{t+2}, 4, v{t}", f"v_xor_b32 v{t+5}, 16, v{t+4}"]
        return [I(x) for x in L]
    if OPT["qld"] == 0: g.vmem(FLG_LD, "flg"); g.vmem(KFL_LD, "kfl")
    if not npr:
        ensure_b(0)
        g.wait(vm=[("B", 0)])
        for f in read_b(0): f()
    for s in range(NS):
        kind, idx = step_kind(s)
        if s == OPT["qld"] and s > 0:
            g.vmem(FLG_LD, "flg"); g.vmem(KFL_LD, "kfl")
        if s - 1 >= npr: S.pages.append(BPAGE[s - 1])
        if s == OPT["pub"]:
            g.st.mark(g)
            S.q = late2; S.drain()
            g.st.mark(g)
        if s == OPT["qchk"]:
            poll(g, "flg", FLG_LD, flag_check(g, 0xf0))
            def chk():
                e(f"v_cmp_eq_u64 vcc, v[{vKFL}:{vKFL+1}], {sr(sNON,2)}")
                e(f"v_cmp_eq_u64 {sr(mB0,2)}, v[{vKFL+2}:{vKFL+3}], {sr(sNON,2)}")
                e(f"s_and_b64 vcc, vcc, {sr(mB0,2)}")
                e("s_cmp_eq_u64 vcc, -1")
            poll(g, "kfl", KFL_LD, chk)
            g.st.mark(g)
            for h in range(8):
                for t in range(2):
                    S.aq.append((0, 0, ([f"s_xor_b32 s{sT3}, s{sKEY}, {h}", f"s_mul_i32 s{sT3}, s{sT3}, {KVH}", f"s_add_u32 s{sT3}, s{sT3}, s{sKV}"] if t == 0 else [],
                                 f"buffer_load_dwordx4 {vr(KVR[h] + 4*t)}, v{vXD+2 if t else vKVO}, {sr(SWS)}, s{sT3} offen offset:{32*t} sc1", ("KV", 8 + h), t == 0)))
                S.aq += [(0, 0, it_a(8 + h, t)) for t in range(2)]
                if h == OPT["h2smp"] and OPT["h2at"] < 0: S.aq.append((0, 0, ([], FLG_LD, ("flg", 99), False)))
        if s == 8:
            ensure(S.aq, 8 + OPT["olead"])
            g.st.mark(g)
            g.wait(vm=[("KV", 8), ("A", 8)])
            for op in Cops(0): e(op[1])
            e(Nm(0, 0)); e(Nm(0, 1))
            g.wait(vm=[("KV", 9)])
            for op in Cops(1) + Vops(0, 0): e(op[1])
            vq += [op + ("v1",) for op in Vops(0, 1)]
            g.st.mark(g)
        if s == OPT["h2at"]:
            while S.cur is not None: S.vm(True)
            g.vmem(FLG_LD, ("flg", 99))
        if s == OPT["h2chk"]:
            ensure(S.aq, 99)
            while S.cur is not None: S.vm(True)
            poll(g, [("flg", 99)], FLG_LD, flag_check(g, 0xff00))
            g.st.mark(g)
            S.aq += [(0, 0, it_a(s2, t)) for s2 in range(16, S0) for t in range(2)]
            S.aq += [(0, 0, it_a(s2, 0)) for s2 in range(S0, 30)]
            for s2 in range(S0, 30):
                it = it_a(s2, 1); S.aq.append((0, 0, (it[0], it[1], ("A", s2 + 30), it[3])))
            for _ in range(OPT["h2n"]): S.vm(True)
        rb = []
        if npr <= s + 1 < S0:
            ensure_b(s + 1)
            rb = read_b(s + 1)
        if s == S0 - OPT["tl"]:
            for s2 in range(S0, NS):
                ensure_b(s2)
                trq += [(s2, f) for f in read_b(s2)]
        b = bfreg(s)
        def Mm(ct, t, s=s, b=b, kind=kind):
            acc = vr(ACC2 + 32 * ct + 16 * t, 16)
            act = ar(areg(s, t)) if kind == "h" else vr(OF[0][t])
            bo = ar(breg(s, ct)) if s < npr else vr(b+4*ct)
            return f"v_mfma_f32_32x32x16_bf16 {acc}, {bo}, {act}, {'0' if s == 0 else acc}"
        frc = s >= 16 or (OPT["qchk"] <= s < 8)
        if kind == "h":
            ensure(S.aq, s)
            assert not any(x[0] <= s for x in trq)
            g.wait(vm=[("A", s)] + ([("B", s + 1)] if s + 1 < S0 else []), lg=[("Bf", s)])
            if s == 17: vq += redaddr()
            if s == 23:
                g.wait(vm="xr")
                for tt in range(2):
                    for q in range(4):
                        vq.append(I(f"v_lshlrev_b32 v{92+8*tt+2*q}, 16, v{84+4*tt+q}"))
                        vq.append(I(f"v_and_b32 v{92+8*tt+2*q+1}, 0xffff0000, v{84+4*tt+q}"))
            if s >= S0: tailm += [(s, Mm(0, 1)), (s, Mm(1, 1))]
            for mi, (ct, t) in enumerate(((0, 0), (1, 0), (0, 1), (1, 1)) if s < S0 else ((0, 0), (1, 0))):
                e(Mm(ct, t)); S.adv(32)
                sl = 6
                if mi < 2 and rb: rb.pop(0)(); rb.pop(0)(); sl -= 2
                elif trq:
                    g.wait(vm=[("B", trq[0][0])])
                    trq.pop(0)[1](); trq.pop(0)[1](); sl -= 2
                sl -= S.vm(frc)
                valu(min(4, sl))
        else:
            h = idx
            nxt = h + 1 < 8
            if h + 2 < 8: ensure(S.aq, s + 2)
            g.wait(vm=[("A", s + 1), ("B", s + 1)] if nxt else [("B", s + 1)], lg=[("Bf", s)])
            seq = ([("N", 0)] if nxt else []) + [("M", 0, 0), ("M", 1, 0)] + ([("N", 1)] if nxt else []) + [("M", 0, 1), ("M", 1, 1)]
            for pi, pp in enumerate(seq):
                if pp == ("N", 1) or (pp == ("M", 0, 1) and not nxt):
                    while vq and vq[0][3:] == ("v1",): e(vq.pop(0)[1])
                e(Nm(h + 1, pp[1]) if pp[0] == "N" else Mm(pp[1], pp[2])); S.adv(32)
                if pp == ("M", 1, 0) and nxt: vq += [op + ("v0",) for op in Vops(h + 1, 0)]
                if pp == ("M", 1, 0) and h + 2 < 8:
                    g.wait(vm=[("KV", s + 2)])
                    vq += [op + ("v0",) for op in Cops(h + 2)]
                if pp == ("M", 1, 1) and nxt:
                    while vq and vq[0][3:] == ("v0",) and len(vq) > 6: e(vq.pop(0)[1])
                sl = 6
                if pi < 2 and rb: rb.pop(0)(); rb.pop(0)(); sl -= 2
                if pi >= 6 - OPT["ovm"]: sl -= S.vm(True)
                valu(OPT["ov"])
            while vq and vq[0][3:] == ("v0",): e(vq.pop(0)[1])
            if nxt: vq += [op + ("v1",) for op in Vops(h + 1, 1)]
        if s == 16:
            g.vmem(f"buffer_load_dwordx4 {vr(84)}, v{vXO}, {sr(SX)}, s{sXR} offen", "xr")
            g.vmem(f"buffer_load_dwordx4 {vr(88)}, v{vXO}, {sr(SX)}, s{sXR+1} offen", "xr")
        if s == 15: g.st.mark(g)
    while vq: e(vq.pop(0)[1])
    while S.aq: assert S.vm(True)
    assert not S.bq and S.bnext == 30
    t = T
    def wr(tt): return [lambda ct=ct, q=q: g.ds(f"ds_write_b128 v{t+8+q}, {vr(ACC2 + 32*ct + 16*tt + 4*q)} offset:{tt * 4 * PAGE + ct * 128}", ("rw", tt))
                        for ct in range(2) for q in range(4)]
    def rreg(tt, w): return ACC2 + 16 * tt + 32 * (w >> 1) + 8 * (w & 1)
    def rd(tt): return [lambda w=w, k=k: g.ds(f"ds_read_b128 {vr(rreg(tt, w) + 4*k)}, v{t+4+k} offset:{tt * 4 * PAGE + w * 2048}", ("rr", tt))
                        for w in range(4) for k in range(2)]
    def fin(tt):
        g.wait(lg=[("rr", tt)])
        r0, r1, r2, r3 = [rreg(tt, w) for w in range(4)]
        P = lambda d, a, b: e(f"v_pk_add_f32 v[{d}:{d+1}], v[{a}:{a+1}], v[{b}:{b+1}]")
        for q in range(4): P(r0+2*q, r0+2*q, r1+2*q); P(r2+2*q, r2+2*q, r3+2*q)
        for q in range(4): P(r0+2*q, r0+2*q, 92+8*tt+2*q)
        for q in range(4): P(r0+2*q, r0+2*q, r2+2*q)
        for q in range(4): e(f"v_cvt_pk_bf16_f32 v{r1+q}, v{r0+2*q}, v{r0+2*q+1}")
        g.vmem(f"buffer_store_dwordx4 {vr(r1)}, v{vXO}, {sr(SOUT)}, s{sXR+tt} offen", "o")
    w0 = wr(0)
    for i, (s2, m) in enumerate(tailm):
        g.wait(vm=[("A", s2 + 30)])
        e(m)
        if i >= 2 and w0: w0.pop(0)()
    while w0: w0.pop(0)()
    g.st.mark(g)
    if OPT["tb"]:
        g.wait(lg=[("rw", 0)])
        e("s_barrier")
        for f in rd(0): f()
        for f in wr(1): f()
        fin(0)
        g.wait(lg_all=True)
        e("s_barrier")
        for f in rd(1): f()
        fin(1)
    else:
        for f in wr(1): f()
        g.wait(lg_all=True)
        e("s_barrier")
        for f in rd(0) + rd(1): f()
        fin(0); fin(1)
    stamp_flush(g)
    e("s_endpgm")

def stamp_flush(g):
    e = g.e
    if STAMP:
        g.st.mark(g)
        e("s_waitcnt vmcnt(0)")
        g.st.mark(g)
        if STAMP == 3:
            e("v_lshlrev_b32 v254, 2, v1")
            e("s_mov_b64 exec, 0xff00")
            e(f"buffer_atomic_umax v255, v254, {sr(SDBG)}, 0 offen sc1")
            return
        e(f"v_readlane_b32 s{sT0}, v255, 63")
        e(f"s_lshl_b32 s{sT0}, s{sT0}, 2")
        e(f"s_add_u32 s{sT0}, s{sT0}, s{sW}")
        e(f"s_lshl_b32 s{sT0}, s{sT0}, 8")
        e(f"s_add_u32 s{sT0}, s{sT0}, {STB}")
        e("v_lshlrev_b32 v254, 2, v1")
        e(f"buffer_store_dword v255, v254, {sr(SWS)}, s{sT0} offen")

def dpf(g):
    e = g.e
    e("v_lshlrev_b32 v252, 7, v1")
    if OPT["s2f"]:
        e(f"s_lshl_b32 s{sT2}, s{sRB2}, 3")
        e(f"s_add_u32 s{sT2}, s{sT2}, s{sCB}")
    def touch(wave, nbytes, sd, cond_typ=None):
        nl = nbytes // 128
        e(f"s_mul_i32 s{sT1}, s{sT2 if OPT['s2f'] else 2}, {nbytes}")
        e(f"s_cmp_eq_u32 s{sW}, {wave}")
        e(f"s_cselect_b32 s{sT1}, s{sT1}, {OOB}")
        m = (1 << nl) - 1
        e("s_mov_b32 exec_lo, 0x%x" % (m & 0xffffffff)); e("s_mov_b32 exec_hi, 0x%x" % (m >> 32))
        g.vmem(f"buffer_load_dword v253, v252, {sr(sd)}, s{sT1} offen", "pf")
    touch(0, 5504, SW2); touch(1, 2048, SWO)
    if OPT["dpf"] >= 2:
        touch(2, 6144, SWP); touch(3, 6144, SWS2)
    e("s_mov_b64 exec, -1")

def it_touch():
    L = []
    for wave, nbytes, sd in ((0, 5504, SW2), (1, 2048, SWO)):
        m = (1 << (nbytes // 128)) - 1
        prep = [f"s_lshl_b32 s{sT3}, s{sRB2}, 3", f"s_add_u32 s{sT3}, s{sT3}, s{sCB}", f"s_mul_i32 s{sT3}, s{sT3}, {nbytes}",
                f"s_cmp_eq_u32 s{sW}, {wave}", f"s_cselect_b32 s{sT3}, s{sT3}, {OOB}", "v_lshlrev_b32 v252, 7, v1",
                "s_mov_b32 exec_lo, 0x%x" % (m & 0xffffffff), "s_mov_b32 exec_hi, 0x%x" % (m >> 32)]
        L.append((prep, f"buffer_load_dword v253, v252, {sr(sd)}, s{sT3} offen\ns_mov_b64 exec, -1", ("pf", 50), False))
    return L

def it_touch3():
    L = []
    for wave, nrows, sd in ((2, 43, SW2), (3, 16, SWO)):
        m = (1 << nrows) - 1
        prep = [f"s_and_b32 s{sT3}, s{sRB2}, 3", f"s_lshl_b32 s{sT3}, s{sT3}, 3", f"s_add_u32 s{sT3}, s{sT3}, s{sCB}", f"s_mul_i32 s{sT3}, s{sT3}, {nrows * 1024}",
                f"s_cmp_eq_u32 s{sW}, {wave}", f"s_cselect_b32 s{sT3}, s{sT3}, {OOB}", "v_lshlrev_b32 v252, 10, v1",
                "s_mov_b32 exec_lo, 0x%x" % (m & 0xffffffff), "s_mov_b32 exec_hi, 0x%x" % (m >> 32)]
        L.append((prep, f"buffer_load_dword v253, v252, {sr(sd)}, s{sT3} offen offset:384\ns_mov_b64 exec, -1", ("pf", 50), False))
    return L

def touch_qkv3(g):
    e = g.e
    e(f"s_and_b32 s{sT1}, s{sRB2}, 3")
    e(f"s_lshl_b32 s{sT1}, s{sT1}, 3")
    e(f"s_add_u32 s{sT1}, s{sT1}, s{sCB}")
    e(f"s_mul_i32 s{sT1}, s{sT1}, {48 * 1024}")
    e(f"s_lshr_b32 s{sT2}, s{sJ}, 2")
    e(f"s_lshl_b32 s{sT2}, s{sT2}, 2")
    e(f"s_or_b32 s{sT2}, s{sT2}, s{sW}")
    e(f"s_lshl_b32 s{sT2}, s{sT2}, 1")
    e(f"s_or_b32 s{sT2}, s{sT2}, s{sTYP}")
    e("v_lshlrev_b32 v252, 10, v1")
    e("s_mov_b32 exec_hi, 0xffff")
    for typ, sd in ((0, SWP), (1, SWS2)):
        e(f"s_cmp_eq_u32 s{sT2}, {4 + typ}")
        e(f"s_cselect_b32 s{sT0}, s{sT1}, {OOB}")
        g.vmem(f"buffer_load_dword v253, v252, {sr(sd)}, s{sT0} offen offset:384", "pf")
    e("s_mov_b64 exec, -1")

def gen():
    g = Gen(); g.st = Stamps(); e = g.e
    prologue(g)
    g.st.mark(g)
    items = []
    for p in range(4): items += it_x(p) + it_w(0, p)
    pre = OPT["pre"]
    if OPT["q3"] == 1:
        e(f"s_and_b32 s{SWS2+1}, s{SWS2+1}, 0xffff")
        touch_qkv3(g)
    for it in items[:min(12, pre)]: emit_item(g, it)
    setup1(g)
    if OPT["q3"] == 2: touch_qkv3(g)
    if OPT["dpf"] and OPT["dpos"] == 0: dpf(g)
    if OPT["tp"]:
        sh = {1: 20, 2: 18}[OPT["tp"]]
        e(f"v_lshlrev_b32 v252, {sh}, v1")
        e(f"s_cmp_eq_u32 s{sW}, 3")
        e(f"s_cselect_b32 s{sT1}, 0, {OOB}")
        e("s_mov_b64 exec, 0x%x" % ((1 << (12 << (20 - sh))) - 1) if sh == 20 else "s_mov_b32 exec_hi, 0xffff")
        g.vmem(f"buffer_load_dword v253, v252, {sr(SWS)}, s{sT1} offen", "pf")
        g.vmem(f"buffer_load_dword v253, v252, {sr(SOUT)}, s{sT1} offen", "pf")
        g.vmem(f"buffer_load_dword v253, v252, {sr(SDBG)}, s{sT1} offen", "pf")
        g.vmem(f"buffer_load_dword v253, v252, {sr(SWS2)}, s{sT1} offen", "pf")
        g.vmem(f"buffer_load_dword v253, v252, {sr(SW2)}, s{sT1} offen", "pf")
        g.vmem(f"buffer_load_dword v253, v252, {sr(SWO)}, s{sT1} offen", "pf")
        e("s_mov_b64 exec, -1")
    e(f"s_xor_b32 s{sT1}, s{sTYP}, {OPT['zt']}")
    e(f"s_or_b32 s{sT1}, s{sRB}, s{sT1}")
    e(f"s_or_b32 s{sT1}, s{sT1}, s{sW}")
    e(f"s_cmp_eq_u32 s{sT1}, 0")
    e(f"s_cselect_b32 s{sZ}, 1, 0")
    e("s_cbranch_scc0 L_NOZ")
    e(f"s_memrealtime {sr(sNON,2)}")
    e(f"v_lshlrev_b32 v{vL16}, 4, v1")
    for r in range(4): e(f"v_mov_b32 v{T+r}, 0")
    e(f"s_mul_i32 s{sT1}, s{sJ}, 4352")
    e(f"s_add_u32 s{sT1}, s{sT1}, {KVB}")
    for i in range(4):
        g.vmem(f"buffer_store_dwordx4 {vr(T)}, v{vL16}, {sr(SWS)}, s{sT1} offen offset:{1024*i} sc1", counted=False)
    e(f"s_add_u32 s{sT1}, s{sT1}, 4096")
    e("s_mov_b64 exec, 0xffff")
    g.vmem(f"buffer_store_dwordx4 {vr(T)}, v{vL16}, {sr(SWS)}, s{sT1} offen sc1", counted=False)
    e("s_mov_b64 exec, 1")
    e("s_waitcnt lgkmcnt(0)")
    e(f"s_or_b32 s{sNON}, s{sNON}, 1")
    e(f"v_mov_b32 v{T+4}, s{sNON}")
    e(f"v_mov_b32 v{T+5}, s{sNON+1}")
    e(f"s_cmp_eq_u32 s{sJ}, 0")
    e(f"s_cselect_b32 s{sT1}, 64, {OOB}")
    g.vmem(f"buffer_store_dwordx2 v[{T+4}:{T+5}], v{T}, {sr(SDBG)}, s{sT1} offen sc1", counted=False)
    e("s_mov_b64 exec, -1")
    e("s_nop 1")
    g.label("L_NOZ")
    if OPT["s2f"]:
        setup2(g)
    for it in items[12:pre]: emit_item(g, it)
    if OPT["dpf"] and OPT["dpos"] == 1: dpf(g)
    g.cur_open = items[pre - 1][3]
    assert not g.cur_open
    g.wq0 = items[pre:]
    if not OPT["s2f"]: setup2(g)
    g.st.mark(g)
    g.wait(vm=[("W", 0), ("X", 0)])
    e("s_barrier")
    g.st.mark(g)
    read_x(g, 0, 0); read_w(g, 0); read_x(g, 0, 1); read_w(g, 1)
    g.wait(lg=[("Wf", 0)])
    e(f"s_cmp_eq_u32 s{sTYP}, 0")
    e("s_cbranch_scc0 L_TYPEB")
    st = (list(g.vm), list(g.lg), g.st.n)
    body(g, 0)
    g.label("L_TYPEB")
    g.vm, g.lg, g.st.n = list(st[0]), list(st[1]), st[2]; g.hist = []
    body(g, 1)
    g.label("L_END")
    e("s_endpgm")
    return g

def kd(name, vgpr, sgpr, acc):
    return f""".amdhsa_kernel {name}
  .amdhsa_next_free_vgpr {vgpr}
  .amdhsa_next_free_sgpr {sgpr}
  .amdhsa_accum_offset {acc}
  .amdhsa_group_segment_fixed_size 0
  .amdhsa_kernarg_size 72
  .amdhsa_user_sgpr_count 2
  .amdhsa_user_sgpr_kernarg_segment_ptr 1
  .amdhsa_system_sgpr_workgroup_id_x 1
.end_amdhsa_kernel
"""

def main(out):
    hdr = open("parallel_sum__linear_attn_block__dense_activation_relu__prompt.s.ref").read().split("; Override")[0]
    g = gen()
    s = hdr
    s += "; @launch grid=(256,1,1) block=(256,1,1) lds=163840\n"
    s += '.amdgcn_target "amdgcn-amd-amdhsa--gfx950"\n.text\n'
    s += f".globl {NAME}\n.p2align 8\n.type {NAME},@function\n{NAME}:\n" + g.text()
    s += '.section .rodata,"a"\n.p2align 6\n' + kd(NAME, 512, 102, 256)
    open(out, "w").write(s)
    print("nops", g.nops, "lines", len(g.out), "stamps", g.st.n)

if __name__ == "__main__":
    for a in sys.argv[2:]:
        if a == "stamp": STAMP = 1
        elif a == "stamp2": STAMP = 2
        elif a == "stamp3": STAMP = 3
        elif a == "v": VERB = True
        else:
            k, v = a.split("="); OPT[k] = int(v)
    main(sys.argv[1])
```

```python
import sys, struct
sys.path.insert(0, "dev")
from asmgen import Gen

def f2u(x): return struct.unpack("<I", struct.pack("<f", x))[0]
NAME = "parallel_sum__linear_attn_block__dense_activation_relu__prompt_kernel"

HB, QB, KVB, FLB, KFB = 0, 0x800000, 0xA00000, 0xB00000, 0xB10000
HRT = 131072
KVH = 1088
WS_BYTES = 268435456
OOB = 0x40000000
PAGE = 8192
XPAGE = [0, 2, 4, 6, 18]
MISC = 16 * PAGE
M_CS, M_RM, M_RR, M_KV = MISC, MISC + 512, MISC + 1024, MISC + 2048
STAMP = 0
VERB = False
STB = 0x8000000
OPT = dict(rot=2, pre=16, spin=20000, fdelay=14, adelay=16, period=66, debt=1, w1w=15, qrate=4, krate=1, h2n=0, hpoll=19, hlead=2, cpf=2, dpf=1, fs=5, pub=7, qchk=8, olead=4, h2smp=4, ovm=4, ov=6, h2chk=11, slp=2, qld=4, p2=64, dbg=0, lin=0, vm2=8, pc2=50, osc=0, bl=1, xr=1, pr=1, hb=1, hdelay=8, dpos=2, wp=7, s2f=1, dk=7, tp=0, h2at=-1, quiet=99, qs=-1, zt=0, t3=7, q3=1, lt=8, tl=3, tb=0)

def vr(a, n=4): return f"v[{a}:{a+n-1}]"
def ar(a, n=4): return f"a[{a}:{a+n-1}]"
def sr(a, n=4): return f"s[{a}:{a+n-1}]"

SX, SWP, SWS2, SWS, SDBG, SW2, SWO, SOUT = 24, 28, 32, 36, 40, 44, 48, 52
sRB, sTYP, sJ, sW, sM, sN, sRB2, sCB = 56, 57, 58, 59, 60, 61, 62, 63
sXO, sPO, sSO = 64, 72, 80
sT0, sT1, sT2 = 88, 89, 90
sCOL = [4, 5, 6]
sXL, sBL, sT3 = 7, 8, 9
sRT = [10, 11]
sZ, sEPS, sLOG = 12, 13, 14
sK14 = 12
sHAK, sKEY = 64, 65
mB4, mH, mB0, mB1 = 16, 18, 20, 22
sNON = 92
sHST = [94, 95, 96]
sB2, sBO, sHA, sHA2, sPQ = 97, 98, 99, 100, 101
sKV, sFL, sKF, sXR = 91, 2, 3, 0

vXD, vWP, vWS, vBD = 2, 6, 8, 10
vXA = [12, 16]
vWA = 20
vCSW, vCSR, vL16, vSTO, vSTX, vSKIP = 26, 27, 28, 29, 30, 31
vRR, RL, vCSP, vTMP, vCSV, vCTLO = 32, 34, 36, 37, 38, 39
MO, S1, Q0, Q1, CS = 40, 44, 48, 52, 56
WF = [60, 64, 68]
AAUG, BAUG = [72, 76], 80
ACCS = [[84, 100], [116, 132]]
RROW = [148, 164]
PK, VF, T = 180, 196, 212
ONES = S1
RLL, EPSR = 52, 54
vFLO, vCTL, vZERO, vFLG, vNON = 244, 245, 246, 248, 250
vKFL = 48
vBT, vKVO, vXO = 12, 18, 19
ACC2, BF, ND, OF = 116, [56, 64, 72], [84, 100], [[196, 200], [204, 208]]
KVR = [180, 188, 212, 220, 228, 236, 40, 20]
def X(t, p, u): return 128 * t + 16 * p + 4 * u

class Stamps:
    def __init__(self): self.n = 0
    def mark2(self, g):
        if STAMP != 2: return
        g.e("s_memtime vcc"); g.e("s_waitcnt lgkmcnt(0)"); g.lg = []
        g.e("v_writelane_b32 v255, vcc_lo, %d" % self.n); self.n += 1
    def mark(self, g):
        if STAMP == 3:
            g.e("s_memrealtime vcc"); g.e("s_waitcnt lgkmcnt(0)"); g.lg = []
            if self.n == 0: g.e("s_not_b32 vcc_lo, vcc_lo")
            m = {0: 8, 3: 9, 4: 10, 5: 11, 6: 12, 12: 13, 15: 14, 17: 15}
            if self.n in m: g.e("v_writelane_b32 v255, vcc_lo, %d" % m[self.n])
            self.n += 1
            return
        if STAMP != 1: return
        g.e("s_memrealtime vcc"); g.e("s_waitcnt lgkmcnt(0)"); g.lg = []
        g.e("v_writelane_b32 v255, vcc_lo, %d" % self.n)
        g.e("s_memtime vcc"); g.e("s_waitcnt lgkmcnt(0)")
        g.e("v_writelane_b32 v255, vcc_lo, %d" % (self.n + 30)); self.n += 1

def srd(g, d, lo, nbytes):
    g.e(f"s_mov_b32 s{d}, s{lo}")
    g.e(f"s_and_b32 s{d+1}, s{lo+1}, 0xffff")
    g.e(f"s_mov_b32 s{d+2}, {nbytes}")
    g.e(f"s_mov_b32 s{d+3}, 0x00020000")

WORDER = [8, 12, 16, 20, 9, 10, 11, 13, 14, 15, 17, 18, 19, 21, 22, 23] if 'rot=6' in sys.argv else [8, 9, 16, 17, 10, 11, 12, 13, 14, 15, 18, 19, 20, 21, 22, 23]
def page_plan():
    free = []
    wpage = {}; wav = {}
    for g in range(8): wpage[g] = 8 + g; wav[g] = -1
    ev = []
    xr = {3: 4, 4: 5, 0: 6, 1: 7, 2: 8}
    for sl, b in xr.items(): ev += [(b, XPAGE[sl]), (b, XPAGE[sl] + 1)]
    for g in range(8): ev.append((g + 1, wpage[g]))
    for g in WORDER:
        ev.sort(); b, pg = ev.pop(0)
        wpage[g] = pg; wav[g] = b
        ev.append((g + 1, pg))
    ev += [(24, 16), (24, 17)]
    ev.sort()
    return wpage, wav, ev
WPAGE, WAV, BEV = page_plan()
BPAGE = {}

def uses_primary(typ, c): return c == 0 or (typ == 0 and c == 1) or (typ == 1 and c == 2)
def step_kind(s):
    if s < 8: return ("h", s)
    if s < 16: return ("o", s - 8)
    return ("h", s - 8)
def aslot(k):
    p, r = k >> 3, k & 7
    return X(r >> 2, p, r & 3)
def aslot_of(s, t):
    if not OPT["pr"]: return 2 * s + t
    if s < 8: return 2 * s + t
    if s < 24: return 32 + 2 * (s - 8) + t
    return 2 * (s - 24) + t
def areg(s, t): return aslot(aslot_of(s, t))
def breg(s, ct): return aslot(16 + 2 * s + ct)

def it_x(p):
    L = []
    for i in range(4):
        prep = [f"s_add_u32 m0, s{sXL}, {XPAGE[p % 5] * PAGE}"] if i == 0 else []
        L.append((prep, f"buffer_load_dwordx4 v{vXD+i}, {sr(SX)}, s{sXO+p} offen offset:{1024*i} lds", ("X", p), i < 3))
    return L
def it_w(typ, gi):
    c, p = gi >> 3, gi & 7
    q = uses_primary(typ, c)
    s, v, tb = (SWP, vWP, sPO) if q else (SWS2, vWS, sSO)
    prep = [f"s_add_u32 m0, s{sBL}, {WPAGE[gi] * PAGE}", f"s_add_u32 s{sT0}, s{tb+p}, s{sCOL[c]}"]
    if typ == 1 and gi == 16:
        prep += [f"v_or_b32 v{vWP}, v{vWP}, v{vSKIP}", f"v_or_b32 v{vWP+1}, v{vWP+1}, v{vSKIP}"]
    return [(prep, f"buffer_load_dwordx4 v{v}, {sr(s)}, s{sT0} offen lds", ("W", gi), True),
            ([], f"buffer_load_dwordx4 v{v+1}, {sr(s)}, s{sT0} offen offset:1024 lds", ("W", gi), False)]
def it_b(s):
    k, idx = step_kind(s)
    sd, base = (SW2, sB2) if k == "h" else (SWO, sBO)
    if OPT["xr"] and idx < 16:
        prep = [f"s_add_u32 m0, s{sBL}, {BPAGE[s] * PAGE}", f"s_xor_b32 s{sT0}, s{sK14}, {idx * 16384}", f"s_add_u32 s{sT0}, s{sT0}, s{base}"]
    else:
        prep = [f"s_add_u32 m0, s{sBL}, {BPAGE[s] * PAGE}", f"s_add_u32 s{sT0}, s{base}, {idx * 16384}"]
    return [(prep, f"buffer_load_dwordx4 v{vBD}, {sr(sd)}, s{sT0} offen lds", ("B", s), True),
            ([], f"buffer_load_dwordx4 v{vBD+1}, {sr(sd)}, s{sT0} offen offset:1024 lds", ("B", s), False)]
def it_a(s, t):
    k, idx = step_kind(s)
    if k == "h" and idx < 16: prep = [f"s_xor_b32 s{sT3}, s{sHAK}, {idx * 1024 + t * HRT}"]
    elif k == "h": prep = [f"s_add_u32 s{sT3}, s{sHA2 if idx >= 20 else sHA}, {idx * 1024 + t * HRT}"]
    else: prep = [f"s_xor_b32 s{sT3}, s{sPQ}, {idx * 1024 + t * 32768}"]
    return (prep, f"buffer_load_dwordx4 {ar(areg(s, t))}, v{vL16}, {sr(SWS)}, s{sT3} offen sc1", ("A", s), False)
def emit_item(g, it):
    for x in it[0]: g.e(x)
    g.vmem(it[1], it[2])

def prologue(g):
    e = g.e
    e("s_cmp_ge_u32 s2, 256")
    e("s_cbranch_scc1 L_END")
    g.st.mark(g)
    e("s_load_dwordx16 s[4:19], s[0:1], 0")
    e("s_load_dwordx2 s[20:21], s[0:1], 64")
    if OPT["cpf"] == 1:
        e("s_getpc_b64 s[22:23]")
        e("v_lshlrev_b32 v252, 7, v0")
        g.vmem("global_load_dword v253, v252, s[22:23]", "pf")
    if OPT["cpf"] == 3:
        e("s_getpc_b64 s[22:23]")
        e("s_bfe_u32 s24, s2, 0x30003")
        e("s_mulk_i32 s24, 5120")
        e("v_mul_u32_u24 v252, 20, v0")
        e("v_add_u32 v252, s24, v252")
        e(f"v_min_u32 v252, L_END-{NAME}-256, v252")
        g.vmem("global_load_dword v253, v252, s[22:23]", "pf")
    if OPT["cpf"] == 2:
        e("s_getpc_b64 s[22:23]")
        e("s_bfe_u32 s24, s2, 0x30003")
        e("s_lshl_b32 s24, s24, 12")
        e("v_lshrrev_b32 v252, 3, v0")
        e("v_lshl_add_u32 v252, v252, 7, s24")
        g.vmem("global_load_dword v253, v252, s[22:23]", "pf")
    e("v_and_b32 v1, 63, v0")
    e("v_lshrrev_b32 v2, 6, v0")
    if OPT["lin"]: e(f"s_lshr_b32 s{sT0}, s2, 5")
    else: e(f"s_and_b32 s{sT0}, s2, 7")
    e(f"v_readfirstlane_b32 s{sW}, v2")
    if OPT["lin"]: e(f"s_and_b32 s{sT1}, s2, 31")
    else: e(f"s_lshr_b32 s{sT1}, s2, 3")
    e(f"s_and_b32 s{sRB}, s{sT0}, 3")
    e(f"s_lshl_b32 s{sRB}, s{sRB}, 2")
    e(f"s_lshr_b32 s{sT2}, s{sT1}, 3")
    e(f"s_add_u32 s{sRB}, s{sRB}, s{sT2}")
    e(f"s_lshl_b32 s{sRB2}, s{sT0}, 2")
    e(f"s_add_u32 s{sRB2}, s{sRB2}, s{sT2}")
    e(f"s_and_b32 s{sCB}, s{sT1}, 7")
    e(f"s_and_b32 s{sTYP}, s{sCB}, 1")
    e(f"s_lshr_b32 s{sJ}, s{sT0}, 2")
    e(f"s_lshl_b32 s{sJ}, s{sJ}, 2")
    e(f"s_lshr_b32 s{sT0}, s{sCB}, 1")
    e(f"s_add_u32 s{sJ}, s{sJ}, s{sT0}")
    if OPT["rot"] == 1: e(f"s_add_u32 s91, s{sCB}, s{sT2}")
    elif OPT["rot"] == 2: e(f"s_lshl_b32 s91, s{sT2}, 1"); e(f"s_add_u32 s91, s91, s{sCB}")
    elif OPT["rot"] in (6, 7):
        e(f"s_add_u32 s91, s{sCB}, s{sT2}")
        e("s_and_b32 s91, s91, %d" % (3 if OPT["rot"] == 6 else 1))
    elif OPT["rot"] in (3, 4, 5):
        e(f"s_lshr_b32 s91, s{sRB}, 2")
        e("s_lshl_b32 s91, s91, 1")
        e(f"s_and_b32 s92, s{sJ}, 4")
        e("s_add_u32 s91, s91, s92")
        if OPT["rot"] == 4:
            e(f"s_add_u32 s92, s{sCB}, s{sT2}")
            e("s_and_b32 s92, s92, 1")
            e("s_add_u32 s91, s91, s92")
        if OPT["rot"] == 5:
            e(f"s_add_u32 s92, s{sCB}, s{sT2}")
            e("s_and_b32 s92, s92, 3")
            e("s_add_u32 s91, s91, s92")
    else: e("s_mov_b32 s91, 0")
    e("v_lshrrev_b32 v12, 3, v1")
    e("v_and_b32 v13, 7, v1")
    e("v_lshrrev_b32 v14, 1, v12")
    e("v_xor_b32 v15, v13, v14")
    e("v_lshlrev_b32 v15, 4, v15")
    e(f"v_lshl_add_u32 v{vXD}, v12, 10, v15")
    e(f"v_xor_b32 v{vXD+1}, 64, v{vXD}")
    e(f"v_add_u32 v{vXD+2}, {2*7168}, v{vXD}")
    e(f"v_add_u32 v{vXD+3}, {3*7168}, v{vXD+1}")
    e(f"v_add_u32 v{vXD+1}, 7168, v{vXD+1}")
    e("v_and_b32 v14, 1, v14")
    e("v_lshlrev_b32 v14, 2, v14")
    e("v_xor_b32 v15, v13, v14")
    e("v_lshlrev_b32 v15, 4, v15")
    e("s_movk_i32 s97, 2752")
    e("s_movk_i32 s96, 3072")
    e(f"s_cmp_eq_u32 s{sTYP}, 0")
    e("s_cselect_b32 s98, s96, s97")
    e("s_cselect_b32 s99, s97, s96")
    e(f"v_mad_u32_u24 v{vWP}, s98, v12, v15")
    e("s_lshl_b32 s100, s98, 3")
    e("s_sub_u32 s100, s100, 1024")
    e(f"v_add_u32 v{vWP+1}, s100, v{vWP}")
    e(f"s_lshl_b32 s92, s{sRB}, 7")
    e(f"s_lshl_b32 s{sT0}, s{sW}, 5")
    e(f"s_add_u32 s92, s92, s{sT0}")
    e("s_lshl_b32 s92, s92, 10")
    e(f"s_lshl_b32 s93, s{sW}, 4")
    def tab(p):
        if OPT["rot"] in (6, 7): e(f"s_xor_b32 s{sT0}, s91, {p}")
        else:
            e(f"s_add_u32 s{sT0}, s91, {p}")
            e(f"s_and_b32 s{sT0}, s{sT0}, 7")
        e(f"s_lshl_b32 s{sXO+p}, s{sT0}, 7")
        e(f"s_add_u32 s{sXO+p}, s{sXO+p}, s92")
        e(f"s_lshl_b32 s{sT0}, s{sT0}, 6")
        e(f"s_add_u32 s{sT0}, s{sT0}, s93")
        e(f"s_mul_i32 s{sPO+p}, s{sT0}, s98")
        e(f"s_mul_i32 s{sSO+p}, s{sT0}, s99")
    g.tab = tab
    for p in range(3): tab(p)
    e(f"s_lshl_b32 s95, s{sJ}, 7")
    e(f"s_add_u32 s95, s95, 1024")
    e(f"s_lshr_b32 s{sT0}, s{sJ}, 1")
    e(f"s_mul_i32 s{sT0}, s{sT0}, 704")
    e(f"s_and_b32 s{sT1}, s{sJ}, 1")
    e(f"s_lshl_b32 s{sT1}, s{sT1}, 7")
    e(f"s_add_u32 s{sT0}, s{sT0}, s{sT1}")
    e(f"s_lshl_b32 s{SWP+2}, s98, 9")
    e(f"s_lshl_b32 s{SWS2+2}, s99, 9")
    e(f"s_mov_b32 s{SWP+3}, 0x00020000")
    e(f"s_mov_b32 s{SWS2+3}, 0x00020000")
    e(f"s_mov_b32 s{SX+2}, {2048*1024}")
    e(f"s_mov_b32 s{SX+3}, 0x00020000")
    e(f"s_cmp_eq_u32 s{sTYP}, 0")
    e(f"s_cselect_b32 s95, s95, s{sT0}")
    e("s_waitcnt lgkmcnt(0)")
    e(f"s_cselect_b32 s{SWP}, s6, s12")
    e(f"s_cselect_b32 s{SWP+1}, s7, s13")
    e(f"s_cselect_b32 s{SWS2}, s12, s6")
    e(f"s_cselect_b32 s{SWS2+1}, s13, s7")
    e(f"s_mov_b32 s{SX}, s4")
    e(f"s_and_b32 s{SX+1}, s5, 0xffff")
    e(f"s_and_b32 s{SWP+1}, s{SWP+1}, 0xffff")
    e(f"s_mov_b32 s{SWO}, s8")
    e(f"s_and_b32 s{SWO+1}, s9, 0xffff")
    e(f"s_mov_b32 s{sCOL[0]}, s95")
    e(f"s_lshl_b32 s{sXL}, s{sW}, 12")
    e(f"s_lshl_b32 s{sBL}, s{sW}, 11")

def setup1(g):
    e = g.e
    e(f"s_and_b32 s{SWS2+1}, s{SWS2+1}, 0xffff")
    e(f"s_mov_b32 s{SWO+2}, {512*1024}")
    e(f"s_mov_b32 s{SWO+3}, 0x00020000")
    srd(g, SWS, 20, WS_BYTES)
    srd(g, SDBG, 18, 256)
    srd(g, SW2, 14, 1376 * 1024)
    srd(g, SOUT, 16, 2048 * 1024)
    e(f"s_lshr_b32 s{sM}, s{sW}, 1")
    e(f"s_and_b32 s{sN}, s{sW}, 1")
    for p in range(3, 8): g.tab(p)

def setup2(g):
    e = g.e
    t = T
    e(f"v_mad_u32_u24 v{vWS}, s99, v12, v15")
    e("s_lshl_b32 s100, s99, 3")
    e("s_sub_u32 s100, s100, 1024")
    e(f"v_add_u32 v{vWS+1}, s100, v{vWS}")
    e(f"v_lshl_add_u32 v{vBD}, v12, 10, v15")
    e(f"v_add_u32 v{vBD+1}, 7168, v{vBD}")
    e(f"s_and_b32 s{sT0}, s{sJ}, 1")
    e(f"s_cmp_eq_u32 s{sJ}, 6")
    e(f"s_cselect_b32 s{sT0}, 1, s{sT0}")
    e(f"s_and_b32 s101, s{sT0}, s{sTYP}")
    e(f"v_bfe_u32 v{vSKIP}, v15, 6, 1")
    e(f"v_and_b32 v{vSKIP}, s101, v{vSKIP}")
    e(f"v_lshlrev_b32 v{vSKIP}, 30, v{vSKIP}")
    e(f"v_and_b32 v{t}, 31, v1")
    e(f"v_lshrrev_b32 v{t+1}, 5, v1")
    e(f"v_bfe_u32 v{t+2}, v1, 1, 3")
    e(f"s_lshl_b32 s{sT1}, s{sM}, 6")
    e(f"s_lshl_b32 s{sT0}, s{sN}, 5")
    e(f"s_add_u32 s{sT1}, s{sT1}, s{sT0}")
    e(f"v_add_u32 v{t+3}, s{sT1}, v{t}")
    e(f"v_lshlrev_b32 v{t+4}, 7, v{t+3}")
    for u in range(4):
        e(f"s_xor_b32 s{sT0}, s{sM}, {u}")
        e(f"s_lshl_b32 s{sT0}, s{sT0}, 1")
        e(f"v_add_u32 v{t+5}, s{sT0}, v{t+1}")
        e(f"v_xor_b32 v{t+5}, v{t+5}, v{t+2}")
        e(f"v_lshl_add_u32 v{vXA[0]+u}, v{t+5}, 4, v{t+4}")
        e(f"v_xor_b32 v{vXA[1]+u}, 0x1000, v{vXA[0]+u}")
    e(f"v_lshlrev_b32 v{vSTO}, 2, v{t+3}")
    e(f"v_add_u32 v{vSTO}, {M_RM}, v{vSTO}")
    e(f"v_xor_b32 v{vSTX}, 0x80, v{vSTO}")
    e(f"v_bfe_u32 v{t+5}, v1, 2, 2")
    e(f"v_and_b32 v{t+6}, 3, v1")
    e(f"v_bfe_u32 v{t+7}, v1, 4, 1")
    e(f"v_lshrrev_b32 v{t+8}, 1, v{t+6}")
    e(f"v_lshl_add_u32 v{t+8}, v{t+7}, 1, v{t+8}")
    e(f"v_lshrrev_b32 v{t+9}, 1, v{t+5}")
    e(f"v_lshlrev_b32 v{t+9}, 2, v{t+9}")
    e(f"v_xor_b32 v{t+8}, v{t+8}, v{t+9}")
    e(f"v_lshlrev_b32 v{t+8}, 4, v{t+8}")
    e(f"v_and_b32 v{t+9}, 1, v{t+6}")
    e(f"v_lshl_add_u32 v{t+8}, v{t+9}, 3, v{t+8}")
    e(f"v_lshl_add_u32 v{t+8}, v{t+5}, 7, v{t+8}")
    e(f"v_lshl_add_u32 v247, v{t+1}, 9, v{t+8}")
    e(f"v_lshl_add_u32 v{t+9}, v{t+1}, 10, v{t+8}")
    e(f"s_lshl_b32 s{sT0}, s{sN}, 6")
    e(f"v_xor_b32 v{t+9}, s{sT0}, v{t+9}")
    e(f"s_lshl_b32 s{sT0}, s{sM}, 11")
    e(f"v_add_u32 v{vWA}, s{sT0}, v{t+9}")
    e(f"v_subrev_u32 v{vWA+1}, s{sT0}, v{t+9}")
    e(f"v_add_u32 v{vWA+1}, 2048, v{vWA+1}")
    for r in (1, 2):
        e(f"v_add_u32 v{vWA+2*r}, {65536*r}, v{vWA}")
        e(f"v_add_u32 v{vWA+2*r+1}, {65536*r}, v{vWA+1}")
    e(f"v_lshlrev_b32 v{vL16}, 4, v1")
    e(f"v_cmp_eq_u32 {sr(mB4,2)}, 1, v{t+7}")
    e(f"v_cmp_eq_u32 {sr(mH,2)}, 1, v{t+1}")
    e(f"v_and_b32 v{t+9}, 1, v1")
    e(f"v_cmp_eq_u32 {sr(mB0,2)}, 1, v{t+9}")
    e(f"v_and_b32 v{t+10}, 2, v1")
    e(f"v_cmp_eq_u32 {sr(mB1,2)}, 2, v{t+10}")
    e(f"v_cmp_eq_u32 vcc, v{t+9}, v{t+7}")
    e(f"v_mov_b32 v{t+10}, 0x3f803f80")
    for r in range(4): e(f"v_cndmask_b32 v{MO+r}, 0, v{t+10}, vcc")
    for r in range(1, 4):
        e(f"v_mov_b32 v{AAUG[0]+r}, 0"); e(f"v_mov_b32 v{AAUG[1]+r}, 0"); e(f"v_mov_b32 v{BAUG+r}, 0")
    e(f"v_mov_b32 v{vZERO}, 0")
    e(f"s_mov_b32 s{sLOG}, 0x3fb8aa3b")
    e(f"s_mov_b32 s{sLOG+1}, 0x3fb8aa3b")
    e(f"s_mov_b32 s{sEPS}, 0x%08x" % f2u(1e-6))
    e(f"s_lshl_b32 s{sT0}, s{sN}, 1")
    e(f"s_add_u32 s{sT0}, s{sT0}, s{sM}")
    e(f"s_lshl_b32 s{sT0}, s{sT0}, 7")
    e(f"s_add_u32 s{sT0}, s{sT0}, {M_CS}")
    e(f"v_lshl_add_u32 v{vCSW}, v{t}, 2, s{sT0}")
    e(f"v_xor_b32 v{vCSR}, 0x80, v{vCSW}")
    e(f"v_lshlrev_b32 v{t+9}, 4, v{t+1}")
    e(f"s_lshl_b32 s{sT0}, s{sT1}, 2")
    e(f"s_add_u32 s{sT0}, s{sT0}, {M_RR}")
    e(f"v_add_u32 v{vRR}, s{sT0}, v{t+9}")
    e(f"v_xor_b32 v{vRR+1}, 0x80, v{vRR}")
    e(f"s_lshl_b32 s{sT0}, s{sRB}, 2")
    e(f"s_lshl_b32 s{sT2}, s{sM}, 1")
    e(f"s_add_u32 s{sT0}, s{sT0}, s{sT2}")
    e(f"s_add_u32 s{sRT[0]}, s{sT0}, s{sN}")
    e(f"s_xor_b32 s{sRT[1]}, s{sRT[0]}, 1")
    e(f"v_and_b32 v{t+9}, 15, v1")
    e(f"v_lshlrev_b32 v{vFLO}, 3, v{t+9}")
    e(f"v_lshlrev_b32 v{vCTLO}, 2, v1")
    e(f"s_lshr_b32 s{sT0}, s{sJ}, 1")
    e(f"s_mul_i32 s{sT0}, s{sT0}, 704")
    e(f"s_and_b32 s{sT1}, s{sJ}, 1")
    e(f"s_lshl_b32 s{sT2}, s{sT1}, 7")
    e(f"s_add_u32 s{sT2}, s{sT2}, s{sT0}")
    e(f"s_add_u32 s{sCOL[2]}, s{sT2}, 256")
    e(f"s_lshl_b32 s{sT1}, s{sT1}, 6")
    e(f"s_sub_u32 s{sT0}, s{sT0}, s{sT1}")
    e(f"s_add_u32 s{sT0}, s{sT0}, 576")
    e(f"s_lshl_b32 s{sCOL[1]}, s{sJ}, 7")
    e(f"s_add_u32 s{sT2}, s{sCOL[1]}, 2048")
    e(f"s_cmp_eq_u32 s{sTYP}, 0")
    e(f"s_cselect_b32 s{sCOL[1]}, s{sT2}, s{sCOL[1]}")
    e(f"s_cselect_b32 s{sCOL[2]}, s{sCOL[2]}, s{sT0}")
    e(f"s_lshl_b32 s{sT0}, s{sN}, 11")
    e(f"s_lshl_b32 s{sHST[1]}, s{sJ}, 12")
    e(f"s_add_u32 s{sHST[1]}, s{sHST[1]}, s{sT0}")
    e(f"s_add_u32 s{sHST[1]}, s{sHST[1]}, {QB}")
    e(f"s_lshr_b32 s{sT1}, s{sJ}, 1")
    e(f"s_mul_i32 s{sT1}, s{sT1}, 10240")
    e(f"s_add_u32 s{sT0}, s{sT0}, s{sT1}")
    for c in (0, 2):
        e(f"s_lshl_b32 s{sHST[c]}, s{sCOL[c]}, 5")
        e(f"s_add_u32 s{sHST[c]}, s{sHST[c]}, s{sT0}")
    e(f"s_and_b32 s{sT0}, s101, s{sN}")
    e(f"s_cmp_eq_u32 s{sT0}, 1")
    e(f"s_cselect_b32 s{sHST[2]}, {OOB}, s{sHST[2]}")
    e(f"s_lshl_b32 s{sT0}, s{sCB}, 7")
    e(f"s_mul_i32 s{sB2}, s{sW}, {22 * 16 * 1024}")
    e(f"s_add_u32 s{sB2}, s{sB2}, s{sT0}")
    e(f"s_lshl_b32 s{sBO}, s{sW}, 17")
    e(f"s_add_u32 s{sBO}, s{sBO}, s{sT0}")
    e(f"s_lshl_b32 s{sXR}, s{sRB2}, 16")
    e(f"s_add_u32 s{sXR}, s{sXR}, s{sT0}")
    e(f"s_add_u32 s{sXR+1}, s{sXR}, 32768")
    e(f"s_lshl_b32 s{sHA}, s{sRB2}, 3")
    e(f"s_add_u32 s{sHA}, s{sHA}, s{sW}")
    e(f"s_lshl_b32 s{sHA}, s{sHA}, 15")
    e(f"s_cmp_eq_u32 s{sW}, 3")
    e(f"s_cselect_b32 s{sHA2}, {OOB}, s{sHA}")
    e(f"s_lshl_b32 s{sPQ}, s{sRB2}, 6")
    e(f"s_lshl_b32 s{sT0}, s{sW}, 3")
    e(f"s_add_u32 s{sPQ}, s{sPQ}, s{sT0}")
    e(f"s_lshl_b32 s{sPQ}, s{sPQ}, 10")
    e(f"s_add_u32 s{sPQ}, s{sPQ}, {QB}")
    e(f"s_mul_i32 s{sKV}, s{sW}, {8 * KVH}")
    e(f"s_add_u32 s{sKV}, s{sKV}, {KVB}")
    if STAMP: e("v_writelane_b32 v255, s2, 63")
    e(f"s_lshl_b32 s{sFL}, s{sRB2}, 2")
    e(f"s_add_u32 s{sFL}, s{sFL}, s{sW}")
    e(f"s_lshl_b32 s{sFL}, s{sFL}, 7")
    e(f"s_add_u32 s{sFL}, s{sFL}, {FLB}")
    e(f"s_lshl_b32 s{sKF}, s{sW}, 10")
    e(f"s_add_u32 s{sKF}, s{sKF}, {KFB}")

def I(t, c=1): return ("i", t, c)
def setup3_ops():
    L = [I(f"v_add_u32 v{vBT}, s{sBL}, v247"), I(f"v_xor_b32 v{vBT+1}, 64, v{vBT}")]
    for r in (1, 2):
        L += [I(f"v_add_u32 v{vBT+2*r}, {65536*r}, v{vBT}"), I(f"v_add_u32 v{vBT+2*r+1}, {65536*r}, v{vBT+1}")]
    L += [I(f"v_lshrrev_b32 v{vXD}, 5, v1"),
          I(f"v_lshlrev_b32 v{vXD+1}, 8, v{vXD}"),
          I(f"v_lshl_add_u32 v{vXD+1}, v{vFLO}, 1, v{vXD+1}"),
          I(f"v_lshlrev_b32 v{vXD}, 4, v{vXD}"),
          I(f"v_add_u32 v{vXD}, 1024, v{vXD}"),
          I(f"v_cndmask_b32 v{vKVO}, v{vXD+1}, v{vXD}, {sr(mB4,2)}"),
          I(f"v_add_u32 v{vXD+1}, 480, v{vXD+1}"),
          I(f"v_cndmask_b32 v{vXD+2}, v{vXD+1}, v{vXD}, {sr(mB4,2)}"),
          I(f"v_lshrrev_b32 v{vXD}, 3, v0"),
          I(f"v_and_b32 v{vXD+1}, 7, v0"),
          I(f"v_lshlrev_b32 v{vXD+1}, 4, v{vXD+1}"),
          I(f"v_lshl_add_u32 v{vXO}, v{vXD}, 10, v{vXD+1}")]
    return L

def read_x1(g, p, u, t):
    off = XPAGE[p % 5] * PAGE
    if off < 65536:
        g.ds(f"ds_read_b128 {ar(X(t, p, u))}, v{vXA[t] + u} offset:{off}", ("X", p, u))
    else:
        g.e(f"v_add_u32 v{vTMP}, {off}, v{vXA[t] + u}")
        g.ds(f"ds_read_b128 {ar(X(t, p, u))}, v{vTMP}", ("X", p, u))
def read_x(g, p, u):
    for t in range(2): read_x1(g, p, u, t)
def read_w(g, step):
    gi, u = step >> 2, step & 3
    b = WF[step % 3]
    pg = WPAGE[gi]
    off = (pg & 7) * PAGE + (u & ~1) * 2048
    a = vWA + 2 * (pg >> 3) + (u & 1)
    g.ds(f"ds_read_b64_tr_b16 v[{b}:{b+1}], v{a} offset:{off}", ("Wf", step))
    g.ds(f"ds_read_b64_tr_b16 v[{b+2}:{b+3}], v{a} offset:{off + 512}", ("Wf", step))

def flag_store(addr_ops, tag):
    return [("blk", addr_ops, 6), ("waitvm", tag),
            ("blk", ["s_mov_b64 exec, 1",
                     ("vm", f"buffer_store_dwordx2 v[{vNON}:{vNON+1}], v{vZERO}, {sr(SWS)}, s{sT1} offen sc1"),
                     "s_mov_b64 exec, -1"], 4)]
def flag_addr(kind):
    return [f"s_lshl_b32 s{sT1}, s{sRB}, 1", f"s_add_u32 s{sT1}, s{sT1}, s{sM}", f"s_lshl_b32 s{sT1}, s{sT1}, 2",
            f"s_lshr_b32 s{sT2}, s{sJ}, 1", f"s_add_u32 s{sT1}, s{sT1}, s{sT2}", f"s_lshl_b32 s{sT1}, s{sT1}, 4",
            f"s_and_b32 s{sT2}, s{sJ}, 1", f"s_lshl_b32 s{sT2}, s{sT2}, 1", f"s_add_u32 s{sT1}, s{sT1}, s{sT2}",
            f"s_add_u32 s{sT1}, s{sT1}, s{sN}", f"s_add_u32 s{sT1}, s{sT1}, {kind * 4}", f"s_lshl_b32 s{sT1}, s{sT1}, 3",
            f"s_add_u32 s{sT1}, s{sT1}, {FLB}"]
def kvflag_addr():
    return [f"s_lshl_b32 s{sT1}, s{sRB}, 2", f"s_add_u32 s{sT1}, s{sT1}, s{sW}", f"s_lshl_b32 s{sT1}, s{sT1}, 3",
            f"s_lshl_b32 s{sT2}, s{sJ}, 9", f"s_add_u32 s{sT1}, s{sT1}, s{sT2}", f"s_add_u32 s{sT1}, s{sT1}, {KFB}"]
def bfr(d, s): return [I(f"v_cvt_pk_bf16_f32 v{d}, v{s}, v{s}"), I(f"v_and_b32 v{d}, 0xffff0000, v{d}")]
SEL = ["op_sel:[0,0] op_sel_hi:[1,0]", "op_sel:[0,1] op_sel_hi:[1,1]"]
SEL3 = ["op_sel:[0,0,0] op_sel_hi:[1,0,1]", "op_sel:[0,1,0] op_sel_hi:[1,1,1]"]

def epilogue(c, typ, fast):
    L = []
    A = ACCS[c & 1]
    corient = (typ == 0 and c < 2)
    t = T; cs = vCSV
    bau = [I(f"v_add_f32 v{cs}, v{cs}, v{vCSP}"),
           I(f"v_cvt_pk_bf16_f32 v{t}, -v{cs}, -v{cs}"),
           I(f"v_and_b32 v{t}, 0xffff0000, v{t}"),
           I(f"v_sub_f32 v{t}, -v{cs}, v{t}"),
           I(f"v_cvt_pk_bf16_f32 v{t}, -v{cs}, v{t}"),
           I(f"v_cndmask_b32 v{BAUG}, v{t}, 0, {sr(mH,2)}")]
    if c == 0:
        L += [I(f"v_cndmask_b32 v{t+1}, v{S1}, v{S1+1}, {sr(mB4,2)}")]
        L += [I(f"v_add_f32 v{Q0+r}, v{Q0+r}, v{Q1+r}") for r in range(4)]
        L += [I(f"v_cndmask_b32 v{t+2}, v{Q0}, v{Q0+1}, {sr(mB0,2)}"),
              I(f"v_cndmask_b32 v{t+3}, v{Q0+2}, v{Q0+3}, {sr(mB0,2)}"),
              I(f"v_cndmask_b32 v{t+2}, v{t+2}, v{t+3}, {sr(mB1,2)}"),
              I(f"v_mov_b32 v{t+3}, v{t+2}"),
              I(f"v_mul_f32 v{t+1}, 0x3b000000, v{t+1}"),
              I(f"v_cvt_pk_bf16_f32 v{AAUG[0]}, v{t+1}, v{t+1}"),
              I(f"v_permlane32_swap_b32 v{t+2}, v{t+3}"),
              I(f"v_add_f32 v{t+2}, v{t+2}, v{t+3}"),
              I(f"v_mul_f32 v{t+2}, 0x3b000000, v{t+2}"),
              I(f"v_fma_f32 v{t+2}, -v{t+1}, v{t+1}, v{t+2}"),
              I(f"v_max_f32 v{t+2}, 0, v{t+2}")]
        L += bfr(t+2, t+2)
        L += [I(f"v_add_f32 v{t+2}, 0x%08x, v{t+2}" % f2u(1e-5))]
        L += bfr(t+2, t+2)
        L += [I(f"v_sqrt_f32 v{t+2}, v{t+2}", 2), ("ds", f"ds_write_b32 v{vSTO}, v{AAUG[0]}", "fw")]
        L += bfr(t+2, t+2)
        L += [I(f"v_rcp_f32 v{RL}, v{t+2}", 2), bau[0]]
        L += [("ds", f"ds_write_b32 v{vSTO}, v{RL} offset:512", "fw"), ("bar", bau[1:])]
        L += [("ds", f"ds_read_b32 v{AAUG[1]}, v{vSTX}", "fr"), ("ds", f"ds_read_b32 v{RL+1}, v{vSTX} offset:512", "fr")]
        if typ == 0:
            for tt in range(2):
                for q in range(4):
                    L += [("ds", f"ds_read_b128 {vr(RROW[tt] + 4*q)}, v{vRR+tt} offset:{32*q}", "fr")]
        L += [("delay", 1), ("waitlg", "fr")]
    else:
        L += bau
    for tt in range(2):
        a, b = (vr(AAUG[tt]), vr(BAUG)) if corient else (vr(BAUG), vr(AAUG[tt]))
        L += [("mfma", f"v_mfma_f32_32x32x16_bf16 {vr(A[tt],16)}, {a}, {b}, {vr(A[tt],16)}")]
    L += [("delay", 1)]
    def pk(op, d, a, b, c3=None, mod=""):
        s = f"{op} v[{d}:{d+1}], v[{a}:{a+1}], {b}"
        if c3 is not None: s += f", v[{c3}:{c3+1}]"
        return s + (" " + mod if mod else "")
    def cvt(tt, d): return [I(f"v_cvt_pk_bf16_f32 v{d+q}, v{A[tt]+2*q}, v{A[tt]+2*q+1}") for q in range(8)]
    def store(tt, d, stride, tag):
        return [("st", [([f"s_mul_i32 s{sT3}, s{sRT[tt]}, {stride}", f"s_add_u32 s{sT3}, s{sT3}, s{sHST[c]}"],
                         f"buffer_store_dwordx4 {vr(d)}, v{vL16}, {sr(SWS)}, s{sT3} offen sc1", tag, True),
                        ([], f"buffer_store_dwordx4 {vr(d+4)}, v{vL16}, {sr(SWS)}, s{sT3} offen offset:1024 sc1", tag, False)])]
    tag = "st%d" % c
    if c == 1 and typ == 1:
        L += [("burst", [pk("v_pk_mul_f32", t+16*tt+2*q, A[tt]+2*q, f"v[{RLL}:{RLL+1}]", None, SEL[tt]) for tt in range(2) for q in range(8)])]
        L += [("rate", OPT["qrate"])]
        for tt in range(2):
            for r in range(16):
                L += [I(f"v_exp_f32_e64 v{t+16*tt+r}, v{t+16*tt+r} clamp", 2), I(f"v_max_f32 v{A[tt]+r}, v{EPSR+tt}, v{A[tt]+r}")]
        L += [("burst", [pk("v_pk_fma_f32", A[tt]+2*q, A[tt]+2*q, f"v[{RL}:{RL+1}]", t+16*tt+2*q, SEL3[tt]) for tt in range(2) for q in range(8)])]
        for tt in range(2): L += cvt(tt, VF + 8*tt) + store(tt, VF + 8*tt, 32768, tag)
        L += [("rate", 0), ("delay", OPT["fdelay"])] + flag_store(flag_addr(1), tag)
    elif c == 0 and typ == 0:
        B = [pk("v_pk_mul_f32", A[tt]+2*q, A[tt]+2*q, f"v[{RROW[tt]+2*q}:{RROW[tt]+2*q+1}]") for tt in range(2) for q in range(8)]
        B += [pk("v_pk_mul_f32", t+16*tt+2*q, A[tt]+2*q, sr(sLOG, 2)) for tt in range(2) for q in range(8)]
        L += [("burst", B), ("rate", OPT["krate"])]
        for tt in range(2):
            for r in range(16):
                L += [I(f"v_exp_f32_e64 v{t+16*tt+r}, v{t+16*tt+r} clamp", 2), I(f"v_max_f32 v{A[tt]+r}, s{sEPS}, v{A[tt]+r}")]
        L += [("burst", [pk("v_pk_add_f32", A[tt]+2*q, A[tt]+2*q, f"v[{t+16*tt+2*q}:{t+16*tt+2*q+1}]") for tt in range(2) for q in range(8)])]
        for tt in range(2): L += cvt(tt, PK + 8*tt)
        L += [("rate", 0)]
    elif c == 1 and typ == 0:
        B = [pk("v_pk_mul_f32", A[tt]+2*q, A[tt]+2*q, f"v[{RROW[tt]+2*q}:{RROW[tt]+2*q+1}]") for tt in range(2) for q in range(8)]
        B += [x[1] for tt in range(2) for x in cvt(tt, VF + 8*tt)]
        L += [("burst", B)]
        KVA = A[0]
        adr = [I(f"v_bfe_u32 v{t+16}, v1, 4, 1"), I(f"v_mul_u32_u24 v{t+16}, {KVH}, v{t+16}"),
               ("blk", [f"s_mul_i32 s{sT1}, s{sM}, 4352", f"s_mul_i32 s{sT2}, s{sN}, 2176", f"s_add_u32 s{sT1}, s{sT1}, s{sT2}",
                        f"s_add_u32 s{sT1}, s{sT1}, {M_KV}", f"v_add_u32 v{t+16}, s{sT1}, v{t+16}"], 5),
               I(f"v_lshrrev_b32 v{t+17}, 5, v1"),
               I(f"v_lshrrev_b32 v{t+18}, 1, v{vFLO}"), I(f"v_add_u32 v{t+18}, v{t+18}, v{t+16}"),
               I(f"v_lshl_add_u32 v{t+16}, v{t+17}, 8, v{t+16}"),
               I(f"v_lshl_add_u32 v{t+16}, v{vFLO}, 1, v{t+16}"), I(f"v_lshlrev_b32 v{t+19}, 2, v0"),
               I(f"v_add_u32 v{t+20}, {M_KV}, v{t+19}"),
               I(f"v_cndmask_b32 v{t+8}, v{S1}, v{S1+1}, {sr(mB4,2)}"),
               ("ds", f"ds_write_b32 v{t+18}, v{t+8} offset:1024", "fw")]
        ms = []
        for i in range(4): ms.append(f"v_mfma_f32_16x16x32_bf16 {vr(S1)}, {vr(MO)}, {vr(PK+4*i)}, {'0' if i == 0 else vr(S1)}")
        L.insert(len(L) - 1, ("burst", ms))
        ms = []
        for i in range(4): ms.append(f"v_mfma_f32_32x32x16_bf16 {vr(KVA,16)}, {vr(PK+4*i)}, {vr(VF+4*i)}, {'0' if i == 0 else vr(KVA,16)}")
        L += [("mfmas", ms, adr), ("delay", 1)]
        L += [I(f"v_cndmask_b32 v{t+r}, v{KVA+r}, v{KVA+8+r}, {sr(mB4,2)}") for r in range(8)]
        L += [("ds", f"ds_write_b128 v{t+16}, {vr(t)}", "fw"), ("ds", f"ds_write_b128 v{t+16}, {vr(t+4)} offset:512", "fw")]
        L += [("bar", setup3_ops())]
        L += [("ds", f"ds_read2st64_b32 v[{t+2*i}:{t+2*i+1}], v{t+20} offset0:{4*i} offset1:{17+4*i}", "fr") for i in range(5)]
        L += [("delay", 1), ("waitlg", "fr")]
        L += [I(f"v_add_f32 v{t+2*i}, v{t+2*i}, v{t+2*i+1}") for i in range(5)]
        its = []
        for i in range(4):
            prep = [f"s_mul_i32 s{sT3}, s{sJ}, 4352", f"s_add_u32 s{sT3}, s{sT3}, {KVB}"] if i == 0 else []
            its.append((prep, f"buffer_atomic_add_f32 v{t+2*i}, v{t+19}, {sr(SWS)}, s{sT3} offen offset:{1024*i}", "at", True))
        its.append(([f"s_add_u32 s{sT3}, s{sT3}, 4096", f"s_cmp_eq_u32 s{sW}, 0", f"s_cselect_b32 s{sT3}, s{sT3}, {OOB}"],
                    f"buffer_atomic_add_f32 v{t+8}, v{t+19}, {sr(SWS)}, s{sT3} offen", "at", False))
        L += [("st", its), ("delay", OPT["adelay"])] + flag_store(kvflag_addr(), "at")
    else:
        if not fast and OPT["hb"]:
            L += [("burst", [pk("v_pk_mul_f32", A[tt]+2*q, A[tt]+2*q, f"v[{RL}:{RL+1}]", None, SEL[tt]) for tt in range(2) for q in range(8)])]
        for tt in range(2):
            d = VF + 8*tt
            if fast: L += [I(pk("v_pk_mul_f32", A[tt]+2*q, A[tt]+2*q, f"v[{RL}:{RL+1}]", None, SEL[tt])) for q in range(8)]
            elif not OPT["hb"]: L += [I(f"v_mul_f32 v{A[tt]+r}, v{RL+tt}, v{A[tt]+r}") for r in range(16)]
            for hf in range(2):
                L += [I(f"v_cvt_pk_bf16_f32 v{d+q}, v{A[tt]+2*q}, v{A[tt]+2*q+1}") for q in range(4*hf, 4*hf+4)]
                L += [I(f"v_pk_max_i16 v{d+q}, v{d+q}, 0") for q in range(4*hf, 4*hf+4)]
                if fast: L += [("st", [store(tt, d, HRT, tag)[0][1][hf]])]
            if not fast: L += store(tt, d, HRT, tag)
        kind = 0 if c == 0 else (2 if typ == 0 else 3)
        if c == 0:
            L += [I(f"v_mul_f32 v{RLL+tt}, s{sLOG}, v{RL+tt}") for tt in range(2)]
            L += [I(f"v_rcp_f32 v{EPSR+tt}, v{RL+tt}", 2) for tt in range(2)]
            L += setup3_ops()
            L += [I(f"v_mul_f32 v{EPSR+tt}, s{sEPS}, v{EPSR+tt}") for tt in range(2)]
        L += [("delay", OPT["hdelay"])] if not fast else [("late",)]
        L += flag_store(flag_addr(kind), tag)
    return L

class Sched:
    def __init__(self, g, typ):
        self.g = g; self.typ = typ
        self.q = []; self.side = []; self.wait_bar = False; self.delay = 0
        self.wq = []; self.sq = []; self.aq = []; self.bq = []
        self.cur = None
        self.bar = -1; self.free_stage = 0; self.tok = 0.0; self.extra = 0; self.pages = []; self.bnext = 0; self.step = 0
    def adv(self, cy): self.tok = min(2.0, self.tok + cy / (OPT["pc2"] if 16 <= self.bar < 24 else OPT["period"]))
    def pick(self, force=False):
        if self.cur is not None: return self.cur
        if self.sq: return self.sq
        if self.wq and self.wq[0][0] <= self.bar and (self.tok >= 1 or force or self.wq[0][2][2][1] <= self.bar + 4): return self.wq
        if self.tok < 1 and not force: return None
        a_ok = self.aq and self.aq[0][0] < self.free_stage
        if not self.bq and self.bnext < 30 and self.pages and not self.wq and not (self.bar < 24 and self.step >= OPT["quiet"]):
            BPAGE[self.bnext] = self.pages.pop(0)
            self.bq = [(0, 0, it) for it in it_b(self.bnext)]; self.bnext += 1
        b_ok = bool(self.bq)
        if a_ok and b_ok:
            sa = self.aq[0][2][2][1]; sb = self.bq[0][2][2][1]
            if sa == 99: sa = 0
            return self.bq if sb <= sa + OPT["bl"] else self.aq
        if a_ok: return self.aq
        if b_ok: return self.bq
        return None
    def vm(self, force=False):
        q = self.pick(force)
        if q is None: return 0
        it = q.pop(0)[2] if q is not self.sq else q.pop(0)
        emit_item(self.g, it)
        self.cur = q if it[3] else None
        tg = it[2]
        isw1 = isinstance(tg, tuple) and tg[0] == "W" and ((self.typ == 0 and tg[1] >= 16) or (self.typ == 1 and not 8 <= tg[1] < 16))
        self.tok -= OPT["w1w"] / 10.0 if isw1 else 0.3 if tg == "at" else 1
        self.tok = max(self.tok, -OPT["debt"])
        return len(it[0]) + 2
    def emit1(self, op):
        g = self.g; k = op[0]
        if k == "i": g.e(op[1])
        elif k == "ds": g.ds(op[1], op[2])
        elif k == "vm": g.vmem(op[1], op[2] if len(op) > 2 else "misc")
        elif k == "mfma": g.e(op[1])
        elif k == "waitlg": g.wait(lg=op[1])
        elif k == "waitvm":
            if VERB: print("   typ", self.typ, "waitvm", op[1], "at step", self.step)
            while self.sq or self.cur is not None: self.vm(True)
            g.wait(vm=op[1])
        elif k in ("blk", "burst"):
            for x in op[1]:
                if isinstance(x, str): g.e(x)
                else: self.emit1(x)
        elif k == "st":
            if VERB: print("   typ", self.typ, "st", op[1][0][2], "at step", self.step)
            self.sq += op[1]
    def cost(self, op):
        k = op[0]
        if k in ("i", "blk"): return op[2]
        return {"ds": 1, "vm": 2, "waitlg": 1, "waitvm": 1, "st": 0}[k]
    def tick(self):
        if self.delay > 0: self.delay -= 1
    def fill(self, slots):
        slots = min(slots, 4) + self.extra
        while slots > 0:
            if self.side: q = self.side
            elif self.q and not self.wait_bar and self.delay == 0: q = self.q
            else: return
            op = q[0]
            if op[0] in ("mfma", "mfmas", "late", "burst"): return
            if op[0] == "bar": q.pop(0); self.wait_bar = True; self.side = list(op[1]); continue
            if op[0] == "delay": q.pop(0); self.delay = op[1]; return
            if op[0] == "rate": q.pop(0); self.extra = op[1]; continue
            if op[0] == "i" and self.cost(op) > slots: return
            q.pop(0); slots -= self.cost(op); self.emit1(op)
    def big(self):
        while self.q and not self.side and self.q[0][0] in ("mfma", "mfmas", "burst") and not self.wait_bar and self.delay == 0:
            op = self.q.pop(0)
            if op[0] == "burst":
                for n, x in enumerate(op[1]):
                    self.g.e(x)
                    if n % 16 == 15: self.adv(72); self.vm()
            elif op[0] == "mfma":
                self.g.e(op[1]); self.adv(32); self.vm()
            else:
                self.side = list(op[2]); self.delay = 1
                for m in op[1]:
                    self.g.e(m); self.adv(32); self.fill(6 - self.vm())
                while self.side: self.emit1(self.side.pop(0))
                self.delay = 0
                return
    def drain(self, until_late=False):
        while self.side: self.emit1(self.side.pop(0))
        if self.wait_bar and self.q:
            self.g.wait(lg="fw"); self.g.e("s_barrier")
        self.wait_bar = False; self.delay = 0
        while self.q:
            op = self.q[0]
            if op[0] == "late":
                if until_late: return
                self.q.pop(0); continue
            self.q.pop(0)
            if op[0] == "bar":
                for x in op[1]: self.emit1(x)
                self.g.wait(lg="fw"); self.g.e("s_barrier"); continue
            if op[0] == "delay": continue
            if op[0] == "rate": self.extra = op[1]; continue
            if op[0] == "mfmas":
                for m in op[1]: self.g.e(m)
                for x in op[2]: self.emit1(x)
                continue
            self.emit1(op)
            if op[0] == "st":
                while self.sq or (self.cur is not None and self.cur is not self.sq): self.vm(True)

npoll = [0]
def poll(g, first_tag, reload, check):
    if OPT["dbg"] & 1: return
    n = npoll[0]; npoll[0] += 1
    g.wait(vm=first_tag)
    g.e(f"s_mov_b32 s{sT2}, 0")
    check()
    g.e(f"s_cbranch_scc1 L_POK{n}")
    g.label(f"L_PL{n}")
    if OPT["slp"]: g.e("s_sleep %d" % OPT["slp"])
    g.e(reload)
    g.e("s_waitcnt vmcnt(0)")
    g.e(f"s_add_u32 s{sT2}, s{sT2}, 1")
    g.e(f"s_cmp_gt_u32 s{sT2}, {OPT['spin']}")
    g.e(f"s_cbranch_scc1 L_POK{n}")
    check()
    g.e(f"s_cbranch_scc0 L_PL{n}")
    g.label(f"L_POK{n}")
    g.e("s_nop 4")
    if STAMP == 1: g.e(f"v_writelane_b32 v255, s{sT2}, {52 + n % 5}")

CTL_LD = f"buffer_load_dword v{vCTL}, v{vCTLO}, {sr(SDBG)}, 0 offen sc1"
FLG_LD = f"buffer_load_dwordx2 v[{vFLG}:{vFLG+1}], v{vFLO}, {sr(SWS)}, s{sFL} offen sc1"
KFL_LD = f"buffer_load_dwordx4 {vr(vKFL)}, v{vL16}, {sr(SWS)}, s{sKF} offen sc1"
def flag_check(g, mask):
    def f():
        g.e(f"v_cmp_eq_u64 vcc, v[{vFLG}:{vFLG+1}], {sr(sNON,2)}")
        g.e(f"s_and_b32 vcc_lo, vcc_lo, {mask}")
        g.e(f"s_cmp_eq_u32 vcc_lo, {mask}")
    return f

def body(g, typ):
    e = g.e
    S = Sched(g, typ)
    S.wq = [(-1, 0, it) for it in g.wq0]
    S.cur = S.wq if g.cur_open else None
    for p in range(4, 8):
        S.wq += [(p - 4, 0, it) for it in it_x(p)] + [(-1, 0, it) for it in it_w(typ, p)]
    for k, gi in enumerate(WORDER):
        if OPT["dpf"] and OPT["dpos"] == 2 and k == OPT["dk"]: S.wq += [(-1, 0, it) for it in it_touch()]
        if k == OPT["t3"]: S.wq += [(-1, 0, it) for it in it_touch3()]
        S.wq += [(max(WAV[gi], OPT['wp'] if k >= 4 else -1), 0, it) for it in it_w(typ, gi)]
    BPAGE.clear()
    if OPT["dbg"] & 8: S.bnext = 30
    prq = [(s2, ct) for s2 in range(8) for ct in range(2)] if OPT["pr"] else []
    prel = []
    if OPT["dbg"] & 64: S.wq = []
    for gi in range(24):
        c, p = gi >> 3, gi & 7
        corient = (typ == 0 and c < 2)
        A = ACCS[c & 1]
        for u in range(4):
            step = gi * 4 + u
            first = (p == 0 and u == 0)
            wf = vr(WF[step % 3])
            S.tick(); S.step = step
            if step == OPT["qs"]:
                while S.cur is not None: S.vm(True)
                g.vmem(FLG_LD, "flg"); g.vmem(KFL_LD, "kfl")
            if first and c > 0:
                e(f"v_cndmask_b32 v{vCSV}, v{CS}, v{CS+1}, {sr(mB4,2)}")
            S.big()
            if (u % 2 == 0 or p == 7) and not OPT["dbg"] & 16:
                e(f"v_mfma_f32_16x16x32_bf16 {vr(CS)}, {vr(MO)}, {wf}, {'0' if first else vr(CS)}"); S.adv(16)
            if c == 0:
                x0 = X(0, p, u)
                e(f"v_mfma_f32_4x4x4_16b_bf16 {vr(Q0)}, a[{x0}:{x0+1}], a[{x0}:{x0+1}], {'0' if first else vr(Q0)}")
                e(f"v_mfma_f32_4x4x4_16b_bf16 {vr(Q1)}, a[{x0+2}:{x0+3}], a[{x0+2}:{x0+3}], {'0' if first else vr(Q1)}")
                e(f"v_mfma_f32_16x16x32_bf16 {vr(S1)}, {vr(MO)}, {ar(x0)}, {'0' if first else vr(S1)}"); S.adv(40)
                read_w(g, step + 2)
            def M(t):
                cc = "0" if first else vr(A[t], 16)
                a, b = (ar(X(t, p, u)), wf) if corient else (wf, ar(X(t, p, u)))
                e(f"v_mfma_f32_32x32x16_bf16 {vr(A[t],16)}, {a}, {b}, {cc}"); S.adv(32)
            M(0)
            sl = 6
            if c == 0:
                if step + 2 < 32: read_x1(g, (step + 2) >> 2, (step + 2) & 3, 0); sl -= 1
                sl -= S.vm()
            elif step + 2 < 96:
                read_w(g, step + 2); sl -= 2
            if gi >= OPT["vm2"]: sl -= S.vm()
            while prel and ("PR", prel[0]) not in g.lg:
                S.pages.append(BPAGE[prel.pop(0)])
            if prq and (16 + 2 * prq[0][0] + prq[0][1]) >> 3 < S.free_stage:
                s2, ct = prq.pop(0)
                assert s2 in BPAGE and ("B", s2) not in [x[2][2] for x in S.bq]
                g.wait(vm=[("B", s2)])
                pg = BPAGE[s2]
                for k in range(2):
                    r = breg(s2, ct) + 2 * k
                    g.ds(f"ds_read_b64_tr_b16 a[{r}:{r+1}], v{vBT+2*(pg>>3)+ct} offset:{(pg & 7) * PAGE + k*1024}", ("PR", s2))
                sl -= 2
                if ct == 1: prel.append(s2)
            S.fill(sl)
            M(1)
            sl = 5
            if step + 2 < 32: read_x1(g, (step + 2) >> 2, (step + 2) & 3, 1); sl -= 1
            if p == 7 and u == 2:
                g.ds(f"ds_read_b32 v{vCSP}, v{vCSR}", "csp"); sl -= 1
            sl -= S.vm()
            if u == 1: sl -= 1
            if p == 6 and u == 3:
                e(f"v_cndmask_b32 v{vTMP}, v{CS}, v{CS+1}, {sr(mB4,2)}")
                g.ds(f"ds_write_b32 v{vCSW}, v{vTMP}", "fw"); sl -= 2
            if c == 2 and u == 3: S.free_stage = p + 1
            if u == 1:
                while any(x[2][2][1] <= gi + 1 for x in S.wq):
                    assert S.vm(True)
                g.st.mark2(g)
                g.wait(vm=[("W", gi + 1), ("X", gi + 1)], lg=["fw", ("Wf", step + 1), ("X", (step+1) >> 2, (step+1) & 3)])
                if not OPT["dbg"] & 4: e("s_barrier")
                g.st.mark2(g)
                S.bar = gi; S.wait_bar = False
                S.pages += [pg for (bb, pg) in BEV if bb == gi]
                if gi == 2: publish_ctl(g, typ)
                if gi == 5: g.vmem(CTL_LD, "ctl")
                if gi == 6:
                    assert not any(x[2][2][0] == "X" for x in S.wq)
                    if OPT["xr"]:
                        e(f"s_and_b32 s{sKEY}, s{sRB2}, 3")
                        e(f"s_lshl_b32 s{sKEY}, s{sKEY}, 1")
                        e(f"s_add_u32 s{sKEY}, s{sKEY}, s{sCB}")
                        e(f"s_and_b32 s{sKEY}, s{sKEY}, 7")
                    else: e(f"s_mov_b32 s{sKEY}, 0")
                    e(f"s_lshl_b32 s{sK14}, s{sKEY}, 14")
                    e(f"s_lshl_b32 s{sHAK}, s{sKEY}, 10")
                    e(f"s_or_b32 s{sPQ}, s{sPQ}, s{sHAK}")
                    e(f"s_or_b32 s{sHAK}, s{sHAK}, s{sHA}")
                if gi == 9:
                    def chk():
                        e(f"v_readlane_b32 s{sNON}, v{vCTL}, 16")
                        e(f"v_readlane_b32 s{sNON+1}, v{vCTL}, 17")
                        if typ == 0:
                            e(f"v_readlane_b32 vcc_lo, v{vCTL}, s{sJ}")
                            e(f"s_min_u32 vcc_lo, vcc_lo, s{sNON}")
                            e(f"s_cmp_lg_u32 vcc_lo, 0")
                        else:
                            e(f"s_cmp_lg_u32 s{sNON}, 0")
                    poll(g, "ctl", CTL_LD, chk)
                    e(f"v_mov_b32 v{vNON}, s{sNON}")
                    e(f"v_mov_b32 v{vNON+1}, s{sNON+1}")
                if gi == OPT["hpoll"] - OPT["hlead"]: g.vmem(FLG_LD, "flg")
                if gi == OPT["hpoll"]:
                    poll(g, "flg", FLG_LD, flag_check(g, 0xf))
                    S.aq += [(aslot_of(s, t) >> 3, 0, it_a(s, t)) for s in range(8) for t in range(2)]
            elif step + 1 < 96:
                g.wait(lg=[("Wf", step + 1), ("X", (step+1) >> 2, (step+1) & 3)])
            S.fill(sl + OPT["fs"] - 5)
        if p == 7:
            g.st.mark(g)
            if c < 2:
                n = len([op for op in S.q if op[0] == "i"])
                if n: print("  typ", typ, "chunk", c, "leftover valu", n)
                S.drain()
                g.wait(lg="csp")
                if not OPT["dbg"] & 2: S.q += epilogue(c, typ, False)
    if OPT["dbg"] & 1:
        stamp_flush(g); e("s_endpgm"); return
    n = len([op for op in S.q if op[0] == "i"])
    if n: print("  typ", typ, "chunk 2 leftover valu", n)
    k = len(S.q)
    while k > 0 and S.q[k-1][0] in ("blk", "waitvm", "delay") and len(S.q) - k < 4: k -= 1
    late = S.q[k:] if len(S.q) - k >= 3 else []
    if late: S.q = S.q[:k]; print("  typ", typ, "late chunk-1 flag")
    S.drain()
    while S.sq or S.cur is not None: assert S.vm(True)
    g.wait(lg="csp")
    e(f"v_cndmask_b32 v{vCSV}, v{CS}, v{CS+1}, {sr(mB4,2)}")
    ep = epilogue(2, typ, True)
    i = [k for k, op in enumerate(ep) if op[0] == "delay"][0]
    S.q = ep[:i]
    S.drain()
    if S.aq: print("  typ", typ, "late A loads", len(S.aq))
    print("  typ", typ, "B items left at T1", 2 * (30 - S.bnext) + len(S.bq), "prereads left", len(prq))
    assert not prq
    while S.aq: assert S.vm(True)
    S.q = late; S.drain()
    if OPT["qld"] < 0 and OPT["qs"] < 0: g.vmem(FLG_LD, "flg"); g.vmem(KFL_LD, "kfl")
    S.q = ep[i:]
    S.drain(until_late=True)
    S.cur = None
    late2 = S.q; S.q = []
    g.st.mark(g)
    g.wait(lg_all=True)
    e("s_barrier")
    S.bar = 24; S.free_stage = 8
    S.pages += [BPAGE[x] for x in prel] + [pg for (bb, pg) in BEV if bb == 24]
    sv = OPT["period"]; OPT["period"] = OPT["p2"]
    phase2(g, S, late2)
    OPT["period"] = sv

def publish_ctl(g, typ):
    if typ != OPT["zt"]: return
    e = g.e
    e(f"s_cmp_eq_u32 s{sZ}, 1")
    e("s_cbranch_scc0 L_NOZF")
    e(f"s_lshl_b32 s{sT1}, s{sJ}, 2")
    e(f"v_mov_b32 v{vTMP}, 1")
    e("s_mov_b64 exec, 1")
    g.vmem(f"buffer_store_dword v{vTMP}, v{vZERO}, {sr(SDBG)}, s{sT1} offen sc1", counted=False)
    e("s_mov_b64 exec, -1")
    g.label("L_NOZF")

def phase2(g, S, late2):
    e = g.e
    NS = 30
    LT = OPT["lt"]; S0 = NS - LT
    BL = [180, 188, 196, 204, 224, 232, 40, 48]
    def bfreg(s): return BL[s - S0] if s >= S0 else BF[s % 3]
    def read_b(s):
        pg = BPAGE[s]; rng = pg >> 3; off = (pg & 7) * PAGE
        b = bfreg(s)
        return [lambda ct=ct, k=k: g.ds(f"ds_read_b64_tr_b16 v[{b+4*ct+2*k}:{b+4*ct+2*k+1}], v{vBT+2*rng+ct} offset:{off + k*1024}", ("Bf", s))
                for ct in range(2) for k in range(2)]
    def ensure_b(s):
        while S.bnext <= s or any(x[2][2][1] == s for x in S.bq):
            if S.cur is not None: assert S.vm(True); continue
            sv = S.aq; S.aq = []
            assert S.vm(True)
            S.aq = sv
    npr = 8 if OPT["pr"] else 0
    def ensure(q, s):
        while any(x[2][2][1] == s for x in q):
            if S.cur is None:
                it = q.pop(0)[2]; emit_item(g, it); S.cur = q if it[3] else None
            else:
                assert S.vm(True)
    def Cops(h):
        k = KVR[h]
        return [I(f"v_cvt_pk_bf16_f32 v{k+q}, v{k+2*q}, v{k+2*q+1}") for q in range(4)]
    def Nm(h, t): return f"v_mfma_f32_32x32x16_bf16 {vr(ND[t],16)}, {vr(KVR[h])}, {ar(areg(8 + h, t))}, 0"
    def Vops(h, t):
        d = ND[t]
        L = [I(f"v_add_f32 v{d+8}, s{sEPS}, v{d+8}"), I(f"v_rcp_f32 v{d+8}, v{d+8}", 2)]
        for q in range(4):
            L += [I(f"v_mul_f32 v{d+2*q}, v{d+2*q}, v{d+8}"), I(f"v_mul_f32 v{d+2*q+1}, v{d+2*q+1}, v{d+8}")]
        L += [I(f"v_cvt_pk_bf16_f32 v{OF[0][t]+q}, v{d+2*q}, v{d+2*q+1}") for q in range(4)]
        return L
    vq = []
    tailm = []; trq = []
    def valu(n):
        while vq and n > 0:
            op = vq.pop(0); n -= op[2]; e(op[1])
    def redaddr():
        t = T
        L = [f"v_and_b32 v{t}, 31, v1", f"v_lshrrev_b32 v{t+1}, 3, v{t}", f"v_lshlrev_b32 v{t+1}, 13, v{t+1}",
             f"v_and_b32 v{t+2}, 7, v1", f"v_lshl_add_u32 v{t+1}, v{t+2}, 8, v{t+1}", f"v_add_u32 v{t+1}, s{sBL}, v{t+1}",
             f"v_lshrrev_b32 v{t+3}, 5, v1"]
        for q in range(4):
            L += [f"v_add_u32 v{t+4}, {2*q}, v{t+3}", f"v_xor_b32 v{t+4}, v{t+4}, v{t+2}", f"v_lshl_add_u32 v{t+8+q}, v{t+4}, 4, v{t+1}"]
        L += [f"v_lshrrev_b32 v{t}, 6, v0", f"v_lshlrev_b32 v{t}, 13, v{t}", f"v_bfe_u32 v{t+1}, v0, 3, 3",
              f"v_lshl_add_u32 v{t}, v{t+1}, 8, v{t}", f"v_lshlrev_b32 v{t+2}, 1, v{t+2}", f"v_xor_b32 v{t+2}, v{t+2}, v{t+1}",
              f"v_lshl_add_u32 v{t+4}, v{t+2}, 4, v{t}", f"v_xor_b32 v{t+5}, 16, v{t+4}"]
        return [I(x) for x in L]
    if OPT["qld"] == 0: g.vmem(FLG_LD, "flg"); g.vmem(KFL_LD, "kfl")
    if not npr:
        ensure_b(0)
        g.wait(vm=[("B", 0)])
        for f in read_b(0): f()
    for s in range(NS):
        kind, idx = step_kind(s)
        if s == OPT["qld"] and s > 0:
            g.vmem(FLG_LD, "flg"); g.vmem(KFL_LD, "kfl")
        if s - 1 >= npr: S.pages.append(BPAGE[s - 1])
        if s == OPT["pub"]:
            g.st.mark(g)
            S.q = late2; S.drain()
            g.st.mark(g)
        if s == OPT["qchk"]:
            poll(g, "flg", FLG_LD, flag_check(g, 0xf0))
            def chk():
                e(f"v_cmp_eq_u64 vcc, v[{vKFL}:{vKFL+1}], {sr(sNON,2)}")
                e(f"v_cmp_eq_u64 {sr(mB0,2)}, v[{vKFL+2}:{vKFL+3}], {sr(sNON,2)}")
                e(f"s_and_b64 vcc, vcc, {sr(mB0,2)}")
                e("s_cmp_eq_u64 vcc, -1")
            poll(g, "kfl", KFL_LD, chk)
            g.st.mark(g)
            for h in range(8):
                for t in range(2):
                    S.aq.append((0, 0, ([f"s_xor_b32 s{sT3}, s{sKEY}, {h}", f"s_mul_i32 s{sT3}, s{sT3}, {KVH}", f"s_add_u32 s{sT3}, s{sT3}, s{sKV}"] if t == 0 else [],
                                 f"buffer_load_dwordx4 {vr(KVR[h] + 4*t)}, v{vXD+2 if t else vKVO}, {sr(SWS)}, s{sT3} offen offset:{32*t} sc1", ("KV", 8 + h), t == 0)))
                S.aq += [(0, 0, it_a(8 + h, t)) for t in range(2)]
                if h == OPT["h2smp"] and OPT["h2at"] < 0: S.aq.append((0, 0, ([], FLG_LD, ("flg", 99), False)))
        if s == 8:
            ensure(S.aq, 8 + OPT["olead"])
            g.st.mark(g)
            g.wait(vm=[("KV", 8), ("A", 8)])
            for op in Cops(0): e(op[1])
            e(Nm(0, 0)); e(Nm(0, 1))
            g.wait(vm=[("KV", 9)])
            for op in Cops(1) + Vops(0, 0): e(op[1])
            vq += [op + ("v1",) for op in Vops(0, 1)]
            g.st.mark(g)
        if s == OPT["h2at"]:
            while S.cur is not None: S.vm(True)
            g.vmem(FLG_LD, ("flg", 99))
        if s == OPT["h2chk"]:
            ensure(S.aq, 99)
            while S.cur is not None: S.vm(True)
            poll(g, [("flg", 99)], FLG_LD, flag_check(g, 0xff00))
            g.st.mark(g)
            S.aq += [(0, 0, it_a(s2, t)) for s2 in range(16, S0) for t in range(2)]
            S.aq += [(0, 0, it_a(s2, 0)) for s2 in range(S0, 30)]
            for s2 in range(S0, 30):
                it = it_a(s2, 1); S.aq.append((0, 0, (it[0], it[1], ("A", s2 + 30), it[3])))
            for _ in range(OPT["h2n"]): S.vm(True)
        rb = []
        if npr <= s + 1 < S0:
            ensure_b(s + 1)
            rb = read_b(s + 1)
        if s == S0 - OPT["tl"]:
            for s2 in range(S0, NS):
                ensure_b(s2)
                trq += [(s2, f) for f in read_b(s2)]
        b = bfreg(s)
        def Mm(ct, t, s=s, b=b, kind=kind):
            acc = vr(ACC2 + 32 * ct + 16 * t, 16)
            act = ar(areg(s, t)) if kind == "h" else vr(OF[0][t])
            bo = ar(breg(s, ct)) if s < npr else vr(b+4*ct)
            return f"v_mfma_f32_32x32x16_bf16 {acc}, {bo}, {act}, {'0' if s == 0 else acc}"
        frc = s >= 16 or (OPT["qchk"] <= s < 8)
        if kind == "h":
            ensure(S.aq, s)
            assert not any(x[0] <= s for x in trq)
            g.wait(vm=[("A", s)] + ([("B", s + 1)] if s + 1 < S0 else []), lg=[("Bf", s)])
            if s == 17: vq += redaddr()
            if s == 23:
                g.wait(vm="xr")
                for tt in range(2):
                    for q in range(4):
                        vq.append(I(f"v_lshlrev_b32 v{92+8*tt+2*q}, 16, v{84+4*tt+q}"))
                        vq.append(I(f"v_and_b32 v{92+8*tt+2*q+1}, 0xffff0000, v{84+4*tt+q}"))
            if s >= S0: tailm += [(s, Mm(0, 1)), (s, Mm(1, 1))]
            for mi, (ct, t) in enumerate(((0, 0), (1, 0), (0, 1), (1, 1)) if s < S0 else ((0, 0), (1, 0))):
                e(Mm(ct, t)); S.adv(32)
                sl = 6
                if mi < 2 and rb: rb.pop(0)(); rb.pop(0)(); sl -= 2
                elif trq:
                    g.wait(vm=[("B", trq[0][0])])
                    trq.pop(0)[1](); trq.pop(0)[1](); sl -= 2
                sl -= S.vm(frc)
                valu(min(4, sl))
        else:
            h = idx
            nxt = h + 1 < 8
            if h + 2 < 8: ensure(S.aq, s + 2)
            g.wait(vm=[("A", s + 1), ("B", s + 1)] if nxt else [("B", s + 1)], lg=[("Bf", s)])
            seq = ([("N", 0)] if nxt else []) + [("M", 0, 0), ("M", 1, 0)] + ([("N", 1)] if nxt else []) + [("M", 0, 1), ("M", 1, 1)]
            for pi, pp in enumerate(seq):
                if pp == ("N", 1) or (pp == ("M", 0, 1) and not nxt):
                    while vq and vq[0][3:] == ("v1",): e(vq.pop(0)[1])
                e(Nm(h + 1, pp[1]) if pp[0] == "N" else Mm(pp[1], pp[2])); S.adv(32)
                if pp == ("M", 1, 0) and nxt: vq += [op + ("v0",) for op in Vops(h + 1, 0)]
                if pp == ("M", 1, 0) and h + 2 < 8:
                    g.wait(vm=[("KV", s + 2)])
                    vq += [op + ("v0",) for op in Cops(h + 2)]
                if pp == ("M", 1, 1) and nxt:
                    while vq and vq[0][3:] == ("v0",) and len(vq) > 6: e(vq.pop(0)[1])
                sl = 6
                if pi < 2 and rb: rb.pop(0)(); rb.pop(0)(); sl -= 2
                if pi >= 6 - OPT["ovm"]: sl -= S.vm(True)
                valu(OPT["ov"])
            while vq and vq[0][3:] == ("v0",): e(vq.pop(0)[1])
            if nxt: vq += [op + ("v1",) for op in Vops(h + 1, 1)]
        if s == 16:
            g.vmem(f"buffer_load_dwordx4 {vr(84)}, v{vXO}, {sr(SX)}, s{sXR} offen", "xr")
            g.vmem(f"buffer_load_dwordx4 {vr(88)}, v{vXO}, {sr(SX)}, s{sXR+1} offen", "xr")
        if s == 15: g.st.mark(g)
    while vq: e(vq.pop(0)[1])
    while S.aq: assert S.vm(True)
    assert not S.bq and S.bnext == 30
    t = T
    def wr(tt): return [lambda ct=ct, q=q: g.ds(f"ds_write_b128 v{t+8+q}, {vr(ACC2 + 32*ct + 16*tt + 4*q)} offset:{tt * 4 * PAGE + ct * 128}", ("rw", tt))
                        for ct in range(2) for q in range(4)]
    def rreg(tt, w): return ACC2 + 16 * tt + 32 * (w >> 1) + 8 * (w & 1)
    def rd(tt): return [lambda w=w, k=k: g.ds(f"ds_read_b128 {vr(rreg(tt, w) + 4*k)}, v{t+4+k} offset:{tt * 4 * PAGE + w * 2048}", ("rr", tt))
                        for w in range(4) for k in range(2)]
    def fin(tt):
        g.wait(lg=[("rr", tt)])
        r0, r1, r2, r3 = [rreg(tt, w) for w in range(4)]
        P = lambda d, a, b: e(f"v_pk_add_f32 v[{d}:{d+1}], v[{a}:{a+1}], v[{b}:{b+1}]")
        for q in range(4): P(r0+2*q, r0+2*q, r1+2*q); P(r2+2*q, r2+2*q, r3+2*q)
        for q in range(4): P(r0+2*q, r0+2*q, 92+8*tt+2*q)
        for q in range(4): P(r0+2*q, r0+2*q, r2+2*q)
        for q in range(4): e(f"v_cvt_pk_bf16_f32 v{r1+q}, v{r0+2*q}, v{r0+2*q+1}")
        g.vmem(f"buffer_store_dwordx4 {vr(r1)}, v{vXO}, {sr(SOUT)}, s{sXR+tt} offen", "o")
    w0 = wr(0)
    for i, (s2, m) in enumerate(tailm):
        g.wait(vm=[("A", s2 + 30)])
        e(m)
        if i >= 2 and w0: w0.pop(0)()
    while w0: w0.pop(0)()
    g.st.mark(g)
    if OPT["tb"]:
        g.wait(lg=[("rw", 0)])
        e("s_barrier")
        for f in rd(0): f()
        for f in wr(1): f()
        fin(0)
        g.wait(lg_all=True)
        e("s_barrier")
        for f in rd(1): f()
        fin(1)
    else:
        for f in wr(1): f()
        g.wait(lg_all=True)
        e("s_barrier")
        for f in rd(0) + rd(1): f()
        fin(0); fin(1)
    stamp_flush(g)
    e("s_endpgm")

def stamp_flush(g):
    e = g.e
    if STAMP:
        g.st.mark(g)
        e("s_waitcnt vmcnt(0)")
        g.st.mark(g)
        if STAMP == 3:
            e("v_lshlrev_b32 v254, 2, v1")
            e("s_mov_b64 exec, 0xff00")
            e(f"buffer_atomic_umax v255, v254, {sr(SDBG)}, 0 offen sc1")
            return
        e(f"v_readlane_b32 s{sT0}, v255, 63")
        e(f"s_lshl_b32 s{sT0}, s{sT0}, 2")
        e(f"s_add_u32 s{sT0}, s{sT0}, s{sW}")
        e(f"s_lshl_b32 s{sT0}, s{sT0}, 8")
        e(f"s_add_u32 s{sT0}, s{sT0}, {STB}")
        e("v_lshlrev_b32 v254, 2, v1")
        e(f"buffer_store_dword v255, v254, {sr(SWS)}, s{sT0} offen")

def dpf(g):
    e = g.e
    e("v_lshlrev_b32 v252, 7, v1")
    if OPT["s2f"]:
        e(f"s_lshl_b32 s{sT2}, s{sRB2}, 3")
        e(f"s_add_u32 s{sT2}, s{sT2}, s{sCB}")
    def touch(wave, nbytes, sd, cond_typ=None):
        nl = nbytes // 128
        e(f"s_mul_i32 s{sT1}, s{sT2 if OPT['s2f'] else 2}, {nbytes}")
        e(f"s_cmp_eq_u32 s{sW}, {wave}")
        e(f"s_cselect_b32 s{sT1}, s{sT1}, {OOB}")
        m = (1 << nl) - 1
        e("s_mov_b32 exec_lo, 0x%x" % (m & 0xffffffff)); e("s_mov_b32 exec_hi, 0x%x" % (m >> 32))
        g.vmem(f"buffer_load_dword v253, v252, {sr(sd)}, s{sT1} offen", "pf")
    touch(0, 5504, SW2); touch(1, 2048, SWO)
    if OPT["dpf"] >= 2:
        touch(2, 6144, SWP); touch(3, 6144, SWS2)
    e("s_mov_b64 exec, -1")

def it_touch():
    L = []
    for wave, nbytes, sd in ((0, 5504, SW2), (1, 2048, SWO)):
        m = (1 << (nbytes // 128)) - 1
        prep = [f"s_lshl_b32 s{sT3}, s{sRB2}, 3", f"s_add_u32 s{sT3}, s{sT3}, s{sCB}", f"s_mul_i32 s{sT3}, s{sT3}, {nbytes}",
                f"s_cmp_eq_u32 s{sW}, {wave}", f"s_cselect_b32 s{sT3}, s{sT3}, {OOB}", "v_lshlrev_b32 v252, 7, v1",
                "s_mov_b32 exec_lo, 0x%x" % (m & 0xffffffff), "s_mov_b32 exec_hi, 0x%x" % (m >> 32)]
        L.append((prep, f"buffer_load_dword v253, v252, {sr(sd)}, s{sT3} offen\ns_mov_b64 exec, -1", ("pf", 50), False))
    return L

def it_touch3():
    L = []
    for wave, nrows, sd in ((2, 43, SW2), (3, 16, SWO)):
        m = (1 << nrows) - 1
        prep = [f"s_and_b32 s{sT3}, s{sRB2}, 3", f"s_lshl_b32 s{sT3}, s{sT3}, 3", f"s_add_u32 s{sT3}, s{sT3}, s{sCB}", f"s_mul_i32 s{sT3}, s{sT3}, {nrows * 1024}",
                f"s_cmp_eq_u32 s{sW}, {wave}", f"s_cselect_b32 s{sT3}, s{sT3}, {OOB}", "v_lshlrev_b32 v252, 10, v1",
                "s_mov_b32 exec_lo, 0x%x" % (m & 0xffffffff), "s_mov_b32 exec_hi, 0x%x" % (m >> 32)]
        L.append((prep, f"buffer_load_dword v253, v252, {sr(sd)}, s{sT3} offen offset:384\ns_mov_b64 exec, -1", ("pf", 50), False))
    return L

def touch_qkv3(g):
    e = g.e
    e(f"s_and_b32 s{sT1}, s{sRB2}, 3")
    e(f"s_lshl_b32 s{sT1}, s{sT1}, 3")
    e(f"s_add_u32 s{sT1}, s{sT1}, s{sCB}")
    e(f"s_mul_i32 s{sT1}, s{sT1}, {48 * 1024}")
    e(f"s_lshr_b32 s{sT2}, s{sJ}, 2")
    e(f"s_lshl_b32 s{sT2}, s{sT2}, 2")
    e(f"s_or_b32 s{sT2}, s{sT2}, s{sW}")
    e(f"s_lshl_b32 s{sT2}, s{sT2}, 1")
    e(f"s_or_b32 s{sT2}, s{sT2}, s{sTYP}")
    e("v_lshlrev_b32 v252, 10, v1")
    e("s_mov_b32 exec_hi, 0xffff")
    for typ, sd in ((0, SWP), (1, SWS2)):
        e(f"s_cmp_eq_u32 s{sT2}, {4 + typ}")
        e(f"s_cselect_b32 s{sT0}, s{sT1}, {OOB}")
        g.vmem(f"buffer_load_dword v253, v252, {sr(sd)}, s{sT0} offen offset:384", "pf")
    e("s_mov_b64 exec, -1")

def gen():
    g = Gen(); g.st = Stamps(); e = g.e
    prologue(g)
    g.st.mark(g)
    items = []
    for p in range(4): items += it_x(p) + it_w(0, p)
    pre = OPT["pre"]
    if OPT["q3"] == 1:
        e(f"s_and_b32 s{SWS2+1}, s{SWS2+1}, 0xffff")
        touch_qkv3(g)
    for it in items[:min(12, pre)]: emit_item(g, it)
    setup1(g)
    if OPT["q3"] == 2: touch_qkv3(g)
    if OPT["dpf"] and OPT["dpos"] == 0: dpf(g)
    if OPT["tp"]:
        sh = {1: 20, 2: 18}[OPT["tp"]]
        e(f"v_lshlrev_b32 v252, {sh}, v1")
        e(f"s_cmp_eq_u32 s{sW}, 3")
        e(f"s_cselect_b32 s{sT1}, 0, {OOB}")
        e("s_mov_b64 exec, 0x%x" % ((1 << (12 << (20 - sh))) - 1) if sh == 20 else "s_mov_b32 exec_hi, 0xffff")
        g.vmem(f"buffer_load_dword v253, v252, {sr(SWS)}, s{sT1} offen", "pf")
        g.vmem(f"buffer_load_dword v253, v252, {sr(SOUT)}, s{sT1} offen", "pf")
        g.vmem(f"buffer_load_dword v253, v252, {sr(SDBG)}, s{sT1} offen", "pf")
        g.vmem(f"buffer_load_dword v253, v252, {sr(SWS2)}, s{sT1} offen", "pf")
        g.vmem(f"buffer_load_dword v253, v252, {sr(SW2)}, s{sT1} offen", "pf")
        g.vmem(f"buffer_load_dword v253, v252, {sr(SWO)}, s{sT1} offen", "pf")
        e("s_mov_b64 exec, -1")
    e(f"s_xor_b32 s{sT1}, s{sTYP}, {OPT['zt']}")
    e(f"s_or_b32 s{sT1}, s{sRB}, s{sT1}")
    e(f"s_or_b32 s{sT1}, s{sT1}, s{sW}")
    e(f"s_cmp_eq_u32 s{sT1}, 0")
    e(f"s_cselect_b32 s{sZ}, 1, 0")
    e("s_cbranch_scc0 L_NOZ")
    e(f"s_memrealtime {sr(sNON,2)}")
    e(f"v_lshlrev_b32 v{vL16}, 4, v1")
    for r in range(4): e(f"v_mov_b32 v{T+r}, 0")
    e(f"s_mul_i32 s{sT1}, s{sJ}, 4352")
    e(f"s_add_u32 s{sT1}, s{sT1}, {KVB}")
    for i in range(4):
        g.vmem(f"buffer_store_dwordx4 {vr(T)}, v{vL16}, {sr(SWS)}, s{sT1} offen offset:{1024*i} sc1", counted=False)
    e(f"s_add_u32 s{sT1}, s{sT1}, 4096")
    e("s_mov_b64 exec, 0xffff")
    g.vmem(f"buffer_store_dwordx4 {vr(T)}, v{vL16}, {sr(SWS)}, s{sT1} offen sc1", counted=False)
    e("s_mov_b64 exec, 1")
    e("s_waitcnt lgkmcnt(0)")
    e(f"s_or_b32 s{sNON}, s{sNON}, 1")
    e(f"v_mov_b32 v{T+4}, s{sNON}")
    e(f"v_mov_b32 v{T+5}, s{sNON+1}")
    e(f"s_cmp_eq_u32 s{sJ}, 0")
    e(f"s_cselect_b32 s{sT1}, 64, {OOB}")
    g.vmem(f"buffer_store_dwordx2 v[{T+4}:{T+5}], v{T}, {sr(SDBG)}, s{sT1} offen sc1", counted=False)
    e("s_mov_b64 exec, -1")
    e("s_nop 1")
    g.label("L_NOZ")
    if OPT["s2f"]:
        setup2(g)
    for it in items[12:pre]: emit_item(g, it)
    if OPT["dpf"] and OPT["dpos"] == 1: dpf(g)
    g.cur_open = items[pre - 1][3]
    assert not g.cur_open
    g.wq0 = items[pre:]
    if not OPT["s2f"]: setup2(g)
    g.st.mark(g)
    g.wait(vm=[("W", 0), ("X", 0)])
    e("s_barrier")
    g.st.mark(g)
    read_x(g, 0, 0); read_w(g, 0); read_x(g, 0, 1); read_w(g, 1)
    g.wait(lg=[("Wf", 0)])
    e(f"s_cmp_eq_u32 s{sTYP}, 0")
    e("s_cbranch_scc0 L_TYPEB")
    st = (list(g.vm), list(g.lg), g.st.n)
    body(g, 0)
    g.label("L_TYPEB")
    g.vm, g.lg, g.st.n = list(st[0]), list(st[1]), st[2]; g.hist = []
    body(g, 1)
    g.label("L_END")
    e("s_endpgm")
    return g

def kd(name, vgpr, sgpr, acc):
    return f""".amdhsa_kernel {name}
  .amdhsa_next_free_vgpr {vgpr}
  .amdhsa_next_free_sgpr {sgpr}
  .amdhsa_accum_offset {acc}
  .amdhsa_group_segment_fixed_size 0
  .amdhsa_kernarg_size 72
  .amdhsa_user_sgpr_count 2
  .amdhsa_user_sgpr_kernarg_segment_ptr 1
  .amdhsa_system_sgpr_workgroup_id_x 1
.end_amdhsa_kernel
"""

def main(out):
    hdr = open("parallel_sum__linear_attn_block__dense_activation_relu__prompt.s.ref").read().split("; Override")[0]
    g = gen()
    s = hdr
    s += "; @launch grid=(256,1,1) block=(256,1,1) lds=163840\n"
    s += '.amdgcn_target "amdgcn-amd-amdhsa--gfx950"\n.text\n'
    s += f".globl {NAME}\n.p2align 8\n.type {NAME},@function\n{NAME}:\n" + g.text()
    s += '.section .rodata,"a"\n.p2align 6\n' + kd(NAME, 512, 102, 256)
    open(out, "w").write(s)
    print("nops", g.nops, "lines", len(g.out), "stamps", g.st.n)

if __name__ == "__main__":
    for a in sys.argv[2:]:
        if a == "stamp": STAMP = 1
        elif a == "stamp2": STAMP = 2
        elif a == "stamp3": STAMP = 3
        elif a == "v": VERB = True
        else:
            k, v = a.split("="); OPT[k] = int(v)
    main(sys.argv[1])
```

```python
import sys, struct
sys.path.insert(0, "dev")
from asmgen import Gen

def f2u(x): return struct.unpack("<I", struct.pack("<f", x))[0]
NAME = "parallel_sum__linear_attn_block__dense_activation_relu__prompt_kernel"

HB, QB, KVB, FLB, KFB = 0, 0x800000, 0xA00000, 0xB00000, 0xB10000
HRT = 131072
KVH = 1088
WS_BYTES = 268435456
OOB = 0x40000000
PAGE = 8192
XPAGE = [0, 2, 4, 6, 18]
MISC = 16 * PAGE
M_CS, M_RM, M_RR, M_KV = MISC, MISC + 512, MISC + 1024, MISC + 2048
STAMP = 0
VERB = False
STB = 0x8000000
OPT = dict(rot=2, pre=16, spin=20000, fdelay=14, adelay=16, period=66, debt=1, w1w=15, qrate=4, krate=1, h2n=0, hpoll=20, hlead=2, cpf=3, dpf=1, fs=5, pub=7, qchk=8, olead=4, h2smp=4, ovm=4, ov=6, h2chk=11, slp=2, qld=4, p2=64, dbg=0, lin=0, vm2=8, pc2=50, osc=0, bl=1, xr=1, pr=1, hb=1, hdelay=8, dpos=2, wp=7, s2f=1, dk=7, tp=0, h2at=-1, quiet=99, qs=-1, zt=0, t3=7, q3=1, lt=8, tl=3, tb=0, nb=0, tB=-1, tBb=-1, tbs=0, bh=0)

def vr(a, n=4): return f"v[{a}:{a+n-1}]"
def ar(a, n=4): return f"a[{a}:{a+n-1}]"
def sr(a, n=4): return f"s[{a}:{a+n-1}]"

SX, SWP, SWS2, SWS, SDBG, SW2, SWO, SOUT = 24, 28, 32, 36, 40, 44, 48, 52
sRB, sTYP, sJ, sW, sM, sN, sRB2, sCB = 56, 57, 58, 59, 60, 61, 62, 63
sXO, sPO, sSO = 64, 72, 80
sT0, sT1, sT2 = 88, 89, 90
sCOL = [4, 5, 6]
sXL, sBL, sT3 = 7, 8, 9
sRT = [10, 11]
sZ, sEPS, sLOG = 12, 13, 14
sK14 = 12
sHAK, sKEY, sHAE, sOK = 64, 65, 66, 67
mB4, mH, mB0, mB1 = 16, 18, 20, 22
sNON = 92
sHST = [94, 95, 96]
sB2, sBO, sHA, sHA2, sPQ = 97, 98, 99, 100, 101
sKV, sFL, sKF, sXR = 91, 2, 3, 0

vXD, vWP, vWS, vBD = 2, 6, 8, 10
vXA = [12, 16]
vWA = 20
vCSW, vCSR, vL16, vSTO, vSTX, vSKIP = 26, 27, 28, 29, 30, 31
vRR, RL, vCSP, vTMP, vCSV, vCTLO = 32, 34, 36, 37, 38, 39
MO, S1, Q0, Q1, CS = 40, 44, 48, 52, 56
WF = [60, 64, 68]
AAUG, BAUG = [72, 76], 80
ACCS = [[84, 100], [116, 132]]
RROW = [148, 164]
PK, VF, T = 180, 196, 212
ONES = S1
RLL, EPSR = 52, 54
vFLO, vCTL, vZERO, vFLG, vNON = 244, 245, 246, 248, 250
vKFL = 48
vBT, vKVO, vXO = 12, 18, 19
ACC2, BF, ND, OF = 116, [56, 64, 72], [84, 100], [[196, 200], [204, 208]]
KVR = [180, 188, 212, 220, 228, 236, 40, 20]
def X(t, p, u): return 128 * t + 16 * p + 4 * u

class Stamps:
    def __init__(self): self.n = 0
    def mark2(self, g):
        if STAMP != 2: return
        g.e("s_memtime vcc"); g.e("s_waitcnt lgkmcnt(0)"); g.lg = []
        g.e("v_writelane_b32 v255, vcc_lo, %d" % self.n); self.n += 1
    def mark(self, g):
        if STAMP == 3:
            g.e("s_memrealtime vcc"); g.e("s_waitcnt lgkmcnt(0)"); g.lg = []
            if self.n == 0: g.e("s_not_b32 vcc_lo, vcc_lo")
            m = {0: 8, 3: 9, 4: 10, 5: 11, 6: 12, 12: 13, 15: 14, 17: 15}
            if self.n in m: g.e("v_writelane_b32 v255, vcc_lo, %d" % m[self.n])
            self.n += 1
            return
        if STAMP != 1: return
        g.e("s_memrealtime vcc"); g.e("s_waitcnt lgkmcnt(0)"); g.lg = []
        g.e("v_writelane_b32 v255, vcc_lo, %d" % self.n)
        g.e("s_memtime vcc"); g.e("s_waitcnt lgkmcnt(0)")
        g.e("v_writelane_b32 v255, vcc_lo, %d" % (self.n + 30)); self.n += 1

def srd(g, d, lo, nbytes):
    g.e(f"s_mov_b32 s{d}, s{lo}")
    g.e(f"s_and_b32 s{d+1}, s{lo+1}, 0xffff")
    g.e(f"s_mov_b32 s{d+2}, {nbytes}")
    g.e(f"s_mov_b32 s{d+3}, 0x00020000")

WORDER = [8, 12, 16, 20, 9, 10, 11, 13, 14, 15, 17, 18, 19, 21, 22, 23] if 'rot=6' in sys.argv else [8, 9, 16, 17, 10, 11, 12, 13, 14, 15, 18, 19, 20, 21, 22, 23]
def page_plan():
    free = []
    wpage = {}; wav = {}
    for g in range(8): wpage[g] = 8 + g; wav[g] = -1
    ev = []
    xr = {3: 4, 4: 5, 0: 6, 1: 7, 2: 8}
    for sl, b in xr.items(): ev += [(b, XPAGE[sl]), (b, XPAGE[sl] + 1)]
    for g in range(8): ev.append((g + 1, wpage[g]))
    for g in WORDER:
        ev.sort(); b, pg = ev.pop(0)
        wpage[g] = pg; wav[g] = b
        ev.append((g + 1, pg))
    ev += [(24, 16), (24, 17)]
    ev.sort()
    return wpage, wav, ev
WPAGE, WAV, BEV = page_plan()
BPAGE = {}

def uses_primary(typ, c): return c == 0 or (typ == 0 and c == 1) or (typ == 1 and c == 2)
def step_kind(s):
    if s < 8: return ("h", s)
    if s < 16: return ("o", s - 8)
    return ("h", s - 8)
def aslot(k):
    p, r = k >> 3, k & 7
    return X(r >> 2, p, r & 3)
def aslot_of(s, t):
    if not OPT["pr"]: return 2 * s + t
    if s < 8: return 2 * s + t
    if s < 24: return 32 + 2 * (s - 8) + t
    return 2 * (s - 24) + t
def areg(s, t): return aslot(aslot_of(s, t))
def breg(s, ct): return aslot(16 + 2 * s + ct)

def it_x(p):
    L = []
    for i in range(4):
        prep = [f"s_add_u32 m0, s{sXL}, {XPAGE[p % 5] * PAGE}"] if i == 0 else []
        L.append((prep, f"buffer_load_dwordx4 v{vXD+i}, {sr(SX)}, s{sXO+p} offen offset:{1024*i} lds", ("X", p), i < 3))
    return L
def it_w(typ, gi):
    c, p = gi >> 3, gi & 7
    q = uses_primary(typ, c)
    s, v, tb = (SWP, vWP, sPO) if q else (SWS2, vWS, sSO)
    prep = [f"s_add_u32 m0, s{sBL}, {WPAGE[gi] * PAGE}", f"s_add_u32 s{sT0}, s{tb+p}, s{sCOL[c]}"]
    if typ == 1 and gi == 16:
        prep += [f"v_or_b32 v{vWP}, v{vWP}, v{vSKIP}", f"v_or_b32 v{vWP+1}, v{vWP+1}, v{vSKIP}"]
    return [(prep, f"buffer_load_dwordx4 v{v}, {sr(s)}, s{sT0} offen lds", ("W", gi), True),
            ([], f"buffer_load_dwordx4 v{v+1}, {sr(s)}, s{sT0} offen offset:1024 lds", ("W", gi), False)]
def it_b(s):
    k, idx = step_kind(s)
    sd, base = (SW2, sB2) if k == "h" else (SWO, sBO)
    if OPT["xr"] and idx < 16:
        prep = [f"s_add_u32 m0, s{sBL}, {BPAGE[s] * PAGE}", f"s_xor_b32 s{sT0}, s{sK14}, {idx * 16384}", f"s_add_u32 s{sT0}, s{sT0}, s{base}"]
    else:
        prep = [f"s_add_u32 m0, s{sBL}, {BPAGE[s] * PAGE}", f"s_add_u32 s{sT0}, s{base}, {idx * 16384}"]
    return [(prep, f"buffer_load_dwordx4 v{vBD}, {sr(sd)}, s{sT0} offen lds", ("B", s), True),
            ([], f"buffer_load_dwordx4 v{vBD+1}, {sr(sd)}, s{sT0} offen offset:1024 lds", ("B", s), False)]
def it_a(s, t, base=None):
    k, idx = step_kind(s)
    if k == "h" and idx < 16: prep = [f"s_xor_b32 s{sT3}, s{base or sHAK}, {idx * 1024 + t * HRT}"]
    elif k == "h": prep = [f"s_add_u32 s{sT3}, s{sHA2 if idx >= 20 else sHA}, {idx * 1024 + t * HRT}"]
    else: prep = [f"s_xor_b32 s{sT3}, s{sPQ}, {idx * 1024 + t * 32768}"]
    return (prep, f"buffer_load_dwordx4 {ar(areg(s, t))}, v{vL16}, {sr(SWS)}, s{sT3} offen sc1", ("A", s), False)
def emit_item(g, it):
    for x in it[0]: g.e(x)
    g.vmem(it[1], it[2])

def prologue(g):
    e = g.e
    e("s_cmp_ge_u32 s2, 256")
    e("s_cbranch_scc1 L_END")
    g.st.mark(g)
    e("s_load_dwordx16 s[4:19], s[0:1], 0")
    e("s_load_dwordx2 s[20:21], s[0:1], 64")
    if OPT["cpf"] == 1:
        e("s_getpc_b64 s[22:23]")
        e("v_lshlrev_b32 v252, 7, v0")
        g.vmem("global_load_dword v253, v252, s[22:23]", "pf")
    if OPT["cpf"] == 3:
        e("s_getpc_b64 s[22:23]")
        e("s_bfe_u32 s24, s2, 0x30003")
        e("s_mulk_i32 s24, 5120")
        e("v_mul_u32_u24 v252, 20, v0")
        e("v_add_u32 v252, s24, v252")
        e(f"v_min_u32 v252, L_END-{NAME}-256, v252")
        g.vmem("global_load_dword v253, v252, s[22:23]", "pf")
    if OPT["cpf"] == 2:
        e("s_getpc_b64 s[22:23]")
        e("s_bfe_u32 s24, s2, 0x30003")
        e("s_lshl_b32 s24, s24, 12")
        e("v_lshrrev_b32 v252, 3, v0")
        e("v_lshl_add_u32 v252, v252, 7, s24")
        g.vmem("global_load_dword v253, v252, s[22:23]", "pf")
    e("v_and_b32 v1, 63, v0")
    e("v_lshrrev_b32 v2, 6, v0")
    if OPT["lin"]: e(f"s_lshr_b32 s{sT0}, s2, 5")
    else: e(f"s_and_b32 s{sT0}, s2, 7")
    e(f"v_readfirstlane_b32 s{sW}, v2")
    if OPT["lin"]: e(f"s_and_b32 s{sT1}, s2, 31")
    else: e(f"s_lshr_b32 s{sT1}, s2, 3")
    e(f"s_and_b32 s{sRB}, s{sT0}, 3")
    e(f"s_lshl_b32 s{sRB}, s{sRB}, 2")
    e(f"s_lshr_b32 s{sT2}, s{sT1}, 3")
    e(f"s_add_u32 s{sRB}, s{sRB}, s{sT2}")
    e(f"s_lshl_b32 s{sRB2}, s{sT0}, 2")
    e(f"s_add_u32 s{sRB2}, s{sRB2}, s{sT2}")
    e(f"s_and_b32 s{sCB}, s{sT1}, 7")
    e(f"s_and_b32 s{sTYP}, s{sCB}, 1")
    e(f"s_lshr_b32 s{sJ}, s{sT0}, 2")
    e(f"s_lshl_b32 s{sJ}, s{sJ}, 2")
    e(f"s_lshr_b32 s{sT0}, s{sCB}, 1")
    e(f"s_add_u32 s{sJ}, s{sJ}, s{sT0}")
    if OPT["rot"] == 1: e(f"s_add_u32 s91, s{sCB}, s{sT2}")
    elif OPT["rot"] == 2: e(f"s_lshl_b32 s91, s{sT2}, 1"); e(f"s_add_u32 s91, s91, s{sCB}")
    elif OPT["rot"] in (6, 7):
        e(f"s_add_u32 s91, s{sCB}, s{sT2}")
        e("s_and_b32 s91, s91, %d" % (3 if OPT["rot"] == 6 else 1))
    elif OPT["rot"] in (3, 4, 5):
        e(f"s_lshr_b32 s91, s{sRB}, 2")
        e("s_lshl_b32 s91, s91, 1")
        e(f"s_and_b32 s92, s{sJ}, 4")
        e("s_add_u32 s91, s91, s92")
        if OPT["rot"] == 4:
            e(f"s_add_u32 s92, s{sCB}, s{sT2}")
            e("s_and_b32 s92, s92, 1")
            e("s_add_u32 s91, s91, s92")
        if OPT["rot"] == 5:
            e(f"s_add_u32 s92, s{sCB}, s{sT2}")
            e("s_and_b32 s92, s92, 3")
            e("s_add_u32 s91, s91, s92")
    else: e("s_mov_b32 s91, 0")
    e("v_lshrrev_b32 v12, 3, v1")
    e("v_and_b32 v13, 7, v1")
    e("v_lshrrev_b32 v14, 1, v12")
    e("v_xor_b32 v15, v13, v14")
    e("v_lshlrev_b32 v15, 4, v15")
    e(f"v_lshl_add_u32 v{vXD}, v12, 10, v15")
    e(f"v_xor_b32 v{vXD+1}, 64, v{vXD}")
    e(f"v_add_u32 v{vXD+2}, {2*7168}, v{vXD}")
    e(f"v_add_u32 v{vXD+3}, {3*7168}, v{vXD+1}")
    e(f"v_add_u32 v{vXD+1}, 7168, v{vXD+1}")
    e("v_and_b32 v14, 1, v14")
    e("v_lshlrev_b32 v14, 2, v14")
    e("v_xor_b32 v15, v13, v14")
    e("v_lshlrev_b32 v15, 4, v15")
    e("s_movk_i32 s97, 2752")
    e("s_movk_i32 s96, 3072")
    e(f"s_cmp_eq_u32 s{sTYP}, 0")
    e("s_cselect_b32 s98, s96, s97")
    e("s_cselect_b32 s99, s97, s96")
    e(f"v_mad_u32_u24 v{vWP}, s98, v12, v15")
    e("s_lshl_b32 s100, s98, 3")
    e("s_sub_u32 s100, s100, 1024")
    e(f"v_add_u32 v{vWP+1}, s100, v{vWP}")
    e(f"s_lshl_b32 s92, s{sRB}, 7")
    e(f"s_lshl_b32 s{sT0}, s{sW}, 5")
    e(f"s_add_u32 s92, s92, s{sT0}")
    e("s_lshl_b32 s92, s92, 10")
    e(f"s_lshl_b32 s93, s{sW}, 4")
    def tab(p):
        if OPT["rot"] in (6, 7): e(f"s_xor_b32 s{sT0}, s91, {p}")
        else:
            e(f"s_add_u32 s{sT0}, s91, {p}")
            e(f"s_and_b32 s{sT0}, s{sT0}, 7")
        e(f"s_lshl_b32 s{sXO+p}, s{sT0}, 7")
        e(f"s_add_u32 s{sXO+p}, s{sXO+p}, s92")
        e(f"s_lshl_b32 s{sT0}, s{sT0}, 6")
        e(f"s_add_u32 s{sT0}, s{sT0}, s93")
        e(f"s_mul_i32 s{sPO+p}, s{sT0}, s98")
        e(f"s_mul_i32 s{sSO+p}, s{sT0}, s99")
    g.tab = tab
    for p in range(3): tab(p)
    e(f"s_lshl_b32 s95, s{sJ}, 7")
    e(f"s_add_u32 s95, s95, 1024")
    e(f"s_lshr_b32 s{sT0}, s{sJ}, 1")
    e(f"s_mul_i32 s{sT0}, s{sT0}, 704")
    e(f"s_and_b32 s{sT1}, s{sJ}, 1")
    e(f"s_lshl_b32 s{sT1}, s{sT1}, 7")
    e(f"s_add_u32 s{sT0}, s{sT0}, s{sT1}")
    e(f"s_lshl_b32 s{SWP+2}, s98, 9")
    e(f"s_lshl_b32 s{SWS2+2}, s99, 9")
    e(f"s_mov_b32 s{SWP+3}, 0x00020000")
    e(f"s_mov_b32 s{SWS2+3}, 0x00020000")
    e(f"s_mov_b32 s{SX+2}, {2048*1024}")
    e(f"s_mov_b32 s{SX+3}, 0x00020000")
    e(f"s_cmp_eq_u32 s{sTYP}, 0")
    e(f"s_cselect_b32 s95, s95, s{sT0}")
    e("s_waitcnt lgkmcnt(0)")
    e(f"s_cselect_b32 s{SWP}, s6, s12")
    e(f"s_cselect_b32 s{SWP+1}, s7, s13")
    e(f"s_cselect_b32 s{SWS2}, s12, s6")
    e(f"s_cselect_b32 s{SWS2+1}, s13, s7")
    e(f"s_mov_b32 s{SX}, s4")
    e(f"s_and_b32 s{SX+1}, s5, 0xffff")
    e(f"s_and_b32 s{SWP+1}, s{SWP+1}, 0xffff")
    e(f"s_mov_b32 s{SWO}, s8")
    e(f"s_and_b32 s{SWO+1}, s9, 0xffff")
    e(f"s_mov_b32 s{sCOL[0]}, s95")
    e(f"s_lshl_b32 s{sXL}, s{sW}, 12")
    e(f"s_lshl_b32 s{sBL}, s{sW}, 11")

def setup1(g):
    e = g.e
    e(f"s_and_b32 s{SWS2+1}, s{SWS2+1}, 0xffff")
    e(f"s_mov_b32 s{SWO+2}, {512*1024}")
    e(f"s_mov_b32 s{SWO+3}, 0x00020000")
    srd(g, SWS, 20, WS_BYTES)
    srd(g, SDBG, 18, 256)
    srd(g, SW2, 14, 1376 * 1024)
    srd(g, SOUT, 16, 2048 * 1024)
    e(f"s_lshr_b32 s{sM}, s{sW}, 1")
    e(f"s_and_b32 s{sN}, s{sW}, 1")
    for p in range(3, 8): g.tab(p)

def setup2(g):
    e = g.e
    t = T
    e(f"v_mad_u32_u24 v{vWS}, s99, v12, v15")
    e("s_lshl_b32 s100, s99, 3")
    e("s_sub_u32 s100, s100, 1024")
    e(f"v_add_u32 v{vWS+1}, s100, v{vWS}")
    e(f"v_lshl_add_u32 v{vBD}, v12, 10, v15")
    e(f"v_add_u32 v{vBD+1}, 7168, v{vBD}")
    e(f"s_and_b32 s{sT0}, s{sJ}, 1")
    e(f"s_cmp_eq_u32 s{sJ}, 6")
    e(f"s_cselect_b32 s{sT0}, 1, s{sT0}")
    e(f"s_and_b32 s101, s{sT0}, s{sTYP}")
    e(f"v_bfe_u32 v{vSKIP}, v15, 6, 1")
    e(f"v_and_b32 v{vSKIP}, s101, v{vSKIP}")
    e(f"v_lshlrev_b32 v{vSKIP}, 30, v{vSKIP}")
    e(f"v_and_b32 v{t}, 31, v1")
    e(f"v_lshrrev_b32 v{t+1}, 5, v1")
    e(f"v_bfe_u32 v{t+2}, v1, 1, 3")
    e(f"s_lshl_b32 s{sT1}, s{sM}, 6")
    e(f"s_lshl_b32 s{sT0}, s{sN}, 5")
    e(f"s_add_u32 s{sT1}, s{sT1}, s{sT0}")
    e(f"v_add_u32 v{t+3}, s{sT1}, v{t}")
    e(f"v_lshlrev_b32 v{t+4}, 7, v{t+3}")
    for u in range(4):
        e(f"s_xor_b32 s{sT0}, s{sM}, {u}")
        e(f"s_lshl_b32 s{sT0}, s{sT0}, 1")
        e(f"v_add_u32 v{t+5}, s{sT0}, v{t+1}")
        e(f"v_xor_b32 v{t+5}, v{t+5}, v{t+2}")
        e(f"v_lshl_add_u32 v{vXA[0]+u}, v{t+5}, 4, v{t+4}")
        e(f"v_xor_b32 v{vXA[1]+u}, 0x1000, v{vXA[0]+u}")
    e(f"v_lshlrev_b32 v{vSTO}, 2, v{t+3}")
    e(f"v_add_u32 v{vSTO}, {M_RM}, v{vSTO}")
    e(f"v_xor_b32 v{vSTX}, 0x80, v{vSTO}")
    e(f"v_bfe_u32 v{t+5}, v1, 2, 2")
    e(f"v_and_b32 v{t+6}, 3, v1")
    e(f"v_bfe_u32 v{t+7}, v1, 4, 1")
    e(f"v_lshrrev_b32 v{t+8}, 1, v{t+6}")
    e(f"v_lshl_add_u32 v{t+8}, v{t+7}, 1, v{t+8}")
    e(f"v_lshrrev_b32 v{t+9}, 1, v{t+5}")
    e(f"v_lshlrev_b32 v{t+9}, 2, v{t+9}")
    e(f"v_xor_b32 v{t+8}, v{t+8}, v{t+9}")
    e(f"v_lshlrev_b32 v{t+8}, 4, v{t+8}")
    e(f"v_and_b32 v{t+9}, 1, v{t+6}")
    e(f"v_lshl_add_u32 v{t+8}, v{t+9}, 3, v{t+8}")
    e(f"v_lshl_add_u32 v{t+8}, v{t+5}, 7, v{t+8}")
    e(f"v_lshl_add_u32 v247, v{t+1}, 9, v{t+8}")
    e(f"v_lshl_add_u32 v{t+9}, v{t+1}, 10, v{t+8}")
    e(f"s_lshl_b32 s{sT0}, s{sN}, 6")
    e(f"v_xor_b32 v{t+9}, s{sT0}, v{t+9}")
    e(f"s_lshl_b32 s{sT0}, s{sM}, 11")
    e(f"v_add_u32 v{vWA}, s{sT0}, v{t+9}")
    e(f"v_subrev_u32 v{vWA+1}, s{sT0}, v{t+9}")
    e(f"v_add_u32 v{vWA+1}, 2048, v{vWA+1}")
    for r in (1, 2):
        e(f"v_add_u32 v{vWA+2*r}, {65536*r}, v{vWA}")
        e(f"v_add_u32 v{vWA+2*r+1}, {65536*r}, v{vWA+1}")
    e(f"v_lshlrev_b32 v{vL16}, 4, v1")
    e(f"v_cmp_eq_u32 {sr(mB4,2)}, 1, v{t+7}")
    e(f"v_cmp_eq_u32 {sr(mH,2)}, 1, v{t+1}")
    e(f"v_and_b32 v{t+9}, 1, v1")
    e(f"v_cmp_eq_u32 {sr(mB0,2)}, 1, v{t+9}")
    e(f"v_and_b32 v{t+10}, 2, v1")
    e(f"v_cmp_eq_u32 {sr(mB1,2)}, 2, v{t+10}")
    e(f"v_cmp_eq_u32 vcc, v{t+9}, v{t+7}")
    e(f"v_mov_b32 v{t+10}, 0x3f803f80")
    for r in range(4): e(f"v_cndmask_b32 v{MO+r}, 0, v{t+10}, vcc")
    for r in range(1, 4):
        e(f"v_mov_b32 v{AAUG[0]+r}, 0"); e(f"v_mov_b32 v{AAUG[1]+r}, 0"); e(f"v_mov_b32 v{BAUG+r}, 0")
    e(f"v_mov_b32 v{vZERO}, 0")
    e(f"s_mov_b32 s{sLOG}, 0x3fb8aa3b")
    e(f"s_mov_b32 s{sLOG+1}, 0x3fb8aa3b")
    e(f"s_mov_b32 s{sEPS}, 0x%08x" % f2u(1e-6))
    e(f"s_lshl_b32 s{sT0}, s{sN}, 1")
    e(f"s_add_u32 s{sT0}, s{sT0}, s{sM}")
    e(f"s_lshl_b32 s{sT0}, s{sT0}, 7")
    e(f"s_add_u32 s{sT0}, s{sT0}, {M_CS}")
    e(f"v_lshl_add_u32 v{vCSW}, v{t}, 2, s{sT0}")
    e(f"v_xor_b32 v{vCSR}, 0x80, v{vCSW}")
    e(f"v_lshlrev_b32 v{t+9}, 4, v{t+1}")
    e(f"s_lshl_b32 s{sT0}, s{sT1}, 2")
    e(f"s_add_u32 s{sT0}, s{sT0}, {M_RR}")
    e(f"v_add_u32 v{vRR}, s{sT0}, v{t+9}")
    e(f"v_xor_b32 v{vRR+1}, 0x80, v{vRR}")
    e(f"s_lshl_b32 s{sT0}, s{sRB}, 2")
    e(f"s_lshl_b32 s{sT2}, s{sM}, 1")
    e(f"s_add_u32 s{sT0}, s{sT0}, s{sT2}")
    e(f"s_add_u32 s{sRT[0]}, s{sT0}, s{sN}")
    e(f"s_xor_b32 s{sRT[1]}, s{sRT[0]}, 1")
    e(f"v_and_b32 v{t+9}, 15, v1")
    e(f"v_lshlrev_b32 v{vFLO}, 3, v{t+9}")
    e(f"v_lshlrev_b32 v{vCTLO}, 2, v1")
    e(f"s_lshr_b32 s{sT0}, s{sJ}, 1")
    e(f"s_mul_i32 s{sT0}, s{sT0}, 704")
    e(f"s_and_b32 s{sT1}, s{sJ}, 1")
    e(f"s_lshl_b32 s{sT2}, s{sT1}, 7")
    e(f"s_add_u32 s{sT2}, s{sT2}, s{sT0}")
    e(f"s_add_u32 s{sCOL[2]}, s{sT2}, 256")
    e(f"s_lshl_b32 s{sT1}, s{sT1}, 6")
    e(f"s_sub_u32 s{sT0}, s{sT0}, s{sT1}")
    e(f"s_add_u32 s{sT0}, s{sT0}, 576")
    e(f"s_lshl_b32 s{sCOL[1]}, s{sJ}, 7")
    e(f"s_add_u32 s{sT2}, s{sCOL[1]}, 2048")
    e(f"s_cmp_eq_u32 s{sTYP}, 0")
    e(f"s_cselect_b32 s{sCOL[1]}, s{sT2}, s{sCOL[1]}")
    e(f"s_cselect_b32 s{sCOL[2]}, s{sCOL[2]}, s{sT0}")
    e(f"s_lshl_b32 s{sT0}, s{sN}, 11")
    e(f"s_lshl_b32 s{sHST[1]}, s{sJ}, 12")
    e(f"s_add_u32 s{sHST[1]}, s{sHST[1]}, s{sT0}")
    e(f"s_add_u32 s{sHST[1]}, s{sHST[1]}, {QB}")
    e(f"s_lshr_b32 s{sT1}, s{sJ}, 1")
    e(f"s_mul_i32 s{sT1}, s{sT1}, 10240")
    e(f"s_add_u32 s{sT0}, s{sT0}, s{sT1}")
    for c in (0, 2):
        e(f"s_lshl_b32 s{sHST[c]}, s{sCOL[c]}, 5")
        e(f"s_add_u32 s{sHST[c]}, s{sHST[c]}, s{sT0}")
    e(f"s_and_b32 s{sT0}, s101, s{sN}")
    e(f"s_cmp_eq_u32 s{sT0}, 1")
    e(f"s_cselect_b32 s{sHST[2]}, {OOB}, s{sHST[2]}")
    e(f"s_lshl_b32 s{sT0}, s{sCB}, 7")
    e(f"s_mul_i32 s{sB2}, s{sW}, {22 * 16 * 1024}")
    e(f"s_add_u32 s{sB2}, s{sB2}, s{sT0}")
    e(f"s_lshl_b32 s{sBO}, s{sW}, 17")
    e(f"s_add_u32 s{sBO}, s{sBO}, s{sT0}")
    e(f"s_lshl_b32 s{sXR}, s{sRB2}, 16")
    e(f"s_add_u32 s{sXR}, s{sXR}, s{sT0}")
    e(f"s_add_u32 s{sXR+1}, s{sXR}, 32768")
    e(f"s_lshl_b32 s{sHA}, s{sRB2}, 3")
    e(f"s_add_u32 s{sHA}, s{sHA}, s{sW}")
    e(f"s_lshl_b32 s{sHA}, s{sHA}, 15")
    e(f"s_cmp_eq_u32 s{sW}, 3")
    e(f"s_cselect_b32 s{sHA2}, {OOB}, s{sHA}")
    e(f"s_lshl_b32 s{sPQ}, s{sRB2}, 6")
    e(f"s_lshl_b32 s{sT0}, s{sW}, 3")
    e(f"s_add_u32 s{sPQ}, s{sPQ}, s{sT0}")
    e(f"s_lshl_b32 s{sPQ}, s{sPQ}, 10")
    e(f"s_add_u32 s{sPQ}, s{sPQ}, {QB}")
    e(f"s_mul_i32 s{sKV}, s{sW}, {8 * KVH}")
    e(f"s_add_u32 s{sKV}, s{sKV}, {KVB}")
    if STAMP: e("v_writelane_b32 v255, s2, 63")
    e(f"s_lshl_b32 s{sFL}, s{sRB2}, 2")
    e(f"s_add_u32 s{sFL}, s{sFL}, s{sW}")
    e(f"s_lshl_b32 s{sFL}, s{sFL}, 7")
    e(f"s_add_u32 s{sFL}, s{sFL}, {FLB}")
    e(f"s_lshl_b32 s{sKF}, s{sW}, 10")
    e(f"s_add_u32 s{sKF}, s{sKF}, {KFB}")

def I(t, c=1): return ("i", t, c)
def setup3_ops():
    L = [I(f"v_add_u32 v{vBT}, s{sBL}, v247"), I(f"v_xor_b32 v{vBT+1}, 64, v{vBT}")]
    for r in (1, 2):
        L += [I(f"v_add_u32 v{vBT+2*r}, {65536*r}, v{vBT}"), I(f"v_add_u32 v{vBT+2*r+1}, {65536*r}, v{vBT+1}")]
    L += [I(f"v_lshrrev_b32 v{vXD}, 5, v1"),
          I(f"v_lshlrev_b32 v{vXD+1}, 8, v{vXD}"),
          I(f"v_lshl_add_u32 v{vXD+1}, v{vFLO}, 1, v{vXD+1}"),
          I(f"v_lshlrev_b32 v{vXD}, 4, v{vXD}"),
          I(f"v_add_u32 v{vXD}, 1024, v{vXD}"),
          I(f"v_cndmask_b32 v{vKVO}, v{vXD+1}, v{vXD}, {sr(mB4,2)}"),
          I(f"v_add_u32 v{vXD+1}, 480, v{vXD+1}"),
          I(f"v_cndmask_b32 v{vXD+2}, v{vXD+1}, v{vXD}, {sr(mB4,2)}"),
          I(f"v_lshrrev_b32 v{vXD}, 3, v0"),
          I(f"v_and_b32 v{vXD+1}, 7, v0"),
          I(f"v_lshlrev_b32 v{vXD+1}, 4, v{vXD+1}"),
          I(f"v_lshl_add_u32 v{vXO}, v{vXD}, 10, v{vXD+1}")]
    return L

def read_x1(g, p, u, t):
    off = XPAGE[p % 5] * PAGE
    if off < 65536:
        g.ds(f"ds_read_b128 {ar(X(t, p, u))}, v{vXA[t] + u} offset:{off}", ("X", p, u))
    else:
        g.e(f"v_add_u32 v{vTMP}, {off}, v{vXA[t] + u}")
        g.ds(f"ds_read_b128 {ar(X(t, p, u))}, v{vTMP}", ("X", p, u))
def read_x(g, p, u):
    for t in range(2): read_x1(g, p, u, t)
def read_w(g, step):
    gi, u = step >> 2, step & 3
    b = WF[step % 3]
    pg = WPAGE[gi]
    off = (pg & 7) * PAGE + (u & ~1) * 2048
    a = vWA + 2 * (pg >> 3) + (u & 1)
    g.ds(f"ds_read_b64_tr_b16 v[{b}:{b+1}], v{a} offset:{off}", ("Wf", step))
    g.ds(f"ds_read_b64_tr_b16 v[{b+2}:{b+3}], v{a} offset:{off + 512}", ("Wf", step))

def flag_store(addr_ops, tag):
    return [("blk", addr_ops, 6), ("waitvm", tag),
            ("blk", ["s_mov_b64 exec, 1",
                     ("vm", f"buffer_store_dwordx2 v[{vNON}:{vNON+1}], v{vZERO}, {sr(SWS)}, s{sT1} offen sc1"),
                     "s_mov_b64 exec, -1"], 4)]
def flag_addr(kind):
    return [f"s_lshl_b32 s{sT1}, s{sRB}, 1", f"s_add_u32 s{sT1}, s{sT1}, s{sM}", f"s_lshl_b32 s{sT1}, s{sT1}, 2",
            f"s_lshr_b32 s{sT2}, s{sJ}, 1", f"s_add_u32 s{sT1}, s{sT1}, s{sT2}", f"s_lshl_b32 s{sT1}, s{sT1}, 4",
            f"s_and_b32 s{sT2}, s{sJ}, 1", f"s_lshl_b32 s{sT2}, s{sT2}, 1", f"s_add_u32 s{sT1}, s{sT1}, s{sT2}",
            f"s_add_u32 s{sT1}, s{sT1}, s{sN}", f"s_add_u32 s{sT1}, s{sT1}, {kind * 4}", f"s_lshl_b32 s{sT1}, s{sT1}, 3",
            f"s_add_u32 s{sT1}, s{sT1}, {FLB}"]
def kvflag_addr():
    return [f"s_lshl_b32 s{sT1}, s{sRB}, 2", f"s_add_u32 s{sT1}, s{sT1}, s{sW}", f"s_lshl_b32 s{sT1}, s{sT1}, 3",
            f"s_lshl_b32 s{sT2}, s{sJ}, 9", f"s_add_u32 s{sT1}, s{sT1}, s{sT2}", f"s_add_u32 s{sT1}, s{sT1}, {KFB}"]
def bfr(d, s): return [I(f"v_cvt_pk_bf16_f32 v{d}, v{s}, v{s}"), I(f"v_and_b32 v{d}, 0xffff0000, v{d}")]
SEL = ["op_sel:[0,0] op_sel_hi:[1,0]", "op_sel:[0,1] op_sel_hi:[1,1]"]
SEL3 = ["op_sel:[0,0,0] op_sel_hi:[1,0,1]", "op_sel:[0,1,0] op_sel_hi:[1,1,1]"]

def epilogue(c, typ, fast):
    L = []
    A = ACCS[c & 1]
    corient = (typ == 0 and c < 2)
    t = T; cs = vCSV
    bau = [I(f"v_add_f32 v{cs}, v{cs}, v{vCSP}"),
           I(f"v_cvt_pk_bf16_f32 v{t}, -v{cs}, -v{cs}"),
           I(f"v_and_b32 v{t}, 0xffff0000, v{t}"),
           I(f"v_sub_f32 v{t}, -v{cs}, v{t}"),
           I(f"v_cvt_pk_bf16_f32 v{t}, -v{cs}, v{t}"),
           I(f"v_cndmask_b32 v{BAUG}, v{t}, 0, {sr(mH,2)}")]
    if c == 0:
        L += [I(f"v_cndmask_b32 v{t+1}, v{S1}, v{S1+1}, {sr(mB4,2)}")]
        L += [I(f"v_add_f32 v{Q0+r}, v{Q0+r}, v{Q1+r}") for r in range(4)]
        L += [I(f"v_cndmask_b32 v{t+2}, v{Q0}, v{Q0+1}, {sr(mB0,2)}"),
              I(f"v_cndmask_b32 v{t+3}, v{Q0+2}, v{Q0+3}, {sr(mB0,2)}"),
              I(f"v_cndmask_b32 v{t+2}, v{t+2}, v{t+3}, {sr(mB1,2)}"),
              I(f"v_mov_b32 v{t+3}, v{t+2}"),
              I(f"v_mul_f32 v{t+1}, 0x3b000000, v{t+1}"),
              I(f"v_cvt_pk_bf16_f32 v{AAUG[0]}, v{t+1}, v{t+1}"),
              I(f"v_permlane32_swap_b32 v{t+2}, v{t+3}"),
              I(f"v_add_f32 v{t+2}, v{t+2}, v{t+3}"),
              I(f"v_mul_f32 v{t+2}, 0x3b000000, v{t+2}"),
              I(f"v_fma_f32 v{t+2}, -v{t+1}, v{t+1}, v{t+2}"),
              I(f"v_max_f32 v{t+2}, 0, v{t+2}")]
        L += bfr(t+2, t+2)
        L += [I(f"v_add_f32 v{t+2}, 0x%08x, v{t+2}" % f2u(1e-5))]
        L += bfr(t+2, t+2)
        L += [I(f"v_sqrt_f32 v{t+2}, v{t+2}", 2), ("ds", f"ds_write_b32 v{vSTO}, v{AAUG[0]}", "fw")]
        L += bfr(t+2, t+2)
        L += [I(f"v_rcp_f32 v{RL}, v{t+2}", 2), bau[0]]
        L += [("ds", f"ds_write_b32 v{vSTO}, v{RL} offset:512", "fw"), ("bar", bau[1:])]
        L += [("ds", f"ds_read_b32 v{AAUG[1]}, v{vSTX}", "fr"), ("ds", f"ds_read_b32 v{RL+1}, v{vSTX} offset:512", "fr")]
        if typ == 0:
            for tt in range(2):
                for q in range(4):
                    L += [("ds", f"ds_read_b128 {vr(RROW[tt] + 4*q)}, v{vRR+tt} offset:{32*q}", "fr")]
        L += [("delay", 1), ("waitlg", "fr")]
    else:
        L += bau
    for tt in range(2):
        a, b = (vr(AAUG[tt]), vr(BAUG)) if corient else (vr(BAUG), vr(AAUG[tt]))
        L += [("mfma", f"v_mfma_f32_32x32x16_bf16 {vr(A[tt],16)}, {a}, {b}, {vr(A[tt],16)}")]
    L += [("delay", 1)]
    def pk(op, d, a, b, c3=None, mod=""):
        s = f"{op} v[{d}:{d+1}], v[{a}:{a+1}], {b}"
        if c3 is not None: s += f", v[{c3}:{c3+1}]"
        return s + (" " + mod if mod else "")
    def cvt(tt, d): return [I(f"v_cvt_pk_bf16_f32 v{d+q}, v{A[tt]+2*q}, v{A[tt]+2*q+1}") for q in range(8)]
    def store(tt, d, stride, tag):
        return [("st", [([f"s_mul_i32 s{sT3}, s{sRT[tt]}, {stride}", f"s_add_u32 s{sT3}, s{sT3}, s{sHST[c]}"],
                         f"buffer_store_dwordx4 {vr(d)}, v{vL16}, {sr(SWS)}, s{sT3} offen sc1", tag, True),
                        ([], f"buffer_store_dwordx4 {vr(d+4)}, v{vL16}, {sr(SWS)}, s{sT3} offen offset:1024 sc1", tag, False)])]
    tag = "st%d" % c
    if c == 1 and typ == 1:
        L += [("burst", [pk("v_pk_mul_f32", t+16*tt+2*q, A[tt]+2*q, f"v[{RLL}:{RLL+1}]", None, SEL[tt]) for tt in range(2) for q in range(8)])]
        L += [("rate", OPT["qrate"])]
        for tt in range(2):
            for r in range(16):
                L += [I(f"v_exp_f32_e64 v{t+16*tt+r}, v{t+16*tt+r} clamp", 2), I(f"v_max_f32 v{A[tt]+r}, v{EPSR+tt}, v{A[tt]+r}")]
        L += [("burst", [pk("v_pk_fma_f32", A[tt]+2*q, A[tt]+2*q, f"v[{RL}:{RL+1}]", t+16*tt+2*q, SEL3[tt]) for tt in range(2) for q in range(8)])]
        for tt in range(2): L += cvt(tt, VF + 8*tt) + store(tt, VF + 8*tt, 32768, tag)
        L += [("rate", 0), ("delay", OPT["fdelay"])] + flag_store(flag_addr(1), tag)
    elif c == 0 and typ == 0:
        B = [pk("v_pk_mul_f32", A[tt]+2*q, A[tt]+2*q, f"v[{RROW[tt]+2*q}:{RROW[tt]+2*q+1}]") for tt in range(2) for q in range(8)]
        B += [pk("v_pk_mul_f32", t+16*tt+2*q, A[tt]+2*q, sr(sLOG, 2)) for tt in range(2) for q in range(8)]
        L += [("burst", B), ("rate", OPT["krate"])]
        for tt in range(2):
            for r in range(16):
                L += [I(f"v_exp_f32_e64 v{t+16*tt+r}, v{t+16*tt+r} clamp", 2), I(f"v_max_f32 v{A[tt]+r}, s{sEPS}, v{A[tt]+r}")]
        L += [("burst", [pk("v_pk_add_f32", A[tt]+2*q, A[tt]+2*q, f"v[{t+16*tt+2*q}:{t+16*tt+2*q+1}]") for tt in range(2) for q in range(8)])]
        for tt in range(2): L += cvt(tt, PK + 8*tt)
        L += [("rate", 0)]
    elif c == 1 and typ == 0:
        B = [pk("v_pk_mul_f32", A[tt]+2*q, A[tt]+2*q, f"v[{RROW[tt]+2*q}:{RROW[tt]+2*q+1}]") for tt in range(2) for q in range(8)]
        B += [x[1] for tt in range(2) for x in cvt(tt, VF + 8*tt)]
        L += [("burst", B)]
        KVA = A[0]
        adr = [I(f"v_bfe_u32 v{t+16}, v1, 4, 1"), I(f"v_mul_u32_u24 v{t+16}, {KVH}, v{t+16}"),
               ("blk", [f"s_mul_i32 s{sT1}, s{sM}, 4352", f"s_mul_i32 s{sT2}, s{sN}, 2176", f"s_add_u32 s{sT1}, s{sT1}, s{sT2}",
                        f"s_add_u32 s{sT1}, s{sT1}, {M_KV}", f"v_add_u32 v{t+16}, s{sT1}, v{t+16}"], 5),
               I(f"v_lshrrev_b32 v{t+17}, 5, v1"),
               I(f"v_lshrrev_b32 v{t+18}, 1, v{vFLO}"), I(f"v_add_u32 v{t+18}, v{t+18}, v{t+16}"),
               I(f"v_lshl_add_u32 v{t+16}, v{t+17}, 8, v{t+16}"),
               I(f"v_lshl_add_u32 v{t+16}, v{vFLO}, 1, v{t+16}"), I(f"v_lshlrev_b32 v{t+19}, 2, v0"),
               I(f"v_add_u32 v{t+20}, {M_KV}, v{t+19}"),
               I(f"v_cndmask_b32 v{t+8}, v{S1}, v{S1+1}, {sr(mB4,2)}"),
               ("ds", f"ds_write_b32 v{t+18}, v{t+8} offset:1024", "fw")]
        ms = []
        for i in range(4): ms.append(f"v_mfma_f32_16x16x32_bf16 {vr(S1)}, {vr(MO)}, {vr(PK+4*i)}, {'0' if i == 0 else vr(S1)}")
        L.insert(len(L) - 1, ("burst", ms))
        ms = []
        for i in range(4): ms.append(f"v_mfma_f32_32x32x16_bf16 {vr(KVA,16)}, {vr(PK+4*i)}, {vr(VF+4*i)}, {'0' if i == 0 else vr(KVA,16)}")
        L += [("mfmas", ms, adr), ("delay", 1)]
        L += [I(f"v_cndmask_b32 v{t+r}, v{KVA+r}, v{KVA+8+r}, {sr(mB4,2)}") for r in range(8)]
        L += [("ds", f"ds_write_b128 v{t+16}, {vr(t)}", "fw"), ("ds", f"ds_write_b128 v{t+16}, {vr(t+4)} offset:512", "fw")]
        L += [("bar", setup3_ops())]
        L += [("ds", f"ds_read2st64_b32 v[{t+2*i}:{t+2*i+1}], v{t+20} offset0:{4*i} offset1:{17+4*i}", "fr") for i in range(5)]
        L += [("delay", 1), ("waitlg", "fr")]
        L += [I(f"v_add_f32 v{t+2*i}, v{t+2*i}, v{t+2*i+1}") for i in range(5)]
        its = []
        for i in range(4):
            prep = [f"s_mul_i32 s{sT3}, s{sJ}, 4352", f"s_add_u32 s{sT3}, s{sT3}, {KVB}"] if i == 0 else []
            its.append((prep, f"buffer_atomic_add_f32 v{t+2*i}, v{t+19}, {sr(SWS)}, s{sT3} offen offset:{1024*i}", "at", True))
        its.append(([f"s_add_u32 s{sT3}, s{sT3}, 4096", f"s_cmp_eq_u32 s{sW}, 0", f"s_cselect_b32 s{sT3}, s{sT3}, {OOB}"],
                    f"buffer_atomic_add_f32 v{t+8}, v{t+19}, {sr(SWS)}, s{sT3} offen", "at", False))
        L += [("st", its), ("delay", OPT["adelay"])] + flag_store(kvflag_addr(), "at")
    else:
        if not fast and OPT["hb"]:
            L += [("burst", [pk("v_pk_mul_f32", A[tt]+2*q, A[tt]+2*q, f"v[{RL}:{RL+1}]", None, SEL[tt]) for tt in range(2) for q in range(8)])]
        for tt in range(2):
            d = VF + 8*tt
            if fast: L += [I(pk("v_pk_mul_f32", A[tt]+2*q, A[tt]+2*q, f"v[{RL}:{RL+1}]", None, SEL[tt])) for q in range(8)]
            elif not OPT["hb"]: L += [I(f"v_mul_f32 v{A[tt]+r}, v{RL+tt}, v{A[tt]+r}") for r in range(16)]
            for hf in range(2):
                L += [I(f"v_cvt_pk_bf16_f32 v{d+q}, v{A[tt]+2*q}, v{A[tt]+2*q+1}") for q in range(4*hf, 4*hf+4)]
                L += [I(f"v_pk_max_i16 v{d+q}, v{d+q}, 0") for q in range(4*hf, 4*hf+4)]
                if fast: L += [("st", [store(tt, d, HRT, tag)[0][1][hf]])]
            if not fast: L += store(tt, d, HRT, tag)
        kind = 0 if c == 0 else (2 if typ == 0 else 3)
        if c == 0:
            L += [I(f"v_mul_f32 v{RLL+tt}, s{sLOG}, v{RL+tt}") for tt in range(2)]
            L += [I(f"v_rcp_f32 v{EPSR+tt}, v{RL+tt}", 2) for tt in range(2)]
            L += setup3_ops()
            L += [I(f"v_mul_f32 v{EPSR+tt}, s{sEPS}, v{EPSR+tt}") for tt in range(2)]
        L += [("delay", OPT["hdelay"])] if not fast else [("late",)]
        L += flag_store(flag_addr(kind), tag)
    return L

class Sched:
    def __init__(self, g, typ):
        self.g = g; self.typ = typ
        self.q = []; self.side = []; self.wait_bar = False; self.delay = 0
        self.wq = []; self.sq = []; self.aq = []; self.bq = []
        self.cur = None
        self.bar = -1; self.free_stage = 0; self.tok = 0.0; self.extra = 0; self.pages = []; self.bnext = 0; self.step = 0
    def adv(self, cy): self.tok = min(2.0, self.tok + cy / (OPT["pc2"] if 16 <= self.bar < 24 else OPT["period"]))
    def pick(self, force=False):
        if self.cur is not None: return self.cur
        if self.sq: return self.sq
        if self.wq and self.wq[0][0] <= self.bar and (self.tok >= 1 or force or self.wq[0][2][2][1] <= self.bar + 4): return self.wq
        if self.tok < 1 and not force: return None
        a_ok = self.aq and self.aq[0][0] < self.free_stage
        if not self.bq and self.bnext < 30 and self.pages and not self.wq and not (self.bar < 24 and self.step >= OPT["quiet"]) and self.bar >= OPT["bh"]:
            BPAGE[self.bnext] = self.pages.pop(0)
            self.bq = [(0, 0, it) for it in it_b(self.bnext)]; self.bnext += 1
        b_ok = bool(self.bq)
        if a_ok and b_ok:
            sa = self.aq[0][2][2][1]; sb = self.bq[0][2][2][1]
            if sa == 99: sa = 0
            return self.bq if sb <= sa + OPT["bl"] else self.aq
        if a_ok: return self.aq
        if b_ok: return self.bq
        return None
    def vm(self, force=False):
        q = self.pick(force)
        if q is None: return 0
        it = q.pop(0)[2] if q is not self.sq else q.pop(0)
        emit_item(self.g, it)
        self.cur = q if it[3] else None
        tg = it[2]
        isw1 = isinstance(tg, tuple) and tg[0] == "W" and ((self.typ == 0 and tg[1] >= 16) or (self.typ == 1 and not 8 <= tg[1] < 16))
        self.tok -= OPT["w1w"] / 10.0 if isw1 else 0.3 if tg == "at" else 1
        self.tok = max(self.tok, -OPT["debt"])
        return len(it[0]) + 2
    def emit1(self, op):
        g = self.g; k = op[0]
        if k == "i": g.e(op[1])
        elif k == "ds": g.ds(op[1], op[2])
        elif k == "vm": g.vmem(op[1], op[2] if len(op) > 2 else "misc")
        elif k == "mfma": g.e(op[1])
        elif k == "waitlg": g.wait(lg=op[1])
        elif k == "waitvm":
            if VERB: print("   typ", self.typ, "waitvm", op[1], "at step", self.step)
            while self.sq or self.cur is not None: self.vm(True)
            g.wait(vm=op[1])
        elif k in ("blk", "burst"):
            for x in op[1]:
                if isinstance(x, str): g.e(x)
                else: self.emit1(x)
        elif k == "st":
            if VERB: print("   typ", self.typ, "st", op[1][0][2], "at step", self.step)
            self.sq += op[1]
    def cost(self, op):
        k = op[0]
        if k in ("i", "blk"): return op[2]
        return {"ds": 1, "vm": 2, "waitlg": 1, "waitvm": 1, "st": 0}[k]
    def tick(self):
        if self.delay > 0: self.delay -= 1
    def fill(self, slots):
        slots = min(slots, 4) + self.extra
        while slots > 0:
            if self.side: q = self.side
            elif self.q and not self.wait_bar and self.delay == 0: q = self.q
            else: return
            op = q[0]
            if op[0] in ("mfma", "mfmas", "late", "burst"): return
            if op[0] == "bar": q.pop(0); self.wait_bar = True; self.side = list(op[1]); continue
            if op[0] == "delay": q.pop(0); self.delay = op[1]; return
            if op[0] == "rate": q.pop(0); self.extra = op[1]; continue
            if op[0] == "i" and self.cost(op) > slots: return
            q.pop(0); slots -= self.cost(op); self.emit1(op)
    def big(self):
        while self.q and not self.side and self.q[0][0] in ("mfma", "mfmas", "burst") and not self.wait_bar and self.delay == 0:
            op = self.q.pop(0)
            if op[0] == "burst":
                for n, x in enumerate(op[1]):
                    self.g.e(x)
                    if n % 16 == 15: self.adv(72); self.vm()
            elif op[0] == "mfma":
                self.g.e(op[1]); self.adv(32); self.vm()
            else:
                self.side = list(op[2]); self.delay = 1
                for m in op[1]:
                    self.g.e(m); self.adv(32); self.fill(6 - self.vm())
                while self.side: self.emit1(self.side.pop(0))
                self.delay = 0
                return
    def drain(self, until_late=False):
        while self.side: self.emit1(self.side.pop(0))
        if self.wait_bar and self.q:
            self.g.wait(lg="fw"); self.g.e("s_barrier")
        self.wait_bar = False; self.delay = 0
        while self.q:
            op = self.q[0]
            if op[0] == "late":
                if until_late: return
                self.q.pop(0); continue
            self.q.pop(0)
            if op[0] == "bar":
                for x in op[1]: self.emit1(x)
                self.g.wait(lg="fw"); self.g.e("s_barrier"); continue
            if op[0] == "delay": continue
            if op[0] == "rate": self.extra = op[1]; continue
            if op[0] == "mfmas":
                for m in op[1]: self.g.e(m)
                for x in op[2]: self.emit1(x)
                continue
            self.emit1(op)
            if op[0] == "st":
                while self.sq or (self.cur is not None and self.cur is not self.sq): self.vm(True)

npoll = [0]
def poll(g, first_tag, reload, check):
    if OPT["dbg"] & 1: return
    n = npoll[0]; npoll[0] += 1
    g.wait(vm=first_tag)
    g.e(f"s_mov_b32 s{sT2}, 0")
    check()
    g.e(f"s_cbranch_scc1 L_POK{n}")
    g.label(f"L_PL{n}")
    if OPT["slp"]: g.e("s_sleep %d" % OPT["slp"])
    g.e(reload)
    g.e("s_waitcnt vmcnt(0)")
    g.e(f"s_add_u32 s{sT2}, s{sT2}, 1")
    g.e(f"s_cmp_gt_u32 s{sT2}, {OPT['spin']}")
    g.e(f"s_cbranch_scc1 L_POK{n}")
    check()
    g.e(f"s_cbranch_scc0 L_PL{n}")
    g.label(f"L_POK{n}")
    g.e("s_nop 4")
    if STAMP == 1: g.e(f"v_writelane_b32 v255, s{sT2}, {52 + n % 5}")

CTL_LD = f"buffer_load_dword v{vCTL}, v{vCTLO}, {sr(SDBG)}, 0 offen sc1"
FLG_LD = f"buffer_load_dwordx2 v[{vFLG}:{vFLG+1}], v{vFLO}, {sr(SWS)}, s{sFL} offen sc1"
KFL_LD = f"buffer_load_dwordx4 {vr(vKFL)}, v{vL16}, {sr(SWS)}, s{sKF} offen sc1"
def flag_check(g, mask):
    def f():
        g.e(f"v_cmp_eq_u64 vcc, v[{vFLG}:{vFLG+1}], {sr(sNON,2)}")
        g.e(f"s_and_b32 vcc_lo, vcc_lo, {mask}")
        g.e(f"s_cmp_eq_u32 vcc_lo, {mask}")
    return f

def body(g, typ):
    e = g.e
    S = Sched(g, typ)
    S.wq = [(-1, 0, it) for it in g.wq0]
    S.cur = S.wq if g.cur_open else None
    for p in range(4, 8):
        S.wq += [(p - 4, 0, it) for it in it_x(p)] + [(-1, 0, it) for it in it_w(typ, p)]
    for k, gi in enumerate(WORDER):
        if OPT["dpf"] and OPT["dpos"] == 2 and k == OPT["dk"]: S.wq += [(-1, 0, it) for it in it_touch()]
        if k == OPT["t3"]: S.wq += [(-1, 0, it) for it in it_touch3()]
        if k == OPT["tB"]: S.wq += [(-1, 0, it) for it in it_touchB()]
        S.wq += [(max(WAV[gi], OPT['wp'] if k >= 4 else -1), 0, it) for it in it_w(typ, gi)]
    if OPT["tB"] == 16: S.wq += [(OPT["tBb"], 0, it) for it in it_touchB()]
    BPAGE.clear()
    if OPT["dbg"] & 8: S.bnext = 30
    prq = [(s2, ct) for s2 in range(8) for ct in range(2)] if OPT["pr"] else []
    prel = []
    if OPT["dbg"] & 64: S.wq = []
    for gi in range(24):
        c, p = gi >> 3, gi & 7
        corient = (typ == 0 and c < 2)
        A = ACCS[c & 1]
        for u in range(4):
            step = gi * 4 + u
            first = (p == 0 and u == 0)
            wf = vr(WF[step % 3])
            S.tick(); S.step = step
            if step == OPT["qs"]:
                while S.cur is not None: S.vm(True)
                g.vmem(FLG_LD, "flg"); g.vmem(KFL_LD, "kfl")
            if first and c > 0:
                e(f"v_cndmask_b32 v{vCSV}, v{CS}, v{CS+1}, {sr(mB4,2)}")
            S.big()
            if (u % 2 == 0 or p == 7) and not OPT["dbg"] & 16:
                e(f"v_mfma_f32_16x16x32_bf16 {vr(CS)}, {vr(MO)}, {wf}, {'0' if first else vr(CS)}"); S.adv(16)
            if c == 0:
                x0 = X(0, p, u)
                e(f"v_mfma_f32_4x4x4_16b_bf16 {vr(Q0)}, a[{x0}:{x0+1}], a[{x0}:{x0+1}], {'0' if first else vr(Q0)}")
                e(f"v_mfma_f32_4x4x4_16b_bf16 {vr(Q1)}, a[{x0+2}:{x0+3}], a[{x0+2}:{x0+3}], {'0' if first else vr(Q1)}")
                e(f"v_mfma_f32_16x16x32_bf16 {vr(S1)}, {vr(MO)}, {ar(x0)}, {'0' if first else vr(S1)}"); S.adv(40)
                read_w(g, step + 2)
            def M(t):
                cc = "0" if first else vr(A[t], 16)
                a, b = (ar(X(t, p, u)), wf) if corient else (wf, ar(X(t, p, u)))
                e(f"v_mfma_f32_32x32x16_bf16 {vr(A[t],16)}, {a}, {b}, {cc}"); S.adv(32)
            M(0)
            sl = 6
            if c == 0:
                if step + 2 < 32: read_x1(g, (step + 2) >> 2, (step + 2) & 3, 0); sl -= 1
                sl -= S.vm()
            elif step + 2 < 96:
                read_w(g, step + 2); sl -= 2
            if gi >= OPT["vm2"]: sl -= S.vm()
            while prel and ("PR", prel[0]) not in g.lg:
                S.pages.append(BPAGE[prel.pop(0)])
            if prq and (16 + 2 * prq[0][0] + prq[0][1]) >> 3 < S.free_stage:
                s2, ct = prq.pop(0)
                assert s2 in BPAGE and ("B", s2) not in [x[2][2] for x in S.bq]
                g.wait(vm=[("B", s2)])
                pg = BPAGE[s2]
                for k in range(2):
                    r = breg(s2, ct) + 2 * k
                    g.ds(f"ds_read_b64_tr_b16 a[{r}:{r+1}], v{vBT+2*(pg>>3)+ct} offset:{(pg & 7) * PAGE + k*1024}", ("PR", s2))
                sl -= 2
                if ct == 1: prel.append(s2)
            S.fill(sl)
            M(1)
            sl = 5
            if step + 2 < 32: read_x1(g, (step + 2) >> 2, (step + 2) & 3, 1); sl -= 1
            if p == 7 and u == 2:
                g.ds(f"ds_read_b32 v{vCSP}, v{vCSR}", "csp"); sl -= 1
            sl -= S.vm()
            if u == 1: sl -= 1
            if p == 6 and u == 3:
                e(f"v_cndmask_b32 v{vTMP}, v{CS}, v{CS+1}, {sr(mB4,2)}")
                g.ds(f"ds_write_b32 v{vCSW}, v{vTMP}", "fw"); sl -= 2
            if c == 2 and u == 3: S.free_stage = p + 1
            if u == 1:
                while any(x[2][2][1] <= gi + 1 for x in S.wq):
                    assert S.vm(True)
                g.st.mark2(g)
                g.wait(vm=[("W", gi + 1), ("X", gi + 1)], lg=["fw", ("Wf", step + 1), ("X", (step+1) >> 2, (step+1) & 3)])
                if not OPT["dbg"] & 4: e("s_barrier")
                g.st.mark2(g)
                S.bar = gi; S.wait_bar = False
                S.pages += [pg for (bb, pg) in BEV if bb == gi]
                if gi == 2: publish_ctl(g, typ)
                if gi == 5: g.vmem(CTL_LD, "ctl")
                if gi == 6:
                    assert not any(x[2][2][0] == "X" for x in S.wq)
                    if OPT["xr"]:
                        e(f"s_and_b32 s{sKEY}, s{sRB2}, 3")
                        e(f"s_lshl_b32 s{sKEY}, s{sKEY}, 1")
                        e(f"s_add_u32 s{sKEY}, s{sKEY}, s{sCB}")
                        e(f"s_and_b32 s{sKEY}, s{sKEY}, 7")
                    else: e(f"s_mov_b32 s{sKEY}, 0")
                    e(f"s_lshl_b32 s{sK14}, s{sKEY}, 14")
                    e(f"s_lshl_b32 s{sHAK}, s{sKEY}, 10")
                    e(f"s_or_b32 s{sPQ}, s{sPQ}, s{sHAK}")
                    e(f"s_or_b32 s{sHAK}, s{sHAK}, s{sHA}")
                if gi == 9:
                    def chk():
                        e(f"v_readlane_b32 s{sNON}, v{vCTL}, 16")
                        e(f"v_readlane_b32 s{sNON+1}, v{vCTL}, 17")
                        if typ == 0:
                            e(f"v_readlane_b32 vcc_lo, v{vCTL}, s{sJ}")
                            e(f"s_min_u32 vcc_lo, vcc_lo, s{sNON}")
                            e(f"s_cmp_lg_u32 vcc_lo, 0")
                        else:
                            e(f"s_cmp_lg_u32 s{sNON}, 0")
                    poll(g, "ctl", CTL_LD, chk)
                    e(f"v_mov_b32 v{vNON}, s{sNON}")
                    e(f"v_mov_b32 v{vNON+1}, s{sNON+1}")
                if gi == OPT["hpoll"] - OPT["hlead"]: g.vmem(FLG_LD, "flg")
                if gi == OPT["hpoll"] and OPT["nb"]:
                    g.wait(vm="flg")
                    flag_check(g, 0xf)()
                    e(f"s_cselect_b32 s{sHAE}, s{sHAK}, {OOB}")
                    e(f"s_cselect_b32 s{sOK}, 1, 0")
                    S.aq += [(aslot_of(s, t) >> 3, 0, it_a(s, t, sHAE)) for s in range(8) for t in range(2)]
                elif gi == OPT["hpoll"]:
                    poll(g, "flg", FLG_LD, flag_check(g, 0xf))
                    S.aq += [(aslot_of(s, t) >> 3, 0, it_a(s, t)) for s in range(8) for t in range(2)]
            elif step + 1 < 96:
                g.wait(lg=[("Wf", step + 1), ("X", (step+1) >> 2, (step+1) & 3)])
            S.fill(sl + OPT["fs"] - 5)
        if p == 7:
            g.st.mark(g)
            if c < 2:
                n = len([op for op in S.q if op[0] == "i"])
                if n: print("  typ", typ, "chunk", c, "leftover valu", n)
                S.drain()
                g.wait(lg="csp")
                if not OPT["dbg"] & 2: S.q += epilogue(c, typ, False)
    if OPT["dbg"] & 1:
        stamp_flush(g); e("s_endpgm"); return
    n = len([op for op in S.q if op[0] == "i"])
    if n: print("  typ", typ, "chunk 2 leftover valu", n)
    k = len(S.q)
    while k > 0 and S.q[k-1][0] in ("blk", "waitvm", "delay") and len(S.q) - k < 4: k -= 1
    late = S.q[k:] if len(S.q) - k >= 3 else []
    if late: S.q = S.q[:k]; print("  typ", typ, "late chunk-1 flag")
    S.drain()
    while S.sq or S.cur is not None: assert S.vm(True)
    g.wait(lg="csp")
    e(f"v_cndmask_b32 v{vCSV}, v{CS}, v{CS+1}, {sr(mB4,2)}")
    ep = epilogue(2, typ, True)
    i = [k for k, op in enumerate(ep) if op[0] == "delay"][0]
    S.q = ep[:i]
    S.drain()
    if S.aq: print("  typ", typ, "late A loads", len(S.aq))
    print("  typ", typ, "B items left at T1", 2 * (30 - S.bnext) + len(S.bq), "prereads left", len(prq))
    assert not prq
    while S.aq: assert S.vm(True)
    S.q = late; S.drain()
    if OPT["qld"] < 0 and OPT["qs"] < 0: g.vmem(FLG_LD, "flg"); g.vmem(KFL_LD, "kfl")
    S.q = ep[i:]
    S.drain(until_late=True)
    S.cur = None
    late2 = S.q; S.q = []
    g.st.mark(g)
    g.wait(lg_all=True)
    e("s_barrier")
    S.bar = 24; S.free_stage = 8
    S.pages += [BPAGE[x] for x in prel] + [pg for (bb, pg) in BEV if bb == 24]
    sv = OPT["period"]; OPT["period"] = OPT["p2"]
    phase2(g, S, late2)
    OPT["period"] = sv

def publish_ctl(g, typ):
    if typ != OPT["zt"]: return
    e = g.e
    e(f"s_cmp_eq_u32 s{sZ}, 1")
    e("s_cbranch_scc0 L_NOZF")
    e(f"s_lshl_b32 s{sT1}, s{sJ}, 2")
    e(f"v_mov_b32 v{vTMP}, 1")
    e("s_mov_b64 exec, 1")
    g.vmem(f"buffer_store_dword v{vTMP}, v{vZERO}, {sr(SDBG)}, s{sT1} offen sc1", counted=False)
    e("s_mov_b64 exec, -1")
    g.label("L_NOZF")

def phase2(g, S, late2):
    e = g.e
    NS = 30
    LT = OPT["lt"]; S0 = NS - LT
    BL = [180, 188, 196, 204, 224, 232, 40, 48]
    def bfreg(s): return BL[s - S0] if s >= S0 else BF[s % 3]
    def read_b(s):
        pg = BPAGE[s]; rng = pg >> 3; off = (pg & 7) * PAGE
        b = bfreg(s)
        return [lambda ct=ct, k=k: g.ds(f"ds_read_b64_tr_b16 v[{b+4*ct+2*k}:{b+4*ct+2*k+1}], v{vBT+2*rng+ct} offset:{off + k*1024}", ("Bf", s))
                for ct in range(2) for k in range(2)]
    def ensure_b(s):
        while S.bnext <= s or any(x[2][2][1] == s for x in S.bq):
            if S.cur is not None: assert S.vm(True); continue
            sv = S.aq; S.aq = []
            assert S.vm(True)
            S.aq = sv
    npr = 8 if OPT["pr"] else 0
    def ensure(q, s):
        while any(x[2][2][1] == s for x in q):
            if S.cur is None:
                it = q.pop(0)[2]; emit_item(g, it); S.cur = q if it[3] else None
            else:
                assert S.vm(True)
    def Cops(h):
        k = KVR[h]
        return [I(f"v_cvt_pk_bf16_f32 v{k+q}, v{k+2*q}, v{k+2*q+1}") for q in range(4)]
    def Nm(h, t): return f"v_mfma_f32_32x32x16_bf16 {vr(ND[t],16)}, {vr(KVR[h])}, {ar(areg(8 + h, t))}, 0"
    def Vops(h, t):
        d = ND[t]
        L = [I(f"v_add_f32 v{d+8}, s{sEPS}, v{d+8}"), I(f"v_rcp_f32 v{d+8}, v{d+8}", 2)]
        for q in range(4):
            L += [I(f"v_mul_f32 v{d+2*q}, v{d+2*q}, v{d+8}"), I(f"v_mul_f32 v{d+2*q+1}, v{d+2*q+1}, v{d+8}")]
        L += [I(f"v_cvt_pk_bf16_f32 v{OF[0][t]+q}, v{d+2*q}, v{d+2*q+1}") for q in range(4)]
        return L
    vq = []
    tailm = []; trq = []
    def valu(n):
        while vq and n > 0:
            op = vq.pop(0); n -= op[2]; e(op[1])
    def redaddr():
        t = T
        L = [f"v_and_b32 v{t}, 31, v1", f"v_lshrrev_b32 v{t+1}, 3, v{t}", f"v_lshlrev_b32 v{t+1}, 13, v{t+1}",
             f"v_and_b32 v{t+2}, 7, v1", f"v_lshl_add_u32 v{t+1}, v{t+2}, 8, v{t+1}", f"v_add_u32 v{t+1}, s{sBL}, v{t+1}",
             f"v_lshrrev_b32 v{t+3}, 5, v1"]
        for q in range(4):
            L += [f"v_add_u32 v{t+4}, {2*q}, v{t+3}", f"v_xor_b32 v{t+4}, v{t+4}, v{t+2}", f"v_lshl_add_u32 v{t+8+q}, v{t+4}, 4, v{t+1}"]
        L += [f"v_lshrrev_b32 v{t}, 6, v0", f"v_lshlrev_b32 v{t}, 13, v{t}", f"v_bfe_u32 v{t+1}, v0, 3, 3",
              f"v_lshl_add_u32 v{t}, v{t+1}, 8, v{t}", f"v_lshlrev_b32 v{t+2}, 1, v{t+2}", f"v_xor_b32 v{t+2}, v{t+2}, v{t+1}",
              f"v_lshl_add_u32 v{t+4}, v{t+2}, 4, v{t}", f"v_xor_b32 v{t+5}, 16, v{t+4}"]
        return [I(x) for x in L]
    if OPT["nb"]:
        assert OPT["qld"] >= 0
        n = npoll[0]; npoll[0] += 1
        e(f"s_mov_b32 s{sT2}, 0")
        e(f"s_cmp_eq_u32 s{sOK}, 1")
        e(f"s_cbranch_scc1 L_POK{n}")
        g.label(f"L_PL{n}")
        e(FLG_LD)
        e("s_waitcnt vmcnt(0)")
        e(f"s_add_u32 s{sT2}, s{sT2}, 1")
        e(f"s_cmp_gt_u32 s{sT2}, {OPT['spin']}")
        e(f"s_cbranch_scc1 L_PG{n}")
        flag_check(g, 0xf)()
        e(f"s_cbranch_scc1 L_PG{n}")
        e("s_sleep 2")
        e(f"s_branch L_PL{n}")
        g.label(f"L_PG{n}")
        for s2 in range(8):
            for t in range(2):
                it = it_a(s2, t)
                for x in it[0]: e(x)
                e(it[1])
        e("s_waitcnt vmcnt(0)")
        g.label(f"L_POK{n}")
        if STAMP == 1: e(f"v_writelane_b32 v255, s{sT2}, {52 + n % 5}")
    if OPT["qld"] == 0: g.vmem(FLG_LD, "flg"); g.vmem(KFL_LD, "kfl")
    if not npr:
        ensure_b(0)
        g.wait(vm=[("B", 0)])
        for f in read_b(0): f()
    for s in range(NS):
        kind, idx = step_kind(s)
        if s == OPT["qld"] and s > 0:
            g.vmem(FLG_LD, "flg"); g.vmem(KFL_LD, "kfl")
        if s - 1 >= npr: S.pages.append(BPAGE[s - 1])
        if s == OPT["pub"]:
            g.st.mark(g)
            S.q = late2; S.drain()
            g.st.mark(g)
        if s == OPT["qchk"]:
            poll(g, "flg", FLG_LD, flag_check(g, 0xf0))
            def chk():
                e(f"v_cmp_eq_u64 vcc, v[{vKFL}:{vKFL+1}], {sr(sNON,2)}")
                e(f"v_cmp_eq_u64 {sr(mB0,2)}, v[{vKFL+2}:{vKFL+3}], {sr(sNON,2)}")
                e(f"s_and_b64 vcc, vcc, {sr(mB0,2)}")
                e("s_cmp_eq_u64 vcc, -1")
            poll(g, "kfl", KFL_LD, chk)
            g.st.mark(g)
            for h in range(8):
                for t in range(2):
                    S.aq.append((0, 0, ([f"s_xor_b32 s{sT3}, s{sKEY}, {h}", f"s_mul_i32 s{sT3}, s{sT3}, {KVH}", f"s_add_u32 s{sT3}, s{sT3}, s{sKV}"] if t == 0 else [],
                                 f"buffer_load_dwordx4 {vr(KVR[h] + 4*t)}, v{vXD+2 if t else vKVO}, {sr(SWS)}, s{sT3} offen offset:{32*t} sc1", ("KV", 8 + h), t == 0)))
                S.aq += [(0, 0, it_a(8 + h, t)) for t in range(2)]
                if h == OPT["h2smp"] and OPT["h2at"] < 0: S.aq.append((0, 0, ([], FLG_LD, ("flg", 99), False)))
        if s == 8:
            ensure(S.aq, 8 + OPT["olead"])
            g.st.mark(g)
            g.wait(vm=[("KV", 8), ("A", 8)])
            for op in Cops(0): e(op[1])
            e(Nm(0, 0)); e(Nm(0, 1))
            g.wait(vm=[("KV", 9)])
            for op in Cops(1) + Vops(0, 0): e(op[1])
            vq += [op + ("v1",) for op in Vops(0, 1)]
            g.st.mark(g)
        if s == OPT["h2at"]:
            while S.cur is not None: S.vm(True)
            g.vmem(FLG_LD, ("flg", 99))
        if s == OPT["h2chk"]:
            ensure(S.aq, 99)
            while S.cur is not None: S.vm(True)
            poll(g, [("flg", 99)], FLG_LD, flag_check(g, 0xff00))
            g.st.mark(g)
            S.aq += [(0, 0, it_a(s2, t)) for s2 in range(16, S0) for t in range(2)]
            S.aq += [(0, 0, it_a(s2, 0)) for s2 in range(S0, 30)]
            for s2 in range(S0, 30):
                it = it_a(s2, 1); S.aq.append((0, 0, (it[0], it[1], ("A", s2 + 30), it[3])))
            for _ in range(OPT["h2n"]): S.vm(True)
        rb = []
        if npr <= s + 1 < S0:
            ensure_b(s + 1)
            rb = read_b(s + 1)
        if s == S0 - OPT["tl"]:
            for s2 in range(S0, NS):
                ensure_b(s2)
                trq += [(s2, f) for f in read_b(s2)]
        b = bfreg(s)
        def Mm(ct, t, s=s, b=b, kind=kind):
            acc = vr(ACC2 + 32 * ct + 16 * t, 16)
            act = ar(areg(s, t)) if kind == "h" else vr(OF[0][t])
            bo = ar(breg(s, ct)) if s < npr else vr(b+4*ct)
            return f"v_mfma_f32_32x32x16_bf16 {acc}, {bo}, {act}, {'0' if s == 0 else acc}"
        frc = s >= 16 or (OPT["qchk"] <= s < 8)
        if kind == "h":
            ensure(S.aq, s)
            assert not any(x[0] <= s for x in trq)
            g.wait(vm=[("A", s)] + ([("B", s + 1)] if s + 1 < S0 else []), lg=[("Bf", s)])
            if s == 17: vq += redaddr()
            if s == 23:
                g.wait(vm="xr")
                for tt in range(2):
                    for q in range(4):
                        vq.append(I(f"v_lshlrev_b32 v{92+8*tt+2*q}, 16, v{84+4*tt+q}"))
                        vq.append(I(f"v_and_b32 v{92+8*tt+2*q+1}, 0xffff0000, v{84+4*tt+q}"))
            if s >= S0: tailm += [(s, Mm(0, 1)), (s, Mm(1, 1))]
            for mi, (ct, t) in enumerate(((0, 0), (1, 0), (0, 1), (1, 1)) if s < S0 else ((0, 0), (1, 0))):
                e(Mm(ct, t)); S.adv(32)
                sl = 6
                if mi < 2 and rb: rb.pop(0)(); rb.pop(0)(); sl -= 2
                elif trq:
                    g.wait(vm=[("B", trq[0][0])])
                    trq.pop(0)[1](); trq.pop(0)[1](); sl -= 2
                sl -= S.vm(frc)
                valu(min(4, sl))
        else:
            h = idx
            nxt = h + 1 < 8
            if h + 2 < 8: ensure(S.aq, s + 2)
            g.wait(vm=[("A", s + 1), ("B", s + 1)] if nxt else [("B", s + 1)], lg=[("Bf", s)])
            seq = ([("N", 0)] if nxt else []) + [("M", 0, 0), ("M", 1, 0)] + ([("N", 1)] if nxt else []) + [("M", 0, 1), ("M", 1, 1)]
            for pi, pp in enumerate(seq):
                if pp == ("N", 1) or (pp == ("M", 0, 1) and not nxt):
                    while vq and vq[0][3:] == ("v1",): e(vq.pop(0)[1])
                e(Nm(h + 1, pp[1]) if pp[0] == "N" else Mm(pp[1], pp[2])); S.adv(32)
                if pp == ("M", 1, 0) and nxt: vq += [op + ("v0",) for op in Vops(h + 1, 0)]
                if pp == ("M", 1, 0) and h + 2 < 8:
                    g.wait(vm=[("KV", s + 2)])
                    vq += [op + ("v0",) for op in Cops(h + 2)]
                if pp == ("M", 1, 1) and nxt:
                    while vq and vq[0][3:] == ("v0",) and len(vq) > 6: e(vq.pop(0)[1])
                sl = 6
                if pi < 2 and rb: rb.pop(0)(); rb.pop(0)(); sl -= 2
                if pi >= 6 - OPT["ovm"]: sl -= S.vm(True)
                valu(OPT["ov"])
            while vq and vq[0][3:] == ("v0",): e(vq.pop(0)[1])
            if nxt: vq += [op + ("v1",) for op in Vops(h + 1, 1)]
        if s == 16:
            g.vmem(f"buffer_load_dwordx4 {vr(84)}, v{vXO}, {sr(SX)}, s{sXR} offen", "xr")
            g.vmem(f"buffer_load_dwordx4 {vr(88)}, v{vXO}, {sr(SX)}, s{sXR+1} offen", "xr")
        if s == 15: g.st.mark(g)
    while vq: e(vq.pop(0)[1])
    while S.aq: assert S.vm(True)
    assert not S.bq and S.bnext == 30
    t = T
    def wr(tt): return [lambda ct=ct, q=q: g.ds(f"ds_write_b128 v{t+8+q}, {vr(ACC2 + 32*ct + 16*tt + 4*q)} offset:{tt * 4 * PAGE + ct * 128}", ("rw", tt))
                        for ct in range(2) for q in range(4)]
    def rreg(tt, w): return ACC2 + 16 * tt + 32 * (w >> 1) + 8 * (w & 1)
    def rd(tt): return [lambda w=w, k=k: g.ds(f"ds_read_b128 {vr(rreg(tt, w) + 4*k)}, v{t+4+k} offset:{tt * 4 * PAGE + w * 2048}", ("rr", tt))
                        for w in range(4) for k in range(2)]
    def fin(tt):
        g.wait(lg=[("rr", tt)])
        r0, r1, r2, r3 = [rreg(tt, w) for w in range(4)]
        P = lambda d, a, b: e(f"v_pk_add_f32 v[{d}:{d+1}], v[{a}:{a+1}], v[{b}:{b+1}]")
        for q in range(4): P(r0+2*q, r0+2*q, r1+2*q); P(r2+2*q, r2+2*q, r3+2*q)
        for q in range(4): P(r0+2*q, r0+2*q, 92+8*tt+2*q)
        for q in range(4): P(r0+2*q, r0+2*q, r2+2*q)
        for q in range(4): e(f"v_cvt_pk_bf16_f32 v{r1+q}, v{r0+2*q}, v{r0+2*q+1}")
        g.vmem(f"buffer_store_dwordx4 {vr(r1)}, v{vXO}, {sr(SOUT)}, s{sXR+tt} offen" + ["", " sc1", " nt", " sc0 sc1"][OPT["osc"]], "o")
    w0 = wr(0)
    for i, (s2, m) in enumerate(tailm):
        g.wait(vm=[("A", s2 + 30)])
        e(m)
        if i >= 2 and w0: w0.pop(0)()
    while w0: w0.pop(0)()
    g.st.mark(g)
    if OPT["tb"]:
        g.wait(lg=[("rw", 0)])
        e("s_barrier")
        for f in rd(0): f()
        for f in wr(1): f()
        fin(0)
        g.wait(lg_all=True)
        e("s_barrier")
        for f in rd(1): f()
        fin(1)
    else:
        for f in wr(1): f()
        g.wait(lg_all=True)
        e("s_barrier")
        for f in rd(0) + rd(1): f()
        fin(0); fin(1)
    stamp_flush(g)
    e("s_endpgm")

def stamp_flush(g):
    e = g.e
    if STAMP:
        g.st.mark(g)
        e("s_waitcnt vmcnt(0)")
        g.st.mark(g)
        if STAMP == 3:
            e("v_lshlrev_b32 v254, 2, v1")
            e("s_mov_b64 exec, 0xff00")
            e(f"buffer_atomic_umax v255, v254, {sr(SDBG)}, 0 offen sc1")
            return
        e(f"v_readlane_b32 s{sT0}, v255, 63")
        e(f"s_lshl_b32 s{sT0}, s{sT0}, 2")
        e(f"s_add_u32 s{sT0}, s{sT0}, s{sW}")
        e(f"s_lshl_b32 s{sT0}, s{sT0}, 8")
        e(f"s_add_u32 s{sT0}, s{sT0}, {STB}")
        e("v_lshlrev_b32 v254, 2, v1")
        e(f"buffer_store_dword v255, v254, {sr(SWS)}, s{sT0} offen")

def dpf(g):
    e = g.e
    e("v_lshlrev_b32 v252, 7, v1")
    if OPT["s2f"]:
        e(f"s_lshl_b32 s{sT2}, s{sRB2}, 3")
        e(f"s_add_u32 s{sT2}, s{sT2}, s{sCB}")
    def touch(wave, nbytes, sd, cond_typ=None):
        nl = nbytes // 128
        e(f"s_mul_i32 s{sT1}, s{sT2 if OPT['s2f'] else 2}, {nbytes}")
        e(f"s_cmp_eq_u32 s{sW}, {wave}")
        e(f"s_cselect_b32 s{sT1}, s{sT1}, {OOB}")
        m = (1 << nl) - 1
        e("s_mov_b32 exec_lo, 0x%x" % (m & 0xffffffff)); e("s_mov_b32 exec_hi, 0x%x" % (m >> 32))
        g.vmem(f"buffer_load_dword v253, v252, {sr(sd)}, s{sT1} offen", "pf")
    touch(0, 5504, SW2); touch(1, 2048, SWO)
    if OPT["dpf"] >= 2:
        touch(2, 6144, SWP); touch(3, 6144, SWS2)
    e("s_mov_b64 exec, -1")

def it_touch():
    L = []
    for wave, nbytes, sd in ((0, 5504, SW2), (1, 2048, SWO)):
        m = (1 << (nbytes // 128)) - 1
        prep = [f"s_lshl_b32 s{sT3}, s{sRB2}, 3", f"s_add_u32 s{sT3}, s{sT3}, s{sCB}", f"s_mul_i32 s{sT3}, s{sT3}, {nbytes}",
                f"s_cmp_eq_u32 s{sW}, {wave}", f"s_cselect_b32 s{sT3}, s{sT3}, {OOB}", "v_lshlrev_b32 v252, 7, v1",
                "s_mov_b32 exec_lo, 0x%x" % (m & 0xffffffff), "s_mov_b32 exec_hi, 0x%x" % (m >> 32)]
        L.append((prep, f"buffer_load_dword v253, v252, {sr(sd)}, s{sT3} offen\ns_mov_b64 exec, -1", ("pf", 50), False))
    return L

def it_touch3():
    L = []
    for wave, nrows, sd in ((2, 43, SW2), (3, 16, SWO)):
        m = (1 << nrows) - 1
        prep = [f"s_and_b32 s{sT3}, s{sRB2}, 3", f"s_lshl_b32 s{sT3}, s{sT3}, 3", f"s_add_u32 s{sT3}, s{sT3}, s{sCB}", f"s_mul_i32 s{sT3}, s{sT3}, {nrows * 1024}",
                f"s_cmp_eq_u32 s{sW}, {wave}", f"s_cselect_b32 s{sT3}, s{sT3}, {OOB}", "v_lshlrev_b32 v252, 10, v1",
                "s_mov_b32 exec_lo, 0x%x" % (m & 0xffffffff), "s_mov_b32 exec_hi, 0x%x" % (m >> 32)]
        L.append((prep, f"buffer_load_dword v253, v252, {sr(sd)}, s{sT3} offen offset:384\ns_mov_b64 exec, -1", ("pf", 50), False))
    return L

def it_touchB():
    idx = [f"s_and_b32 s{sT3}, s{sRB2}, 3", f"s_lshl_b32 s{sT3}, s{sT3}, 3", f"s_add_u32 s{sT3}, s{sT3}, s{sCB}"]
    fl = " sc1" if OPT["tbs"] else ""
    L = []
    L.append((idx + [f"s_mul_i32 s{sT3}, s{sT3}, {43 * 1024}", "v_lshlrev_b32 v252, 7, v0"],
              f"buffer_load_dword v253, v252, {sr(SW2)}, s{sT3} offen" + fl, ("pf", 50), True))
    L.append(([f"s_add_u32 s{sT3}, s{sT3}, 32768", "v_cmp_gt_u32 vcc, 88, v0", f"v_mov_b32 v254, {OOB}", "v_cndmask_b32 v254, v254, v252, vcc"],
              f"buffer_load_dword v253, v254, {sr(SW2)}, s{sT3} offen" + fl, ("pf", 50), False))
    L.append((idx + [f"s_lshl_b32 s{sT3}, s{sT3}, 14", "v_lshlrev_b32 v252, 7, v0", "v_subrev_u32 v252, 16384, v252", "v_and_b32 v252, 0x7fffffff, v252"],
              f"buffer_load_dword v253, v252, {sr(SWO)}, s{sT3} offen" + fl, ("pf", 50), False))
    return L

def touch_qkv3(g):
    e = g.e
    e(f"s_and_b32 s{sT1}, s{sRB2}, 3")
    e(f"s_lshl_b32 s{sT1}, s{sT1}, 3")
    e(f"s_add_u32 s{sT1}, s{sT1}, s{sCB}")
    e(f"s_mul_i32 s{sT1}, s{sT1}, {48 * 1024}")
    e(f"s_lshr_b32 s{sT2}, s{sJ}, 2")
    e(f"s_lshl_b32 s{sT2}, s{sT2}, 2")
    e(f"s_or_b32 s{sT2}, s{sT2}, s{sW}")
    e(f"s_lshl_b32 s{sT2}, s{sT2}, 1")
    e(f"s_or_b32 s{sT2}, s{sT2}, s{sTYP}")
    e("v_lshlrev_b32 v252, 10, v1")
    e("s_mov_b32 exec_hi, 0xffff")
    for typ, sd in ((0, SWP), (1, SWS2)):
        e(f"s_cmp_eq_u32 s{sT2}, {4 + typ}")
        e(f"s_cselect_b32 s{sT0}, s{sT1}, {OOB}")
        g.vmem(f"buffer_load_dword v253, v252, {sr(sd)}, s{sT0} offen offset:384", "pf")
    e("s_mov_b64 exec, -1")

def gen():
    g = Gen(); g.st = Stamps(); e = g.e
    prologue(g)
    g.st.mark(g)
    items = []
    for p in range(4): items += it_x(p) + it_w(0, p)
    pre = OPT["pre"]
    if OPT["q3"] == 1:
        e(f"s_and_b32 s{SWS2+1}, s{SWS2+1}, 0xffff")
        touch_qkv3(g)
    for it in items[:min(12, pre)]: emit_item(g, it)
    setup1(g)
    if OPT["q3"] == 2: touch_qkv3(g)
    if OPT["dpf"] and OPT["dpos"] == 0: dpf(g)
    if OPT["tp"]:
        sh = {1: 20, 2: 18}[OPT["tp"]]
        e(f"v_lshlrev_b32 v252, {sh}, v1")
        e(f"s_cmp_eq_u32 s{sW}, 3")
        e(f"s_cselect_b32 s{sT1}, 0, {OOB}")
        e("s_mov_b64 exec, 0x%x" % ((1 << (12 << (20 - sh))) - 1) if sh == 20 else "s_mov_b32 exec_hi, 0xffff")
        g.vmem(f"buffer_load_dword v253, v252, {sr(SWS)}, s{sT1} offen", "pf")
        g.vmem(f"buffer_load_dword v253, v252, {sr(SOUT)}, s{sT1} offen", "pf")
        g.vmem(f"buffer_load_dword v253, v252, {sr(SDBG)}, s{sT1} offen", "pf")
        g.vmem(f"buffer_load_dword v253, v252, {sr(SWS2)}, s{sT1} offen", "pf")
        g.vmem(f"buffer_load_dword v253, v252, {sr(SW2)}, s{sT1} offen", "pf")
        g.vmem(f"buffer_load_dword v253, v252, {sr(SWO)}, s{sT1} offen", "pf")
        e("s_mov_b64 exec, -1")
    e(f"s_xor_b32 s{sT1}, s{sTYP}, {OPT['zt']}")
    e(f"s_or_b32 s{sT1}, s{sRB}, s{sT1}")
    e(f"s_or_b32 s{sT1}, s{sT1}, s{sW}")
    e(f"s_cmp_eq_u32 s{sT1}, 0")
    e(f"s_cselect_b32 s{sZ}, 1, 0")
    e("s_cbranch_scc0 L_NOZ")
    e(f"s_memrealtime {sr(sNON,2)}")
    e(f"v_lshlrev_b32 v{vL16}, 4, v1")
    for r in range(4): e(f"v_mov_b32 v{T+r}, 0")
    e(f"s_mul_i32 s{sT1}, s{sJ}, 4352")
    e(f"s_add_u32 s{sT1}, s{sT1}, {KVB}")
    for i in range(4):
        g.vmem(f"buffer_store_dwordx4 {vr(T)}, v{vL16}, {sr(SWS)}, s{sT1} offen offset:{1024*i} sc1", counted=False)
    e(f"s_add_u32 s{sT1}, s{sT1}, 4096")
    e("s_mov_b64 exec, 0xffff")
    g.vmem(f"buffer_store_dwordx4 {vr(T)}, v{vL16}, {sr(SWS)}, s{sT1} offen sc1", counted=False)
    e("s_mov_b64 exec, 1")
    e("s_waitcnt lgkmcnt(0)")
    e(f"s_or_b32 s{sNON}, s{sNON}, 1")
    e(f"v_mov_b32 v{T+4}, s{sNON}")
    e(f"v_mov_b32 v{T+5}, s{sNON+1}")
    e(f"s_cmp_eq_u32 s{sJ}, 0")
    e(f"s_cselect_b32 s{sT1}, 64, {OOB}")
    g.vmem(f"buffer_store_dwordx2 v[{T+4}:{T+5}], v{T}, {sr(SDBG)}, s{sT1} offen sc1", counted=False)
    e("s_mov_b64 exec, -1")
    e("s_nop 1")
    g.label("L_NOZ")
    if OPT["s2f"]:
        setup2(g)
    for it in items[12:pre]: emit_item(g, it)
    if OPT["dpf"] and OPT["dpos"] == 1: dpf(g)
    g.cur_open = items[pre - 1][3]
    assert not g.cur_open
    g.wq0 = items[pre:]
    if not OPT["s2f"]: setup2(g)
    g.st.mark(g)
    g.wait(vm=[("W", 0), ("X", 0)])
    e("s_barrier")
    g.st.mark(g)
    read_x(g, 0, 0); read_w(g, 0); read_x(g, 0, 1); read_w(g, 1)
    g.wait(lg=[("Wf", 0)])
    e(f"s_cmp_eq_u32 s{sTYP}, 0")
    e("s_cbranch_scc0 L_TYPEB")
    st = (list(g.vm), list(g.lg), g.st.n)
    body(g, 0)
    g.label("L_TYPEB")
    g.vm, g.lg, g.st.n = list(st[0]), list(st[1]), st[2]; g.hist = []
    body(g, 1)
    g.label("L_END")
    e("s_endpgm")
    return g

def kd(name, vgpr, sgpr, acc):
    return f""".amdhsa_kernel {name}
  .amdhsa_next_free_vgpr {vgpr}
  .amdhsa_next_free_sgpr {sgpr}
  .amdhsa_accum_offset {acc}
  .amdhsa_group_segment_fixed_size 0
  .amdhsa_kernarg_size 72
  .amdhsa_user_sgpr_count 2
  .amdhsa_user_sgpr_kernarg_segment_ptr 1
  .amdhsa_system_sgpr_workgroup_id_x 1
.end_amdhsa_kernel
"""

def main(out):
    hdr = open("parallel_sum__linear_attn_block__dense_activation_relu__prompt.s.ref").read().split("; Override")[0]
    g = gen()
    s = hdr
    s += "; @launch grid=(256,1,1) block=(256,1,1) lds=163840\n"
    s += '.amdgcn_target "amdgcn-amd-amdhsa--gfx950"\n.text\n'
    s += f".globl {NAME}\n.p2align 8\n.type {NAME},@function\n{NAME}:\n" + g.text()
    s += '.section .rodata,"a"\n.p2align 6\n' + kd(NAME, 512, 102, 256)
    open(out, "w").write(s)
    print("nops", g.nops, "lines", len(g.out), "stamps", g.st.n)

if __name__ == "__main__":
    for a in sys.argv[2:]:
        if a == "stamp": STAMP = 1
        elif a == "stamp2": STAMP = 2
        elif a == "stamp3": STAMP = 3
        elif a == "v": VERB = True
        else:
            k, v = a.split("="); OPT[k] = int(v)
    main(sys.argv[1])
```
